```python
import torch

def _softmax(x, axis=-1):
    return torch.softmax(x, dim=axis)
def _gelu(x):
    return torch.nn.functional.gelu(x, approximate="tanh")
def _silu(x):
    return torch.nn.functional.silu(x)
def _sigmoid(x):
    return torch.sigmoid(x)
def _layernorm(x, axis=-1, eps=1e-5):
    m = x.mean(dim=axis, keepdim=True)
    v = x.var(dim=axis, keepdim=True, unbiased=False)
    return (x - m) / torch.sqrt(v + eps)
def _scatter_add(tgt, idx, src, axis=0):
    return tgt.clone().index_add_(axis, idx, src)
def _segment_sum(src, seg, n):
    out = torch.zeros((n,) + src.shape[1:], dtype=src.dtype)
    return out.index_add_(0, seg, src)
def _pad(x, pw):
    flat = tuple(v for pair in reversed(pw) for v in pair)
    return torch.nn.functional.pad(x, flat)

kernel_name = 'concat_heads__mha_block__spectral_fnet__prompt'

def setup_inputs():

    _w = (lambda a: (lambda t: t.to(torch.bfloat16) if t.is_floating_point() else t)(torch.as_tensor(a)))
    def _A_setup():
        B, S, D, H = 1, 2048, 512, 32
        return {
            "x": _w((lambda *s: torch.randn(*s, dtype=torch.bfloat16) * 0.2)(B, S, D)),
            "wqkv": _w((lambda *s: torch.randn(*s, dtype=torch.bfloat16) * 0.8)(D, 3 * D)),
            "wo": _w((lambda *s: torch.randn(*s, dtype=torch.bfloat16) * 0.2)(D, D)),
        }
    _A_in = _A_setup()

    def _B_setup():
        B, S, D = 1, 2048, 512
        ns = torch.arange(S)[:, None] * torch.arange(S)[None, :]
        nd = torch.arange(D)[:, None] * torch.arange(D)[None, :]
        Ws_re = torch.cos(-2.0 * torch.pi * ns / S).to(float)
        Ws_im = torch.sin(-2.0 * torch.pi * ns / S).to(float)
        Wd_re = torch.cos(-2.0 * torch.pi * nd / D).to(float)
        Wd_im = torch.sin(-2.0 * torch.pi * nd / D).to(float)
        return {
            "x": _w((lambda *s: torch.randn(*s, dtype=torch.bfloat16) * 0.05)(B, S, D)),
            "dft_seq_re": _w(Ws_re),
            "dft_seq_im": _w(Ws_im),
            "dft_hid_re": _w(Wd_re),
            "dft_hid_im": _w(Wd_im),
        }
    _B_in = _B_setup()

    return {
        "A_x": _A_in["x"],
        "A_wqkv": _A_in["wqkv"],
        "A_wo": _A_in["wo"],
        "B_x": _B_in["x"],
        "B_dft_seq_re": _B_in["dft_seq_re"],
        "B_dft_seq_im": _B_in["dft_seq_im"],
        "B_dft_hid_re": _B_in["dft_hid_re"],
        "B_dft_hid_im": _B_in["dft_hid_im"],
    }

def reference(A_x, A_wqkv, A_wo, B_x, B_dft_seq_re, B_dft_seq_im, B_dft_hid_re, B_dft_hid_im):
    def _A_ref(x, wqkv, wo):
        B, S, D = x.shape
        H = 32
        Dh = D // H
        qkv = (lambda x, *d: x.permute(*d))((x @ wqkv).reshape(B, S, 3, H, Dh), 2, 0, 3, 1, 4)
        q, k, v = qkv[0], qkv[1], qkv[2]
        scores = torch.einsum("bhqd,bhkd->bhqk", q, k) * (Dh ** -0.5)
        p = _softmax(scores, axis=-1)
        o = torch.einsum("bhqk,bhkd->bhqd", p, v)
        return (lambda x, *d: x.permute(*d))(o, 0, 2, 1, 3).reshape(B, S, D) @ wo

    def _B_ref(x, dft_seq_re, dft_seq_im, dft_hid_re, dft_hid_im):
        a = torch.einsum("bsd,ed->bse", x, dft_hid_re)
        b = torch.einsum("bsd,ed->bse", x, dft_hid_im)
        y = torch.einsum("ts,bse->bte", dft_seq_re, a) - torch.einsum("ts,bse->bte", dft_seq_im, b)
        return y

    a = _A_ref(A_x, A_wqkv, A_wo)
    b = _B_ref(B_x, B_dft_seq_re, B_dft_seq_im, B_dft_hid_re, B_dft_hid_im)
    return torch.concatenate([a, b], axis=-1)
```

```python
QF_OFF   = 0x000000
KV_OFF   = 0x200000
AEF_OFF  = 0x600000
BOF_OFF  = 0x680000
AE1K_OFF = 0x700000
OF_OFF   = 0x800000
WS_USED  = 0xA00000
QSCALE = 0.25*1.4426950408889634
import struct
def f2u(x): return struct.unpack('<I', struct.pack('<f', x))[0]

class Asm:
    def __init__(self): self.L = []
    def __call__(self, s):
        for l in s.strip('\n').split('\n'):
            l = l.strip()
            if l: self.L.append(l if l.endswith(':') else '    ' + l)
    def label(self, n): self.L.append(n + ':')
    def text(self): return '\n'.join(self.L) + '\n'

def vr(a, n): return f'v[{a}:{a+n-1}]' if n > 1 else f'v{a}'
def sr(a, n): return f's[{a}:{a+n-1}]' if n > 1 else f's{a}'

def header(name):
    return f'.globl {name}\n.p2align 8\n.type {name},@function\n{name}:\n'
def kd(name, vgpr, sgpr=96):
    acc = (vgpr + 3)//4*4
    return f'''.p2align 6
.amdhsa_kernel {name}
  .amdhsa_next_free_vgpr {vgpr}
  .amdhsa_next_free_sgpr {sgpr}
  .amdhsa_accum_offset {acc}
  .amdhsa_group_segment_fixed_size 0
  .amdhsa_kernarg_size 88
  .amdhsa_user_sgpr_count 2
  .amdhsa_user_sgpr_kernarg_segment_ptr 1
  .amdhsa_system_sgpr_workgroup_id_x 1
.end_amdhsa_kernel
'''
```

```python
from common import *
def gemm1(name='gemm1_kernel'):
    a = Asm()
    a(f'''
    s_cmp_ge_u32 s2, 256
    s_cbranch_scc1 K1_END
    s_load_dwordx4 s[4:7], s[0:1], 0
    s_load_dwordx2 s[8:9], s[0:1], 24
    s_load_dwordx4 s[12:15], s[0:1], 48
    s_load_dwordx2 s[16:17], s[0:1], 80
    v_lshrrev_b32 v1, 6, v0
    v_and_b32 v0, 63, v0
    s_and_b32 s20, s2, 7
    v_readfirstlane_b32 s27, v1
    s_lshr_b32 s21, s2, 3
    s_and_b32 s22, s21, 7
    s_lshr_b32 s23, s21, 3
    s_and_b32 s24, s20, 1
    s_lshl_b32 s24, s24, 3
    s_add_u32 s24, s24, s22
    s_lshr_b32 s25, s20, 1
    s_lshl_b32 s26, s23, 1
    s_add_u32 s26, s26, s22
    s_and_b32 s26, s26, 7
    ''')
    a('''
    s_lshl_b32 s40, s24, 7
    s_mov_b32 s41, 1
    s_movk_i32 s42, 3072
    s_lshl_b32 s43, s25, 10
    s_lshl_b32 s44, s23, 8
    s_add_u32 s43, s43, s44
    s_cmp_lg_u32 s25, 3
    s_cbranch_scc1 K1_NOTF
    s_lshl_b32 s40, s24, 6
    s_movk_i32 s42, 1024
    s_and_b32 s43, s44, 256
    s_cmp_lt_u32 s27, 4
    s_cbranch_scc1 K1_NOTF
    s_sub_u32 s40, 2112, s40
    s_mov_b32 s41, -1
    K1_NOTF:
    ''')
    a('''
    s_lshl_b32 s45, s27, 4
    v_lshrrev_b32 v6, 3, v0
    v_add_u32 v6, s45, v6
    v_and_b32 v8, 7, v0
    v_mov_b32 v11, 1024
    s_movk_i32 s46, 2048
    ''')
    for j in range(2):
        a(f'''
        v_add_u32 v7, {8*j}, v6
        v_mul_i32_i24 v9, s41, v7
        v_add_u32 v9, s40, v9
        v_cmp_eq_u32 vcc, s46, v9
        v_bfe_u32 v10, v7, 1, 3
        v_xor_b32 v10, v8, v10
        v_cndmask_b32 v9, v9, v11, vcc
        v_lshlrev_b32 v10, 4, v10
        v_lshl_add_u32 v{2+j}, v9, 10, v10
        ''')
    a('''
    v_lshrrev_b32 v6, 4, v0
    s_lshl_b32 s45, s27, 3
    v_add_u32 v7, s45, v6
    v_mul_lo_u32 v7, v7, s42
    v_and_b32 v8, 15, v0
    v_lshlrev_b32 v6, 2, v6
    v_xor_b32 v8, v8, v6
    v_lshlrev_b32 v8, 4, v8
    v_add3_u32 v4, v7, v8, s43
    s_lshl_b32 s45, s42, 2
    v_add_u32 v5, s45, v4
    s_lshl_b32 s47, s27, 11
    s_lshl_b32 s48, s42, 6
    s_waitcnt lgkmcnt(0)
    s_cmp_eq_u32 s25, 3
    s_cselect_b32 s28, s8, s4
    s_cselect_b32 s29, s9, s5
    s_mov_b32 s30, 0x200000
    s_mov_b32 s31, 0x20000
    s_mov_b32 s34, 0x180000
    s_cselect_b32 s34, 0x80000, s34
    s_cselect_b32 s49, 1, 0
    s_cmp_lt_u32 s23, 2
    s_cselect_b32 s32, s12, s14
    s_cselect_b32 s33, s13, s15
    s_cmp_eq_u32 s49, 1
    s_cselect_b32 s32, s32, s6
    s_cselect_b32 s33, s33, s7
    s_mov_b32 s35, 0x20000
    ''')
    def issue(c):
        slot = c % 4
        a(f'''
        s_add_u32 s50, s26, {c}
        s_and_b32 s50, s50, 7
        s_lshl_b32 s51, s50, 7
        s_mul_i32 s52, s50, s48
        s_add_u32 m0, s47, {slot*32768}
        s_nop 0
        buffer_load_dwordx4 v2, s[28:31], s51 offen lds
        s_add_u32 m0, s47, {slot*32768+16384}
        s_nop 0
        buffer_load_dwordx4 v4, s[32:35], s52 offen lds
        s_add_u32 m0, s47, {slot*32768+1024}
        s_nop 0
        buffer_load_dwordx4 v3, s[28:31], s51 offen lds
        s_add_u32 m0, s47, {slot*32768+16384+1024}
        s_nop 0
        buffer_load_dwordx4 v5, s[32:35], s52 offen lds
        ''')
    for c in range(4): issue(c)
    a(f'''
    s_mov_b32 s36, s16
    s_mov_b32 s37, s17
    s_mov_b32 s38, {WS_USED}
    s_mov_b32 s39, 0x20000
    s_and_b32 s53, s27, 1
    s_lshr_b32 s54, s27, 1
    v_and_b32 v6, 31, v0
    v_lshrrev_b32 v7, 5, v0
    s_lshl_b32 s45, s53, 5
    v_add_u32 v8, s45, v6
    v_bfe_u32 v9, v8, 1, 3
    v_xor_b32 v9, v9, v7
    ''')
    for ks in range(4):
        a(f'''
        v_xor_b32 v10, {2*ks}, v9
        v_lshlrev_b32 v10, 4, v10
        v_lshl_add_u32 v{96+ks}, v8, 7, v10
        v_add_u32 v{100+ks}, 0x10000, v{96+ks}
        ''')
    a('''
    v_bfe_u32 v8, v0, 2, 2
    v_lshl_add_u32 v9, v7, 3, v8
    v_bfe_u32 v10, v0, 4, 1
    v_lshlrev_b32 v10, 1, v10
    v_bfe_u32 v11, v0, 1, 1
    v_add_u32 v10, v10, v11
    s_lshl_b32 s45, s54, 2
    v_add_u32 v10, s45, v10
    v_lshlrev_b32 v8, 2, v8
    v_xor_b32 v10, v10, v8
    v_lshlrev_b32 v10, 4, v10
    v_lshl_add_u32 v10, v9, 8, v10
    v_and_b32 v11, 1, v0
    v_lshl_add_u32 v104, v11, 3, v10
    v_add_u32 v105, 0x10000, v104
    ''')
    a('''
    s_lshl_b32 s45, s27, 3
    v_add_u32 v8, s45, v0
    v_and_b32 v9, 3, v0
    v_lshlrev_b32 v9, 6, v9
    v_lshl_add_u32 v106, v8, 8, v9
    v_add_u32 v107, 0x10000, v106
    v_lshlrev_b32 v108, 15, v11
    v_add_u32 v108, 0x3f80, v108
    s_cmp_eq_u32 s23, 2
    s_cselect_b32 s55, s49, 0
    s_cmp_ge_u32 s25, 2
    s_cbranch_scc1 K1_LOOP_XW
    ''')
    def reads(slot, ks, fs):
        b = 16 + 12*fs
        hi = slot >= 2
        so = (slot & 1)*32768
        xa = (100 if hi else 96) + ks
        wa = 105 if hi else 104
        a(f'''
        ds_read_b128 {vr(b,4)}, v{xa} offset:{so}
        ds_read_b64_tr_b16 {vr(b+8,2)}, v{wa} offset:{so+16384+ks*4096}
        ds_read_b64_tr_b16 {vr(b+10,2)}, v{wa} offset:{so+16384+ks*4096+1024}
        ds_read_b128 {vr(b+4,4)}, v{xa} offset:{so+8192}
        ''')
    def mfmas(wx, fs, first):
        b = 16 + 12*fs
        for T in range(2):
            d = vr(64+16*T, 16); c = '0' if first else d
            x = vr(b+4*T, 4); w = vr(b+8, 4)
            a(f'v_mfma_f32_32x32x16_bf16 {d}, {w if wx else x}, {x if wx else w}, {c}')
    def loop(wx, tag):
        for c in range(8):
            slot = c % 4
            n = {0: 12, 6: 4, 7: 0}.get(c, 8)
            a(f's_waitcnt vmcnt({n})')
            if not wx:
                a(f'''
                s_cmp_eq_u32 s55, 0
                s_cbranch_scc1 K1_NP{c}
                s_mov_b64 exec, 0xff
                ds_write_b16 v{107 if slot>=2 else 106}, v108 offset:{(slot&1)*32768+16384}
                s_mov_b64 exec, -1
                s_waitcnt lgkmcnt(0)
                K1_NP{c}:
                ''')
            a('s_barrier')
            reads(slot, 0, 0); reads(slot, 1, 1)
            if 1 <= c <= 4: issue(c+3)
            a('s_waitcnt lgkmcnt(4)')
            reads(slot, 2, 2)
            mfmas(wx, 0, c == 0)
            a('s_waitcnt lgkmcnt(4)')
            reads(slot, 3, 3)
            mfmas(wx, 1, False)
            a('s_waitcnt lgkmcnt(4)')
            mfmas(wx, 2, False)
            a('s_waitcnt lgkmcnt(0)')
            mfmas(wx, 3, False)
    loop(True, 'wx')
    a(f'''
    s_lshl_b32 s56, s23, 3
    s_lshl_b32 s57, s54, 1
    s_add_u32 s56, s56, s57
    s_lshl_b32 s56, s56, 6
    s_lshl_b32 s57, s24, 2
    s_add_u32 s57, s57, s53
    s_add_u32 s56, s56, s57
    s_cmp_eq_u32 s25, 0
    s_cbranch_scc0 K1_EPI_K
    s_lshl_b32 s56, s56, 10
    v_lshlrev_b32 v1, 4, v0
    s_mov_b32 s58, {f2u(QSCALE)}
    s_nop 7
    ''')
    for r in range(32): a(f'v_mul_f32 v{64+r}, s58, v{64+r}')
    for T in range(2):
        for hh in range(2):
            b = 64 + 16*T + 8*hh
            for i in range(4): a(f'v_cvt_pk_bf16_f32 v{16+(2*T+hh)*4+i}, v{b+2*i}, v{b+2*i+1}')
            a(f's_add_u32 s57, s56, {QF_OFF + hh*65536 + T*2048}')
            a(f'buffer_store_dwordx4 {vr(16+(2*T+hh)*4,4)}, v1, s[36:39], s57 offen')
    a('s_endpgm')
    a(f'''
    K1_EPI_K:
    s_lshl_b32 s56, s56, 11
    v_and_b32 v1, 0x33, v0
    v_bfe_u32 v2, v0, 2, 1
    v_bfe_u32 v3, v0, 3, 1
    v_lshl_add_u32 v1, v2, 3, v1
    v_lshl_add_u32 v1, v3, 2, v1
    v_lshlrev_b32 v1, 4, v1
    s_nop 4
    ''')
    for T in range(2):
        for hh in range(2):
            b = 64 + 16*T + 8*hh
            for i in range(4): a(f'v_cvt_pk_bf16_f32 v{16+(2*T+hh)*4+i}, v{b+2*i}, v{b+2*i+1}')
            a(f's_add_u32 s57, s56, {KV_OFF + hh*131072 + T*4096}')
            a(f'buffer_store_dwordx4 {vr(16+(2*T+hh)*4,4)}, v1, s[36:39], s57 offen')
    a('s_endpgm')
    a('K1_LOOP_XW:')
    loop(False, 'xw')
    a(f'''
    s_cmp_eq_u32 s25, 3
    s_cbranch_scc1 K1_EPI_F
    s_lshl_b32 s56, s23, 3
    s_lshl_b32 s57, s54, 1
    s_add_u32 s56, s56, s57
    s_lshl_b32 s56, s56, 6
    s_lshl_b32 s57, s24, 2
    s_add_u32 s57, s57, s53
    s_add_u32 s56, s56, s57
    s_lshl_b32 s56, s56, 11
    v_and_b32 v1, 15, v0
    v_lshlrev_b32 v1, 4, v1
    v_bfe_u32 v2, v0, 4, 1
    v_lshl_add_u32 v1, v2, 17, v1
    v_lshl_add_u32 v1, v7, 8, v1
    s_nop 1
    ''')
    for T in range(2):
        for f in range(2):
            b = 64 + 16*T + 8*f
            for i in range(4): a(f'v_cvt_pk_bf16_f32 v{16+(2*T+f)*4+i}, v{b+2*i}, v{b+2*i+1}')
            a(f's_add_u32 s57, s56, {KV_OFF + 1024 + f*512 + T*4096}')
            a(f'buffer_store_dwordx4 {vr(16+(2*T+f)*4,4)}, v1, s[36:39], s57 offen')
    a('s_endpgm')
    a(f'''
    K1_EPI_F:
    s_cmp_lt_u32 s23, 2
    s_cselect_b32 s58, 1.0, -1.0
    s_mov_b32 s59, {BOF_OFF}
    s_cselect_b32 s59, {AEF_OFF}, s59
    v_mov_b32 v2, s58
    s_or_b32 s61, s24, s53
    s_cmp_eq_u32 s55, 0
    s_cbranch_scc1 K1_F1
    s_cmp_lg_u32 s54, 0
    s_cbranch_scc1 K1_F1
    v_cmp_eq_u32 vcc, 0, v6
    s_nop 1
    v_cndmask_b32 v2, v2, 1.0, vcc
    K1_F1:
    v_mov_b32 v3, v2
    s_cmp_lg_u32 s61, 0
    s_cbranch_scc1 K1_F2
    v_cmp_eq_u32 vcc, 0, v7
    s_nop 1
    v_cndmask_b32 v3, v3, 0, vcc
    s_lshl_b32 s62, s23, 7
    s_lshl_b32 s63, s54, 5
    s_add_u32 s62, s62, s63
    v_add_u32 v4, s62, v6
    v_lshlrev_b32 v5, 2, v4
    v_cmp_gt_u32 vcc, 257, v4
    s_mov_b32 vcc_hi, 0
    s_mov_b32 s63, {AE1K_OFF}
    s_nop 7
    s_and_saveexec_b64 s[64:65], vcc
    s_cbranch_execz K1_F3
    buffer_store_dword v80, v5, s[36:39], s63 offen
    K1_F3:
    s_mov_b64 exec, s[64:65]
    K1_F2:
    s_and_b32 s56, s23, 1
    s_lshl_b32 s56, s56, 2
    s_add_u32 s56, s56, s54
    s_lshl_b32 s56, s56, 6
    s_lshl_b32 s57, s24, 2
    s_lshl_b32 s62, s53, 1
    s_add_u32 s57, s57, s62
    s_add_u32 s56, s56, s57
    s_lshl_b32 s56, s56, 10
    s_add_u32 s56, s56, s59
    v_lshlrev_b32 v1, 4, v0
    s_nop 4
    ''')
    for r in range(16): a(f'v_fma_f32 v{64+r}, v{80+r}, v{3 if r == 0 else 2}, v{64+r}')
    for f in range(2):
        b = 64 + 8*f
        for i in range(4): a(f'v_cvt_pk_bf16_f32 v{16+f*4+i}, v{b+2*i}, v{b+2*i+1}')
    a('s_nop 1')
    for f in range(2):
        a(f'v_permlane32_swap_b32 v{16+f*4}, v{18+f*4}')
        a(f'v_permlane32_swap_b32 v{17+f*4}, v{19+f*4}')
    a('s_nop 1')
    for f in range(2):
        a(f'buffer_store_dwordx4 {vr(16+f*4,4)}, v1, s[36:39], s56 offen offset:{f*1024}')
    a('K1_END:')
    a('s_endpgm')
    return header(name) + a.text(), kd(name, 112)
```

```python
from common import *
SCR = 131072
CNT_A, CNT_B, BADF, CNT_F = SCR, SCR+4, SCR+8, SCR+12
MX = SCR+256
FP = SCR+4608
FP_STRIDE = 8704
BIAS = 40.0
KA, VA, IDX = 1, 2, 3
QA, QB = 4, 8
KF = 12
VF = [[20, 24], [28, 32]]
SA, SB, OA, OB, MA, MB = 48, 64, 80, 96, 112, 128
def attn(name='attn_kernel'):
    a = Asm()
    a(f'''
    s_cmp_ge_u32 s2, 256
    s_cbranch_scc1 K2_END
    s_load_dwordx4 s[4:7], s[0:1], 32
    s_load_dwordx2 s[8:9], s[0:1], 64
    s_load_dwordx2 s[10:11], s[0:1], 80
    v_lshrrev_b32 v1, 6, v0
    v_and_b32 v0, 63, v0
    s_and_b32 s29, s2, 7
    v_readfirstlane_b32 s28, v1
    s_lshr_b32 s30, s2, 3
    s_lshl_b32 s29, s29, 2
    s_lshr_b32 s31, s30, 3
    s_add_u32 s29, s29, s31
    s_and_b32 s30, s30, 7
    v_lshlrev_b32 v36, 4, v0
    s_waitcnt lgkmcnt(0)
    s_mov_b32 s12, s10
    s_mov_b32 s13, s11
    s_mov_b32 s14, {WS_USED}
    s_mov_b32 s15, 0x20000
    s_cmp_ge_u32 s28, 8
    s_cbranch_scc1 K2_BG
    ''')
    a(f'''
    s_and_b32 s33, s28, 3
    s_lshr_b32 s34, s28, 2
    s_lshl_b32 s35, s30, 3
    s_lshl_b32 s36, s33, 1
    s_add_u32 s35, s35, s36
    s_lshl_b32 s36, s29, 6
    s_add_u32 s36, s36, s35
    s_lshl_b32 s36, s36, 10
    buffer_load_dwordx4 {vr(QA,4)}, v36, s[12:15], s36 offen
    buffer_load_dwordx4 {vr(QB,4)}, v36, s[12:15], s36 offen offset:1024
    s_lshl_b32 s37, s34, 16
    v_add_u32 v{KA}, s37, v36
    v_and_b32 v37, 15, v0
    v_lshrrev_b32 v38, 5, v0
    v_lshlrev_b32 v37, 4, v37
    v_lshl_add_u32 v37, v38, 8, v37
    v_add_u32 v37, 1024, v37
    v_add_u32 v{VA}, s37, v37
    v_mov_b32 v{IDX}, 0xdddddddd
    v_and_b32 v39, 27, v0
    v_cmp_eq_u32 vcc, 16, v39
    v_mov_b32 v40, 0x3f803f80
    s_mov_b32 s40, 0x0000ffff
    s_mov_b32 s41, 0x0000ffff
    v_cndmask_b32 v40, 0, v40, vcc
    s_mov_b32 s42, 0
    ''')
    for r in range(20, 36): a(f'v_mov_b32 v{r}, v40')
    a('s_waitcnt vmcnt(0)')
    a('s_barrier')
    a(f'''
    ds_read_b128 {vr(KF,4)}, v36
    s_waitcnt lgkmcnt(0)
    v_mfma_f32_32x32x16_bf16 {vr(SA,16)}, {vr(KF,4)}, {vr(QA,4)}, 0
    v_mfma_f32_32x32x16_bf16 {vr(SB,16)}, {vr(KF,4)}, {vr(QB,4)}, 0
    s_nop 10
    ''')
    def rowmax(S, dst, acc=False):
        if not acc:
            a(f'v_max3_f32 v{dst}, v{S}, v{S+1}, v{S+2}')
            for i in range(3, 15, 2): a(f'v_max3_f32 v{dst}, v{dst}, v{S+i}, v{S+i+1}')
            a(f'v_max_f32 v{dst}, v{dst}, v{S+15}')
        else:
            for i in range(0, 16, 2): a(f'v_max3_f32 v{dst}, v{dst}, v{S+i}, v{S+i+1}')
    def xhalf(r, t):
        a(f'''
        v_mov_b32 v{t}, v{r}
        s_nop 1
        v_permlane32_swap_b32 v{r}, v{t}
        s_nop 1
        v_max_f32 v{r}, v{r}, v{t}
        ''')
    rowmax(SA, 41); rowmax(SB, 42); xhalf(41, 43); xhalf(42, 44)
    a(f'''
    v_mov_b32 v43, {f2u(-BIAS)}
    v_sub_f32 v41, v43, v41
    v_sub_f32 v42, v43, v42
    K2_RESTART:
    ds_read_b128 {vr(KF,4)}, v{KA}
    s_mov_b64 exec, s[40:41]
    ds_read_b128 {vr(VF[0][0],4)}, v{VA}
    ds_read_b128 {vr(VF[0][1],4)}, v{VA} offset:512
    s_mov_b64 exec, -1
    ''')
    for r in range(16):
        a(f'v_mov_b32 v{MA+r}, v41'); a(f'v_mov_b32 v{MB+r}, v42')
    for r in range(16):
        a(f'v_mov_b32 v{OA+r}, 0'); a(f'v_mov_b32 v{OB+r}, 0')
    for r in range(8, 16): a(f'v_mov_b32 v{SB+r}, 0')
    a(f'''
    s_mov_b32 s43, 0
    s_waitcnt lgkmcnt(0)
    v_mfma_f32_32x32x16_bf16 {vr(SA,16)}, {vr(KF,4)}, {vr(QA,4)}, {vr(MA,16)}
    s_nop 10
    s_branch K2_LOOP
    K2_CHECK:
    s_cmp_gt_u32 s43, 2
    s_cbranch_scc1 K2_LOOP
    s_lshl_b32 s44, s43, 2
    s_add_u32 s44, s44, {CNT_A-4}
    v_mov_b32 v43, s44
    K2_SPIN:
    ds_read_b32 v44, v43
    s_waitcnt lgkmcnt(0)
    v_readfirstlane_b32 s44, v44
    s_cmpk_ge_u32 s44, 256
    s_cbranch_scc0 K2_SPIN
    K2_LOOP:
    ''')
    def ex(S, lo, hi):
        for i in range(lo, hi): a(f'v_exp_f32 v{S+i}, v{S+i}')
    def tile(j):
        vs, vp = VF[j & 1], VF[(j+1) & 1]
        ex(SA, 0, 2)
        a(f'v_smfmac_f32_32x32x32_bf16 {vr(OB,16)}, {vr(vp[1],4)}, {vr(SB+8,8)}, v{IDX}')
        ex(SA, 2, 5)
        a(f'v_mfma_f32_32x32x16_bf16 {vr(SB,16)}, {vr(KF,4)}, {vr(QB,4)}, {vr(MB,16)}')
        o = (j+1)*2048
        a(f'''
        ds_read_b128 {vr(KF,4)}, v{KA} offset:{o}
        s_mov_b64 exec, s[40:41]
        ds_read_b128 {vr(vp[0],4)}, v{VA} offset:{o}
        ds_read_b128 {vr(vp[1],4)}, v{VA} offset:{o+512}
        s_mov_b64 exec, -1
        ''')
        ex(SA, 5, 10)
        a(f'v_smfmac_f32_32x32x32_bf16 {vr(OA,16)}, {vr(vs[0],4)}, {vr(SA,8)}, v{IDX}')
        ex(SA, 10, 16)
        ex(SB, 0, 2)
        a(f'v_smfmac_f32_32x32x32_bf16 {vr(OA,16)}, {vr(vs[1],4)}, {vr(SA+8,8)}, v{IDX}')
        ex(SB, 2, 5)
        a('s_waitcnt lgkmcnt(0)')
        a(f'v_mfma_f32_32x32x16_bf16 {vr(SA,16)}, {vr(KF,4)}, {vr(QA,4)}, {vr(MA,16)}')
        ex(SB, 5, 10)
        a(f'v_smfmac_f32_32x32x32_bf16 {vr(OB,16)}, {vr(vs[0],4)}, {vr(SB,8)}, v{IDX}')
        if j == 3:
            a(f'v_add_u32 v{KA}, 0x2000, v{KA}')
            a(f'v_add_u32 v{VA}, 0x2000, v{VA}')
            a('s_add_u32 s43, s43, 1')
            a('s_cmp_lt_u32 s43, 8')
        ex(SB, 10, 16)
    for j in range(4): tile(j)
    a(f'''
    s_cbranch_scc1 K2_CHECK
    s_nop 1
    v_smfmac_f32_32x32x32_bf16 {vr(OB,16)}, {vr(VF[1][1],4)}, {vr(SB+8,8)}, v{IDX}
    v_subrev_u32 v{KA}, 0x10000, v{KA}
    v_subrev_u32 v{VA}, 0x10000, v{VA}
    s_cmp_lg_u32 s42, 0
    s_cbranch_scc1 K2_NOCHK
    s_mov_b32 s44, {f2u(2.0**100)}
    s_mov_b32 s45, 0x7f800000
    s_mov_b32 s46, {f2u(2.0**-41)}
    s_mov_b32 s47, {f2u(2.0**-90)}
    s_nop 6
    ''')
    for k, O in enumerate((OA, OB)):
        t = 43+k
        a(f'v_add_f32 v{t}, abs(v{O}), abs(v{O+1})')
        for i in range(2, 8): a(f'v_add_f32 v{t}, v{t}, abs(v{O+i})')
        a(f'''
        v_cmp_ngt_f32 s[48:49], s44, v{O+8}
        v_cmp_ngt_f32 s[50:51], s45, v{t}
        v_cmp_le_f32 s[52:53], s46, v{O+8}
        v_cmp_gt_f32 vcc, s47, v{t}
        s_or_b64 s[48:49], s[48:49], s[50:51]
        s_and_b64 vcc, vcc, s[52:53]
        s_or_b64 s[{54+2*k}:{55+2*k}], s[48:49], vcc
        ''')
    a(f'''
    s_or_b64 s[54:55], s[54:55], s[56:57]
    s_cbranch_scc0 K2_GOOD
    v_mov_b32 v43, {BADF}
    v_mov_b32 v44, 1
    ds_write_b32 v43, v44
    s_waitcnt lgkmcnt(0)
    K2_GOOD:
    s_barrier
    v_mov_b32 v43, {BADF}
    ds_read_b32 v44, v43
    s_waitcnt lgkmcnt(0)
    v_readfirstlane_b32 s44, v44
    s_cmp_eq_u32 s44, 0
    s_cbranch_scc1 K2_COMBINE
    ''')
    a(f'''
    s_mov_b32 s42, 1
    v_mov_b32 v41, 0xff800000
    v_mov_b32 v42, 0xff800000
    v_mov_b32 v45, v{KA}
    s_mov_b32 s43, 0
    K2_MAXLOOP:
    ds_read_b128 {vr(KF,4)}, v45
    v_add_u32 v45, 0x800, v45
    s_waitcnt lgkmcnt(0)
    v_mfma_f32_32x32x16_bf16 {vr(SA,16)}, {vr(KF,4)}, {vr(QA,4)}, 0
    v_mfma_f32_32x32x16_bf16 {vr(SB,16)}, {vr(KF,4)}, {vr(QB,4)}, 0
    s_nop 11
    ''')
    rowmax(SA, 41, True); rowmax(SB, 42, True)
    a(f'''
    s_add_u32 s43, s43, 1
    s_cmp_lt_u32 s43, 32
    s_cbranch_scc1 K2_MAXLOOP
    ''')
    xhalf(41, 43); xhalf(42, 44)
    a(f'''
    s_lshl_b32 s44, s28, 9
    s_add_u32 s44, s44, {MX}
    v_lshlrev_b32 v43, 2, v0
    v_add_u32 v43, s44, v43
    ds_write_b32 v43, v41
    ds_write_b32 v43, v42 offset:256
    s_waitcnt lgkmcnt(0)
    s_barrier
    v_xor_b32 v43, 0x800, v43
    ds_read_b32 v44, v43
    ds_read_b32 v45, v43 offset:256
    s_waitcnt lgkmcnt(0)
    v_max_f32 v41, v41, v44
    v_max_f32 v42, v42, v45
    v_sub_f32 v41, 0, v41
    v_sub_f32 v42, 0, v42
    s_branch K2_RESTART
    K2_NOCHK:
    s_nop 7
    s_barrier
    K2_COMBINE:
    ''')
    a(f'''
    s_lshl_b32 s44, s28, 12
    v_add_u32 v43, s44, v36
    s_cmp_eq_u32 s34, 0
    s_cbranch_scc1 K2_SENDB
    ds_write_b128 v43, {vr(OA,4)}
    ds_write_b128 v43, {vr(OA+4,4)} offset:1024
    ds_write_b32 v43, v{OA+8} offset:2048
    s_waitcnt lgkmcnt(0)
    ''')
    for r in range(9): a(f'v_mov_b32 v{OA+r}, v{OB+r}')
    a(f'''
    s_add_u32 s35, s35, 1
    s_branch K2_SENT
    K2_SENDB:
    ds_write_b128 v43, {vr(OB,4)}
    ds_write_b128 v43, {vr(OB+4,4)} offset:1024
    ds_write_b32 v43, v{OB+8} offset:2048
    K2_SENT:
    s_waitcnt lgkmcnt(0)
    s_barrier
    v_xor_b32 v43, 0x4000, v43
    ds_read_b128 {vr(SA,4)}, v43
    ds_read_b128 {vr(SA+4,4)}, v43 offset:1024
    ds_read_b32 v{SA+8}, v43 offset:2048
    s_lshl_b32 s35, s35, 5
    s_add_u32 s35, s35, s29
    s_lshl_b32 s35, s35, 10
    s_add_u32 s35, s35, {OF_OFF}
    s_waitcnt lgkmcnt(0)
    v_add_f32 v{OA+8}, v{OA+8}, v{SA+8}
    v_rcp_f32 v{OA+8}, v{OA+8}
    ''')
    for r in range(8): a(f'v_add_f32 v{OA+r}, v{OA+r}, v{SA+r}')
    for r in range(8): a(f'v_mul_f32 v{OA+r}, v{OA+r}, v{OA+8}')
    for i in range(4): a(f'v_cvt_pk_bf16_f32 v{SB+i}, v{OA+2*i}, v{OA+2*i+1}')
    a(f'buffer_store_dwordx4 {vr(SB,4)}, v36, s[12:15], s35 offen')
    a('s_endpgm')

    P, Q, PX, PY = 96, 112, 128, 144
    a(f'''
    K2_BG:
    s_sub_u32 s33, s28, 8
    s_lshr_b32 s34, s33, 1
    s_and_b32 s35, s33, 1
    s_lshl_b32 s34, s34, 16
    s_lshl_b32 s35, s35, 10
    s_add_u32 s34, s34, s35
    s_lshl_b32 s35, s29, 17
    s_add_u32 s35, s35, s34
    s_add_u32 s35, s35, {KV_OFF}
    s_mov_b32 m0, s34
    ''')
    for t in range(32):
        if t % 2 == 0:
            if t: a('s_add_u32 m0, m0, 4096\ns_add_u32 s35, s35, 4096')
            else: a('s_nop 0')
            a('buffer_load_dwordx4 v36, s[12:15], s35 offen lds')
        else:
            a('buffer_load_dwordx4 v36, s[12:15], s35 offen offset:2048 lds')
    a(f'''
    v_mov_b32 v1, {SCR}
    v_mov_b32 v2, 0
    v_mov_b32 v3, 0
    v_mov_b32 v4, 0
    v_mov_b32 v5, 0
    ds_write_b128 v1, v[2:5]
    s_mov_b32 s16, s4
    s_mov_b32 s17, s5
    s_mov_b32 s18, 0x800000
    s_mov_b32 s19, 0x20000
    s_mov_b32 s20, s6
    s_mov_b32 s21, s7
    s_mov_b32 s22, 0x800000
    s_mov_b32 s23, 0x20000
    s_mov_b32 s24, s8
    s_mov_b32 s25, s9
    s_mov_b32 s26, 0x400000
    s_mov_b32 s27, 0x20000
    v_and_b32 v6, 31, v0
    v_lshrrev_b32 v7, 5, v0
    s_lshl_b32 s36, s29, 5
    v_add_u32 v8, s36, v6
    v_lshlrev_b32 v8, 12, v8
    v_lshl_add_u32 v8, v7, 4, v8
    s_lshl_b32 s36, s33, 9
    v_add_u32 v8, s36, v8
    s_lshl_b32 s36, s30, 16
    s_lshl_b32 s37, s33, 14
    s_add_u32 s36, s36, s37
    v_add_u32 v9, s36, v36
    s_mov_b32 s37, {AEF_OFF}
    s_mov_b32 s38, {BOF_OFF}
    s_mov_b64 s[40:41], -1
    s_cmp_eq_u32 s29, 0
    s_cselect_b32 s40, -2, -1
    s_cselect_b32 s41, -2, -1
    v_mov_b32 v10, 1
    v_mov_b32 v11, 0xbf803f80
    ''')
    NS = 5
    for i in range(NS):
        for r in range(4): a(f'v_mov_b32 v{16+16*i+4+r}, v11')
    a(f'''
    s_waitcnt vmcnt(27) lgkmcnt(0)
    s_barrier
    s_waitcnt vmcnt(23)
    ds_add_u32 v1, v10
    s_waitcnt vmcnt(0)
    ds_add_u32 v1, v10 offset:4
    ''')
    def fl(ks):
        b = 16 + 16*(ks % NS)
        a(f'''
        buffer_load_dwordx4 {vr(b,4)}, v8, s[16:19], 0 offen offset:{32*ks}
        s_mov_b64 exec, s[40:41]
        buffer_load_dwordx4 {vr(b+4,4)}, v8, s[20:23], 0 offen offset:{32*ks}
        s_mov_b64 exec, -1
        buffer_load_dwordx4 {vr(b+8,4)}, v9, s[12:15], s37 offen offset:{1024*(ks%4)}
        buffer_load_dwordx4 {vr(b+12,4)}, v9, s[12:15], s38 offen offset:{1024*(ks%4)}
        ''')
        if ks % 4 == 3: a('s_add_u32 s37, s37, 4096\ns_add_u32 s38, s38, 4096')
    for ks in range(NS): fl(ks)
    for r in range(32): a(f'v_mov_b32 v{PX+r}, 0')
    for ks in range(16):
        b = 16 + 16*(ks % NS)
        rem = min(16, ks+NS) - ks - 1
        a(f's_waitcnt vmcnt({4*rem})')
        c0 = '0' if ks == 0 else None
        a(f'v_mfma_f32_32x32x16_bf16 {vr(P,16)}, {vr(b,4)}, {vr(b+8,4)}, {c0 or vr(P,16)}')
        a(f'v_mfma_f32_32x32x16_bf16 {vr(Q,16)}, {vr(b+4,4)}, {vr(b+12,4)}, {c0 or vr(Q,16)}')
        a(f'''
        s_cmp_lg_u32 s30, 0
        s_cbranch_scc1 K2_FX{ks}
        v_mfma_f32_32x32x16_bf16 {vr(PX,16)}, {vr(b,4)}, {vr(b+12,4)}, {vr(PX,16)}
        K2_FX{ks}:
        s_cmp_lg_u32 s29, 0
        s_cbranch_scc1 K2_FY{ks}
        v_mfma_f32_32x32x16_bf16 {vr(PY,16)}, {vr(b+4,4)}, {vr(b+8,4)}, {vr(PY,16)}
        K2_FY{ks}:
        ''')
        if ks+NS < 16: fl(ks+NS)
    a(f'''
    s_lshl_b32 s36, s30, 7
    v_lshl_add_u32 v12, v6, 2, s36
    s_mov_b32 s36, {AE1K_OFF}
    v_mov_b32 v13, 1024
    s_cmp_eq_u32 s33, 3
    s_cbranch_scc1 K2_FIN
    s_mul_i32 s36, s33, {FP_STRIDE}
    s_add_u32 s36, s36, {FP}
    v_lshl_add_u32 v2, v0, 4, s36
    v_lshlrev_b32 v3, 6, v7
    v_add_u32 v3, s36, v3
    v_lshlrev_b32 v4, 2, v0
    v_add_u32 v4, s36, v4
    s_nop 7
    ''')
    for i in range(8): a(f'ds_write_b128 v2, {vr(P+4*i,4)} offset:{1024*i}')
    a(f'ds_write_b32 v4, v{PY} offset:{8192+128}')
    a('s_mov_b32 exec_lo, 1\ns_mov_b32 exec_hi, 1')
    for i in range(4): a(f'ds_write_b128 v3, {vr(PX+4*i,4)} offset:{8192+16*i}')
    a(f'''
    s_waitcnt lgkmcnt(0)
    ds_add_u32 v1, v10 offset:12
    s_waitcnt lgkmcnt(0)
    s_endpgm
    K2_FIN:
    buffer_load_dword v14, v12, s[12:15], s36 offen
    buffer_load_dword v15, v13, s[12:15], s36 offen
    v_lshlrev_b32 v2, 4, v0
    v_add_u32 v2, {FP}, v2
    v_lshlrev_b32 v3, 6, v7
    v_add_u32 v3, {FP}, v3
    v_lshlrev_b32 v4, 2, v0
    v_add_u32 v4, {FP}, v4
    K2_FSPIN:
    ds_read_b32 v5, v1 offset:12
    s_waitcnt lgkmcnt(0)
    v_readfirstlane_b32 s36, v5
    s_cmp_ge_u32 s36, 6
    s_cbranch_scc0 K2_FSPIN
    ''')
    for w in range(3):
        o = w*FP_STRIDE
        for i in range(8): a(f'ds_read_b128 {vr(16+4*i,4)}, v2 offset:{o+1024*i}')
        for i in range(4): a(f'ds_read_b128 {vr(48+4*i,4)}, v3 offset:{o+8192+16*i}')
        a(f'ds_read_b32 v64, v4 offset:{o+8192+128}')
        a('s_waitcnt lgkmcnt(0)')
        for r in range(32): a(f'v_add_f32 v{P+r}, v{P+r}, v{16+r}')
        for r in range(16): a(f'v_add_f32 v{PX+r}, v{PX+r}, v{48+r}')
        a(f'v_add_f32 v{PY}, v{PY}, v64')
    a('s_waitcnt vmcnt(0)')
    for r in range(16):
        op = 'v_add_f32' if r % 2 == 0 else 'v_sub_f32'
        a(f'{op} v{P+r}, v{P+r}, v14'); a(f'{op} v{PX+r}, v{PX+r}, v15')
    a(f'''
    v_add_f32 v{PY}, v{PY}, v14
    v_add_f32 v65, v{Q}, v15
    s_cmp_eq_u32 s30, 0
    s_cselect_b32 s44, 1, 0
    s_mov_b32 s45, s44
    s_cmp_eq_u32 s29, 0
    s_cselect_b32 s46, -1, 0
    s_mov_b32 s47, 0
    s_lshl_b32 s36, s30, 5
    v_add_u32 v2, s36, v6
    v_sub_u32 v3, 512, v2
    v_mov_b32 v4, 256
    v_cndmask_b32 v3, v3, v4, s[44:45]
    v_lshlrev_b32 v2, 1, v2
    v_lshlrev_b32 v3, 1, v3
    v_add_u32 v2, 1024, v2
    v_add_u32 v3, 1024, v3
    s_lshl_b32 s36, s29, 5
    v_lshl_add_u32 v4, v7, 2, s36
    v_sub_u32 v5, {2048-27}, v4
    v_lshl_add_u32 v8, v4, 11, v2
    v_lshl_add_u32 v9, v4, 11, v3
    v_lshl_add_u32 v10, v5, 11, v2
    v_lshl_add_u32 v11, v5, 11, v3
    v_mov_b32 v4, {1024-27}
    v_cndmask_b32 v5, v5, v4, s[46:47]
    v_lshl_add_u32 v12, v5, 11, v2
    v_lshl_add_u32 v13, v5, 11, v3
    ''')
    for r in range(16):
        c = (r & 3) + 8*(r >> 2)
        a(f'v_cndmask_b32 v{Q+r}, v{Q+r}, 0, s[44:45]')
        if r == 0: a(f'v_cndmask_b32 v{Q}, v{Q}, 0, s[46:47]')
        t0 = 16 + 8*(r % 4)
        a(f'''
        v_sub_f32 v{t0}, v{P+r}, v{Q+r}
        v_add_f32 v{t0+1}, v{P+r}, v{Q+r}
        v_cndmask_b32 v{t0+2}, v{t0+1}, v{PX+r}, s[44:45]
        v_cndmask_b32 v{t0+3}, v{t0}, v{PX+r}, s[44:45]
        ''')
        if r == 0:
            a(f'''
            v_cndmask_b32 v66, v{PY}, v65, s[44:45]
            v_cndmask_b32 v{t0+1}, v{t0+1}, v{PY}, s[46:47]
            v_cndmask_b32 v{t0+3}, v{t0+3}, v66, s[46:47]
            ''')
        a(f'''
        v_cvt_pk_bf16_f32 v{t0+4}, v{t0}, v{t0+1}
        v_cvt_pk_bf16_f32 v{t0+5}, v{t0+2}, v{t0+3}
        s_mov_b32 s36, {c*2048}
        s_mov_b32 s37, {(27-c)*2048}
        buffer_store_short v{t0+4}, v8, s[24:27], s36 offen
        buffer_store_short_d16_hi v{t0+4}, v{12 if r == 0 else 10}, s[24:27], s37 offen
        buffer_store_short v{t0+5}, v9, s[24:27], s36 offen
        buffer_store_short_d16_hi v{t0+5}, v{13 if r == 0 else 11}, s[24:27], s37 offen
        ''')
    a('K2_END:')
    a('s_endpgm')
    return header(name) + a.text(), kd(name, 160)
```

```python
from common import *
def oproj(name='oproj_kernel'):
    a = Asm()
    a(f'''
    s_cmp_ge_u32 s2, 256
    s_cbranch_scc1 K3_END
    s_load_dwordx2 s[4:5], s[0:1], 16
    s_load_dwordx2 s[8:9], s[0:1], 64
    s_load_dwordx2 s[10:11], s[0:1], 80
    v_lshrrev_b32 v1, 6, v0
    v_and_b32 v0, 63, v0
    s_and_b32 s29, s2, 7
    v_readfirstlane_b32 s28, v1
    s_lshr_b32 s30, s2, 3
    s_lshl_b32 s29, s29, 2
    s_lshr_b32 s31, s30, 3
    s_add_u32 s29, s29, s31
    s_and_b32 s30, s30, 7
    v_lshlrev_b32 v2, 4, v0
    v_lshrrev_b32 v3, 3, v0
    v_and_b32 v4, 7, v0
    v_and_b32 v5, 2, v3
    v_lshlrev_b32 v5, 1, v5
    v_xor_b32 v4, v4, v5
    v_lshlrev_b32 v4, 4, v4
    v_lshl_add_u32 v3, v3, 10, v4
    s_lshl_b32 s31, s30, 7
    s_lshl_b32 s32, s28, 13
    s_add_u32 s31, s31, s32
    s_lshl_b32 s33, s29, 16
    s_and_b32 s34, s28, 1
    s_lshr_b32 s35, s28, 1
    s_lshl_b32 s36, s34, 15
    s_lshl_b32 s37, s35, 10
    s_add_u32 s36, s36, s37
    s_add_u32 s33, s33, s36
    s_add_u32 s33, s33, {OF_OFF}
    s_lshl_b32 s37, s28, 10
    s_add_u32 s37, s37, 65536
    s_waitcnt lgkmcnt(0)
    s_mov_b32 s12, s10
    s_mov_b32 s13, s11
    s_mov_b32 s14, {WS_USED}
    s_mov_b32 s15, 0x20000
    s_mov_b32 s16, s4
    s_mov_b32 s17, s5
    s_mov_b32 s18, 0x80000
    s_mov_b32 s19, 0x20000
    s_mov_b32 s24, s8
    s_mov_b32 s25, s9
    s_mov_b32 s26, 0x400000
    s_mov_b32 s27, 0x20000
    ''')
    for i in range(16):
        a(f'''
        s_mov_b32 m0, s36
        s_add_u32 s36, s36, 2048
        buffer_load_dwordx4 v2, s[12:15], s33 offen lds
        s_mov_b32 m0, s37
        s_add_u32 s37, s37, 4096
        buffer_load_dwordx4 v3, s[16:19], s31 offen lds
        s_add_u32 s33, s33, 2048
        s_add_u32 s31, s31, 32768
        ''')
    a(f'''
    s_lshl_b32 s36, s34, 15
    v_add_u32 v6, s36, v2
    v_lshrrev_b32 v7, 5, v0
    v_bfe_u32 v8, v0, 2, 2
    v_lshl_add_u32 v9, v7, 2, v8
    v_bfe_u32 v10, v0, 4, 1
    v_lshlrev_b32 v10, 1, v10
    v_bfe_u32 v11, v0, 1, 1
    v_add_u32 v10, v10, v11
    s_lshl_b32 s36, s35, 2
    v_add_u32 v10, s36, v10
    v_and_b32 v8, 2, v8
    v_lshlrev_b32 v8, 1, v8
    v_xor_b32 v10, v10, v8
    v_lshlrev_b32 v10, 4, v10
    v_lshl_add_u32 v10, v9, 7, v10
    v_and_b32 v11, 1, v0
    v_lshl_add_u32 v10, v11, 3, v10
    v_add_u32 v10, 65536, v10
    v_and_b32 v11, 31, v0
    s_lshl_b32 s36, s29, 6
    s_lshl_b32 s37, s34, 5
    s_add_u32 s36, s36, s37
    v_add_u32 v11, s36, v11
    v_lshlrev_b32 v11, 11, v11
    v_lshl_add_u32 v11, v7, 4, v11
    s_lshl_b32 s36, s30, 7
    s_lshl_b32 s37, s35, 6
    s_add_u32 s36, s36, s37
    ''')
    NST = 4
    for st in range(NST):
        a(f's_waitcnt vmcnt({32 - 8*(st+1)})')
        a('s_barrier')
        def rd(hd, b):
            a(f'''
            ds_read_b128 {vr(b,4)}, v6 offset:{hd*1024}
            ds_read_b64_tr_b16 {vr(b+4,2)}, v10 offset:{hd*2048}
            ds_read_b64_tr_b16 {vr(b+6,2)}, v10 offset:{hd*2048+1024}
            ''')
        for i in range(4): rd(8*st+i, 16+8*i)
        for i in range(8):
            a(f's_waitcnt lgkmcnt({min(9, 3*(7-i))})')
            b = 16+8*(i % 4)
            c = '0' if (st == 0 and i == 0) else 'v[48:63]'
            a(f'v_mfma_f32_32x32x16_bf16 v[48:63], {vr(b+4,4)}, {vr(b,4)}, {c}')
            if i < 4: rd(8*st+4+i, b)
    a('s_nop 11')
    for i in range(8): a(f'v_cvt_pk_bf16_f32 v{16+i}, v{48+2*i}, v{49+2*i}')
    a('s_nop 1')
    for g in (0, 4):
        a(f'v_permlane32_swap_b32 v{16+g}, v{18+g}')
        a(f'v_permlane32_swap_b32 v{17+g}, v{19+g}')
    a('s_nop 1')
    a('buffer_store_dwordx4 v[16:19], v11, s[24:27], s36 offen')
    a('buffer_store_dwordx4 v[20:23], v11, s[24:27], s36 offen offset:32')
    a('K3_END:')
    a('s_endpgm')
    return header(name) + a.text(), kd(name, 64)
```

```python
import sys
sys.path.insert(0, 'gen')
from common import *
import k1
parts = []
launch = []
c, d = k1.gemm1(); parts.append((c, d)); launch.append('; @launch kernel=gemm1_kernel grid=(256,1,1) block=(512,1,1) lds=131072')
try:
    import k2
    c, d = k2.attn(); parts.append((c, d)); launch.append('; @launch kernel=attn_kernel grid=(256,1,1) block=(768,1,1) lds=163840')
    import k3
    c, d = k3.oproj(); parts.append((c, d)); launch.append('; @launch kernel=oproj_kernel grid=(256,1,1) block=(256,1,1) lds=131072')
except ImportError as e:
    print('missing', e, file=sys.stderr)
out = '\n'.join(launch) + '\n.amdgcn_target "amdgcn-amd-amdhsa--gfx950"\n.text\n'
out += ''.join(c for c, d in parts)
out += '.section .rodata,"a"\n' + ''.join(d for c, d in parts)
open(sys.argv[1] if len(sys.argv) > 1 else 'concat_heads__mha_block__spectral_fnet__prompt.s', 'w').write(out)
```

```python
QF_OFF   = 0x000000
KV_OFF   = 0x200000
AEF_OFF  = 0x600000
BOF_OFF  = 0x680000
AE1K_OFF = 0x700000
OF_OFF   = 0x800000
WS_USED  = 0xA00000
QSCALE = 0.25*1.4426950408889634
import struct
def f2u(x): return struct.unpack('<I', struct.pack('<f', x))[0]

import os
PROF = bool(int(os.environ.get('PROF', '0')))
PROF_OFF = 0x1000000
class Asm:
    def __init__(self): self.L = []
    def stamp(self, i):
        if not PROF: return
        if i == 0:
            for r in range(76, 94): self(f's_mov_b32 s{r}, 0')
            self('s_memrealtime s[70:71]')
        self(f's_mem{"real" if os.environ.get("RT") else ""}time s[{74+2*i}:{75+2*i}]')
    def flush(self, kidx, wave_sreg, vt=1):
        if not PROF: return
        self('s_memrealtime s[72:73]')
        self('s_load_dwordx2 s[94:95], s[0:1], 80')
        self('s_mov_b64 exec, -1')
        self('s_waitcnt lgkmcnt(0)')
        self(f'v_mov_b32 v{vt}, 0')
        self(f'v_writelane_b32 v{vt}, s70, 0')
        self(f'v_writelane_b32 v{vt}, s72, 1')
        for i in range(10): self(f'v_writelane_b32 v{vt}, s{74+2*i}, {2+i}')
        self(f's_lshl_b32 s70, s2, 4')
        self(f's_add_u32 s70, s70, s{wave_sreg}')
        self(f's_add_u32 s70, s70, {kidx*4096}')
        self(f's_lshl_b32 s70, s70, 6')
        self(f's_add_u32 s70, s70, {PROF_OFF}')
        self(f'v_mbcnt_lo_u32_b32 v{vt+1}, -1, 0')
        self(f'v_lshlrev_b32 v{vt+1}, 2, v{vt+1}')
        self(f'v_add_u32 v{vt+1}, s70, v{vt+1}')
        self('s_mov_b64 exec, 0xffff')
        self(f'global_store_dword v{vt+1}, v{vt}, s[94:95]')
    def __call__(self, s):
        for l in s.strip('\n').split('\n'):
            l = l.strip()
            if l: self.L.append(l if l.endswith(':') else '    ' + l)
    def label(self, n): self.L.append(n + ':')
    def text(self): return '\n'.join(self.L) + '\n'

def vr(a, n): return f'v[{a}:{a+n-1}]' if n > 1 else f'v{a}'
def sr(a, n): return f's[{a}:{a+n-1}]' if n > 1 else f's{a}'

def header(name):
    return f'.globl {name}\n.p2align 8\n.type {name},@function\n{name}:\n'
def kd(name, vgpr, sgpr=96):
    acc = (vgpr + 3)//4*4
    return f'''.p2align 6
.amdhsa_kernel {name}
  .amdhsa_next_free_vgpr {vgpr}
  .amdhsa_next_free_sgpr {sgpr}
  .amdhsa_accum_offset {acc}
  .amdhsa_group_segment_fixed_size 0
  .amdhsa_kernarg_size 88
  .amdhsa_user_sgpr_count 2
  .amdhsa_user_sgpr_kernarg_segment_ptr 1
  .amdhsa_system_sgpr_workgroup_id_x 1
.end_amdhsa_kernel
'''
```

```python
from common import *
NAME = 'concat_heads__mha_block__spectral_fnet__prompt_kernel'
FLG_P1 = 0x710000
FLG_O  = 0x720000
SCR = 131072
CNT_A, CNT_B, BADF, CNT_F = SCR, SCR+4, SCR+8, SCR+12
CMB = SCR+256
FX = CMB+18432
FE = FX+12288
BIAS = 40.0
SPIN_MAX = 1 << 16
KA, VA, IDX = 1, 2, 3
QA, QB = 4, 8
KF = 12
VF = [[20, 24], [28, 32]]
SA, SB, OA, OB, MA, MB = 48, 64, 80, 96, 112, 128
SC1 = ' sc1'

def srd(a, d, lo, size):
    a(f's_mov_b32 s{d}, s{lo}\ns_mov_b32 s{d+1}, s{lo+1}\ns_mov_b32 s{d+2}, {size}\ns_mov_b32 s{d+3}, 0x20000')

def poll(a, tag, vaddr, vt, soff, mask=None):
    if mask: a(f's_mov_b64 exec, {mask}')
    a(f'''
    s_mov_b32 s68, {SPIN_MAX}
    {tag}_SP:
    buffer_load_dword v{vt}, v{vaddr}, s[28:31], {soff} offen sc1
    s_sub_u32 s68, s68, 1
    s_waitcnt vmcnt(0)
    v_cmp_ne_u32 vcc, s27, v{vt}
    s_cbranch_scc1 {tag}_OK
    s_cbranch_vccnz {tag}_SP
    {tag}_OK:
    ''')
    if mask: a('s_mov_b64 exec, -1')

def phase1(a):
    a('''
    s_lshl_b32 s44, s40, 7
    s_mov_b32 s45, 1
    s_movk_i32 s46, 3072
    s_lshl_b32 s47, s42, 10
    s_lshl_b32 s48, s41, 8
    s_add_u32 s47, s47, s48
    s_cmp_lg_u32 s42, 3
    s_cbranch_scc1 K1_NOTF
    s_lshl_b32 s44, s40, 6
    s_movk_i32 s46, 1024
    s_and_b32 s47, s48, 256
    s_cmp_lt_u32 s26, 4
    s_cbranch_scc1 K1_NOTF
    s_sub_u32 s44, 2112, s44
    s_mov_b32 s45, -1
    K1_NOTF:
    s_lshl_b32 s49, s26, 4
    v_lshrrev_b32 v6, 3, v0
    v_add_u32 v6, s49, v6
    v_and_b32 v8, 7, v0
    v_mov_b32 v11, 1024
    s_movk_i32 s50, 2048
    ''')
    for j in range(2):
        a(f'''
        v_add_u32 v7, {8*j}, v6
        v_mul_i32_i24 v9, s45, v7
        v_add_u32 v9, s44, v9
        v_cmp_eq_u32 vcc, s50, v9
        v_bfe_u32 v10, v7, 1, 3
        v_xor_b32 v10, v8, v10
        v_cndmask_b32 v9, v9, v11, vcc
        v_lshlrev_b32 v10, 4, v10
        v_lshl_add_u32 v{2+j}, v9, 10, v10
        ''')
    a('''
    v_lshrrev_b32 v6, 4, v0
    s_lshl_b32 s49, s26, 3
    v_add_u32 v7, s49, v6
    v_mul_lo_u32 v7, v7, s46
    v_and_b32 v8, 15, v0
    v_lshlrev_b32 v6, 2, v6
    v_xor_b32 v8, v8, v6
    v_lshlrev_b32 v8, 4, v8
    v_add3_u32 v4, v7, v8, s47
    s_lshl_b32 s49, s46, 2
    v_add_u32 v5, s49, v4
    s_lshl_b32 s51, s26, 11
    s_lshl_b32 s52, s46, 6
    s_waitcnt lgkmcnt(0)
    s_cmp_eq_u32 s42, 3
    s_cselect_b32 s32, s10, s4
    s_cselect_b32 s33, s11, s5
    s_mov_b32 s34, 0x200000
    s_mov_b32 s35, 0x20000
    s_mov_b32 s38, 0x180000
    s_cselect_b32 s38, 0x80000, s38
    s_cselect_b32 s53, 1, 0
    s_cmp_lt_u32 s41, 2
    s_cselect_b32 s36, s16, s18
    s_cselect_b32 s37, s17, s19
    s_cmp_eq_u32 s53, 1
    s_cselect_b32 s36, s36, s6
    s_cselect_b32 s37, s37, s7
    s_mov_b32 s39, 0x20000
    ''')
    def issue(c):
        slot = c % 4
        a(f'''
        s_add_u32 s54, s43, {c}
        s_and_b32 s54, s54, 7
        s_lshl_b32 s55, s54, 7
        s_mul_i32 s56, s54, s52
        s_add_u32 m0, s51, {slot*32768}
        s_nop 0
        buffer_load_dwordx4 v2, s[32:35], s55 offen lds
        s_add_u32 m0, s51, {slot*32768+16384}
        s_nop 0
        buffer_load_dwordx4 v4, s[36:39], s56 offen lds
        s_add_u32 m0, s51, {slot*32768+1024}
        s_nop 0
        buffer_load_dwordx4 v3, s[32:35], s55 offen lds
        s_add_u32 m0, s51, {slot*32768+16384+1024}
        s_nop 0
        buffer_load_dwordx4 v5, s[36:39], s56 offen lds
        ''')
    a.stamp(1)
    for c in range(4): issue(c)
    srd(a, 28, 24, WS_USED)
    a(f'''
    s_and_b32 s57, s26, 1
    s_lshr_b32 s58, s26, 1
    v_and_b32 v6, 31, v0
    v_lshrrev_b32 v7, 5, v0
    s_lshl_b32 s49, s57, 5
    v_add_u32 v8, s49, v6
    v_bfe_u32 v9, v8, 1, 3
    v_xor_b32 v9, v9, v7
    ''')
    for ks in range(4):
        a(f'''
        v_xor_b32 v10, {2*ks}, v9
        v_lshlrev_b32 v10, 4, v10
        v_lshl_add_u32 v{96+ks}, v8, 7, v10
        v_add_u32 v{100+ks}, 0x10000, v{96+ks}
        ''')
    a('''
    v_bfe_u32 v8, v0, 2, 2
    v_lshl_add_u32 v9, v7, 3, v8
    v_bfe_u32 v10, v0, 4, 1
    v_lshlrev_b32 v10, 1, v10
    v_bfe_u32 v11, v0, 1, 1
    v_add_u32 v10, v10, v11
    s_lshl_b32 s49, s58, 2
    v_add_u32 v10, s49, v10
    v_lshlrev_b32 v8, 2, v8
    v_xor_b32 v10, v10, v8
    v_lshlrev_b32 v10, 4, v10
    v_lshl_add_u32 v10, v9, 8, v10
    v_and_b32 v11, 1, v0
    v_lshl_add_u32 v104, v11, 3, v10
    v_add_u32 v105, 0x10000, v104
    s_lshl_b32 s49, s26, 3
    v_add_u32 v8, s49, v0
    v_and_b32 v9, 3, v0
    v_lshlrev_b32 v9, 6, v9
    v_lshl_add_u32 v106, v8, 8, v9
    v_add_u32 v107, 0x10000, v106
    v_lshlrev_b32 v108, 15, v11
    v_add_u32 v108, 0x3f80, v108
    s_cmp_eq_u32 s41, 2
    s_cselect_b32 s59, s53, 0
    s_cmp_ge_u32 s42, 2
    s_cbranch_scc1 K1_LOOP_XW
    ''')
    def reads(slot, ks, fs):
        b = 16 + 12*fs
        hi = slot >= 2
        so = (slot & 1)*32768
        xa = (100 if hi else 96) + ks
        wa = 105 if hi else 104
        a(f'''
        ds_read_b128 {vr(b,4)}, v{xa} offset:{so}
        ds_read_b64_tr_b16 {vr(b+8,2)}, v{wa} offset:{so+16384+ks*4096}
        ds_read_b64_tr_b16 {vr(b+10,2)}, v{wa} offset:{so+16384+ks*4096+1024}
        ds_read_b128 {vr(b+4,4)}, v{xa} offset:{so+8192}
        ''')
    def mfmas(wx, fs, first):
        b = 16 + 12*fs
        for T in range(2):
            d = vr(64+16*T, 16); c = '0' if first else d
            x = vr(b+4*T, 4); w = vr(b+8, 4)
            a(f'v_mfma_f32_32x32x16_bf16 {d}, {w if wx else x}, {x if wx else w}, {c}')
    def loop(wx):
        for c in range(8):
            slot = c % 4
            n = {0: 12, 6: 4, 7: 0}.get(c, 8)
            a(f's_waitcnt vmcnt({n})')
            if not wx:
                a(f'''
                s_cmp_eq_u32 s59, 0
                s_cbranch_scc1 K1_NP{c}
                s_mov_b64 exec, 0xff
                ds_write_b16 v{107 if slot>=2 else 106}, v108 offset:{(slot&1)*32768+16384}
                s_mov_b64 exec, -1
                s_waitcnt lgkmcnt(0)
                K1_NP{c}:
                ''')
            a('s_barrier')
            if c == 0: a.stamp(2)
            reads(slot, 0, 0); reads(slot, 1, 1)
            if 1 <= c <= 4: issue(c+3)
            a('s_waitcnt lgkmcnt(4)')
            reads(slot, 2, 2)
            mfmas(wx, 0, c == 0)
            a('s_waitcnt lgkmcnt(4)')
            reads(slot, 3, 3)
            mfmas(wx, 1, False)
            a('s_waitcnt lgkmcnt(4)')
            mfmas(wx, 2, False)
            a('s_waitcnt lgkmcnt(0)')
            mfmas(wx, 3, False)
        a.stamp(3)
    tileidx = '''
    s_lshl_b32 s60, s41, 3
    s_lshl_b32 s61, s58, 1
    s_add_u32 s60, s60, s61
    s_lshl_b32 s60, s60, 6
    s_lshl_b32 s61, s40, 2
    s_add_u32 s61, s61, s57
    s_add_u32 s60, s60, s61
    '''
    def pack_store(offs):
        for T in range(2):
            for hh in range(2):
                b = 64 + 16*T + 8*hh
                for i in range(4): a(f'v_cvt_pk_bf16_f32 v{16+(2*T+hh)*4+i}, v{b+2*i}, v{b+2*i+1}')
                a(f's_add_u32 s61, s60, {offs(T, hh)}')
                a(f'buffer_store_dwordx4 {vr(16+(2*T+hh)*4,4)}, v1, s[28:31], s61 offen{SC1}')
    loop(True)
    a(tileidx)
    a(f'''
    s_cmp_eq_u32 s42, 0
    s_cbranch_scc0 K1_EPI_K
    s_lshl_b32 s60, s60, 10
    v_lshlrev_b32 v1, 4, v0
    s_mov_b32 s62, {f2u(QSCALE)}
    s_nop 7
    ''')
    for r in range(32): a(f'v_mul_f32 v{64+r}, s62, v{64+r}')
    pack_store(lambda T, hh: QF_OFF + hh*65536 + T*2048)
    a(f'''
    s_branch K1_DONE
    K1_EPI_K:
    s_lshl_b32 s60, s60, 11
    v_and_b32 v1, 0x33, v0
    v_bfe_u32 v2, v0, 2, 1
    v_bfe_u32 v3, v0, 3, 1
    v_lshl_add_u32 v1, v2, 3, v1
    v_lshl_add_u32 v1, v3, 2, v1
    v_lshlrev_b32 v1, 4, v1
    s_nop 4
    ''')
    pack_store(lambda T, hh: KV_OFF + hh*131072 + T*4096)
    a('s_branch K1_DONE')
    a('K1_LOOP_XW:')
    loop(False)
    a('s_cmp_eq_u32 s42, 3\ns_cbranch_scc1 K1_EPI_F')
    a(tileidx)
    a(f'''
    s_lshl_b32 s60, s60, 11
    v_and_b32 v1, 15, v0
    v_lshlrev_b32 v1, 4, v1
    v_bfe_u32 v2, v0, 4, 1
    v_lshl_add_u32 v1, v2, 17, v1
    v_lshl_add_u32 v1, v7, 8, v1
    s_nop 1
    ''')
    pack_store(lambda T, f: KV_OFF + 1024 + f*512 + T*4096)
    a(f'''
    s_branch K1_DONE
    K1_EPI_F:
    s_cmp_lt_u32 s41, 2
    s_cselect_b32 s62, 1.0, -1.0
    s_mov_b32 s63, {BOF_OFF}
    s_cselect_b32 s63, {AEF_OFF}, s63
    v_mov_b32 v2, s62
    s_or_b32 s61, s40, s57
    s_cmp_eq_u32 s59, 0
    s_cbranch_scc1 K1_F1
    s_cmp_lg_u32 s58, 0
    s_cbranch_scc1 K1_F1
    v_cmp_eq_u32 vcc, 0, v6
    s_nop 1
    v_cndmask_b32 v2, v2, 1.0, vcc
    K1_F1:
    v_mov_b32 v3, v2
    s_cmp_lg_u32 s61, 0
    s_cbranch_scc1 K1_F2
    v_cmp_eq_u32 vcc, 0, v7
    s_nop 1
    v_cndmask_b32 v3, v3, 0, vcc
    s_lshl_b32 s64, s41, 7
    s_lshl_b32 s65, s58, 5
    s_add_u32 s64, s64, s65
    v_add_u32 v4, s64, v6
    v_lshlrev_b32 v5, 2, v4
    v_cmp_gt_u32 vcc, 257, v4
    s_mov_b32 vcc_hi, 0
    s_mov_b32 s65, {AE1K_OFF}
    s_nop 7
    s_and_saveexec_b64 s[66:67], vcc
    s_cbranch_execz K1_F3
    buffer_store_dword v80, v5, s[28:31], s65 offen{SC1}
    K1_F3:
    s_mov_b64 exec, s[66:67]
    K1_F2:
    s_and_b32 s60, s41, 1
    s_lshl_b32 s60, s60, 2
    s_add_u32 s60, s60, s58
    s_lshl_b32 s60, s60, 6
    s_lshl_b32 s61, s40, 2
    s_lshl_b32 s64, s57, 1
    s_add_u32 s61, s61, s64
    s_add_u32 s60, s60, s61
    s_lshl_b32 s60, s60, 10
    s_add_u32 s60, s60, s63
    v_lshlrev_b32 v1, 4, v0
    s_nop 4
    ''')
    for r in range(16): a(f'v_fma_f32 v{64+r}, v{80+r}, v{3 if r == 0 else 2}, v{64+r}')
    for f in range(2):
        b = 64 + 8*f
        for i in range(4): a(f'v_cvt_pk_bf16_f32 v{16+f*4+i}, v{b+2*i}, v{b+2*i+1}')
    a('s_nop 1')
    for f in range(2):
        a(f'v_permlane32_swap_b32 v{16+f*4}, v{18+f*4}')
        a(f'v_permlane32_swap_b32 v{17+f*4}, v{19+f*4}')
    a('s_nop 1')
    for f in range(2):
        a(f'buffer_store_dwordx4 {vr(16+f*4,4)}, v1, s[28:31], s60 offen offset:{f*1024}{SC1}')
    a('K1_DONE:')

def attention(a):
    a(f'''
    v_lshlrev_b32 v36, 4, v0
    s_and_b32 s33, s26, 3
    s_lshr_b32 s34, s26, 2
    s_lshl_b32 s35, s41, 3
    s_lshl_b32 s36, s33, 1
    s_add_u32 s35, s35, s36
    s_lshl_b32 s37, s34, 16
    v_add_u32 v{KA}, s37, v36
    v_and_b32 v37, 15, v0
    v_lshrrev_b32 v38, 5, v0
    v_lshlrev_b32 v37, 4, v37
    v_lshl_add_u32 v37, v38, 8, v37
    v_add_u32 v37, 1024, v37
    v_add_u32 v{VA}, s37, v37
    v_mov_b32 v{IDX}, 0xdddddddd
    v_and_b32 v39, 27, v0
    v_cmp_eq_u32 vcc, 16, v39
    v_mov_b32 v40, 0x3f803f80
    s_mov_b32 s38, 0x0000ffff
    s_mov_b32 s39, 0x0000ffff
    v_cndmask_b32 v40, 0, v40, vcc
    s_mov_b32 s42, 0
    s_lshl_b32 s36, s33, 11
    s_add_u32 s36, s36, {CMB}
    v_add_u32 v41, s36, v36
    ''')
    for r in range(20, 36): a(f'v_mov_b32 v{r}, v40')
    a('s_waitcnt vmcnt(0)')
    a.stamp(4)
    a('s_barrier')
    a('s_barrier')
    a.stamp(5)
    a(f'''
    ds_read_b128 {vr(QA,4)}, v41
    ds_read_b128 {vr(QB,4)}, v41 offset:1024
    ds_read_b128 {vr(KF,4)}, v36
    v_mov_b32 v43, {SCR+16}
    ds_read_b32 v44, v43
    s_waitcnt lgkmcnt(0)
    v_mfma_f32_32x32x16_bf16 {vr(SA,16)}, {vr(KF,4)}, {vr(QA,4)}, 0
    v_mfma_f32_32x32x16_bf16 {vr(SB,16)}, {vr(KF,4)}, {vr(QB,4)}, 0
    v_readfirstlane_b32 s27, v44
    s_nop 9
    ''')
    def rowmax(S, dst, acc=False):
        if not acc:
            a(f'v_max3_f32 v{dst}, v{S}, v{S+1}, v{S+2}')
            for i in range(3, 15, 2): a(f'v_max3_f32 v{dst}, v{dst}, v{S+i}, v{S+i+1}')
            a(f'v_max_f32 v{dst}, v{dst}, v{S+15}')
        else:
            for i in range(0, 16, 2): a(f'v_max3_f32 v{dst}, v{dst}, v{S+i}, v{S+i+1}')
    def xhalf(r, t):
        a(f'''
        v_mov_b32 v{t}, v{r}
        s_nop 1
        v_permlane32_swap_b32 v{r}, v{t}
        s_nop 1
        v_max_f32 v{r}, v{r}, v{t}
        ''')
    rowmax(SA, 41); rowmax(SB, 42); xhalf(41, 43); xhalf(42, 44)
    a(f'''
    v_mov_b32 v43, {f2u(-BIAS)}
    v_sub_f32 v41, v43, v41
    v_sub_f32 v42, v43, v42
    K2_RESTART:
    ds_read_b128 {vr(KF,4)}, v{KA}
    s_mov_b64 exec, s[38:39]
    ds_read_b128 {vr(VF[0][0],4)}, v{VA}
    ds_read_b128 {vr(VF[0][1],4)}, v{VA} offset:512
    s_mov_b64 exec, -1
    ''')
    for r in range(16):
        a(f'v_mov_b32 v{MA+r}, v41'); a(f'v_mov_b32 v{MB+r}, v42')
    for r in range(16):
        a(f'v_mov_b32 v{OA+r}, 0'); a(f'v_mov_b32 v{OB+r}, 0')
    for r in range(8, 16): a(f'v_mov_b32 v{SB+r}, 0')
    a(f'''
    s_mov_b32 s43, 0
    s_waitcnt lgkmcnt(0)
    v_mfma_f32_32x32x16_bf16 {vr(SA,16)}, {vr(KF,4)}, {vr(QA,4)}, {vr(MA,16)}
    s_nop 10
    ''')
    a.stamp(6)
    a(f'''
    s_branch K2_LOOP
    K2_CHECK:
    s_cmp_gt_u32 s43, 2
    s_cbranch_scc1 K2_LOOP
    s_lshl_b32 s44, s43, 2
    s_add_u32 s44, s44, {CNT_A-4}
    v_mov_b32 v43, s44
    K2_SPIN:
    ds_read_b32 v44, v43
    s_waitcnt lgkmcnt(0)
    v_readfirstlane_b32 s44, v44
    s_cmpk_ge_u32 s44, 256
    s_cbranch_scc0 K2_SPIN
    K2_LOOP:
    ''')
    def ex(S, lo, hi):
        for i in range(lo, hi): a(f'v_exp_f32 v{S+i}, v{S+i}')
    def tile(j):
        vs, vp = VF[j & 1], VF[(j+1) & 1]
        ex(SA, 0, 2)
        a(f'v_smfmac_f32_32x32x32_bf16 {vr(OB,16)}, {vr(vp[1],4)}, {vr(SB+8,8)}, v{IDX}')
        ex(SA, 2, 5)
        a(f'v_mfma_f32_32x32x16_bf16 {vr(SB,16)}, {vr(KF,4)}, {vr(QB,4)}, {vr(MB,16)}')
        o = (j+1)*2048
        a(f'''
        ds_read_b128 {vr(KF,4)}, v{KA} offset:{o}
        s_mov_b64 exec, s[38:39]
        ds_read_b128 {vr(vp[0],4)}, v{VA} offset:{o}
        ds_read_b128 {vr(vp[1],4)}, v{VA} offset:{o+512}
        s_mov_b64 exec, -1
        ''')
        ex(SA, 5, 10)
        a(f'v_smfmac_f32_32x32x32_bf16 {vr(OA,16)}, {vr(vs[0],4)}, {vr(SA,8)}, v{IDX}')
        ex(SA, 10, 16)
        ex(SB, 0, 2)
        a(f'v_smfmac_f32_32x32x32_bf16 {vr(OA,16)}, {vr(vs[1],4)}, {vr(SA+8,8)}, v{IDX}')
        ex(SB, 2, 5)
        a('s_waitcnt lgkmcnt(0)')
        a(f'v_mfma_f32_32x32x16_bf16 {vr(SA,16)}, {vr(KF,4)}, {vr(QA,4)}, {vr(MA,16)}')
        ex(SB, 5, 10)
        a(f'v_smfmac_f32_32x32x32_bf16 {vr(OB,16)}, {vr(vs[0],4)}, {vr(SB,8)}, v{IDX}')
        if j == 3:
            a(f'v_add_u32 v{KA}, 0x2000, v{KA}')
            a(f'v_add_u32 v{VA}, 0x2000, v{VA}')
            a('s_add_u32 s43, s43, 1')
            a('s_cmp_lt_u32 s43, 8')
        ex(SB, 10, 16)
    for j in range(4): tile(j)
    a(f'''
    s_cbranch_scc1 K2_CHECK
    s_nop 1
    v_smfmac_f32_32x32x32_bf16 {vr(OB,16)}, {vr(VF[1][1],4)}, {vr(SB+8,8)}, v{IDX}
    ''')
    a.stamp(7)
    a(f'''
    v_subrev_u32 v{KA}, 0x10000, v{KA}
    v_subrev_u32 v{VA}, 0x10000, v{VA}
    s_mul_i32 s44, s26, 2304
    s_add_u32 s44, s44, {CMB}
    v_add_u32 v45, s44, v36
    v_lshlrev_b32 v46, 2, v0
    v_add_u32 v46, s44, v46
    s_mov_b32 s44, {f2u(2.0**100)}
    s_mov_b32 s45, 0x7f800000
    s_mov_b32 s46, {f2u(2.0**-41)}
    s_mov_b32 s47, {f2u(2.0**-90)}
    s_cmp_lg_u32 s42, 0
    s_cbranch_scc1 K2_GOOD
    ''')
    for k, O in enumerate((OA, OB)):
        t = 43+k
        a(f'v_add_f32 v{t}, abs(v{O}), abs(v{O+1})')
        for i in range(2, 8): a(f'v_add_f32 v{t}, v{t}, abs(v{O+i})')
        a(f'''
        v_cmp_ngt_f32 s[48:49], s44, v{O+8}
        v_cmp_ngt_f32 s[50:51], s45, v{t}
        v_cmp_le_f32 s[52:53], s46, v{O+8}
        v_cmp_gt_f32 vcc, s47, v{t}
        s_or_b64 s[48:49], s[48:49], s[50:51]
        s_and_b64 vcc, vcc, s[52:53]
        s_or_b64 s[{54+2*k}:{55+2*k}], s[48:49], vcc
        ''')
    a(f'''
    s_or_b64 s[54:55], s[54:55], s[56:57]
    s_cbranch_scc0 K2_GOOD
    v_mov_b32 v43, {BADF}
    v_mov_b32 v44, 1
    ds_write_b32 v43, v44
    K2_GOOD:
    s_cmp_eq_u32 s34, 0
    s_cbranch_scc1 K2_SENDB
    ds_write_b128 v45, {vr(OA,4)}
    ds_write_b128 v45, {vr(OA+4,4)} offset:1024
    ds_write_b32 v46, v{OA+8} offset:2048
    s_waitcnt lgkmcnt(0)
    ''')
    for r in range(9): a(f'v_mov_b32 v{OA+r}, v{OB+r}')
    a(f'''
    v_subrev_u32 v45, {4*2304}, v45
    v_subrev_u32 v46, {4*2304}, v46
    s_branch K2_SENT
    K2_SENDB:
    ds_write_b128 v45, {vr(OB,4)}
    ds_write_b128 v45, {vr(OB+4,4)} offset:1024
    ds_write_b32 v46, v{OB+8} offset:2048
    v_add_u32 v45, {4*2304}, v45
    v_add_u32 v46, {4*2304}, v46
    K2_SENT:
    v_mov_b32 v43, {BADF}
    s_waitcnt lgkmcnt(0)
    s_barrier
    ds_read_b32 v44, v43
    ds_read_b128 {vr(SA,4)}, v45
    ds_read_b128 {vr(SA+4,4)}, v45 offset:1024
    ds_read_b32 v{SA+8}, v46 offset:2048
    s_add_u32 s36, s35, s34
    s_lshl_b32 s36, s36, 5
    s_add_u32 s36, s36, s40
    s_lshl_b32 s36, s36, 10
    s_add_u32 s36, s36, {OF_OFF}
    s_waitcnt lgkmcnt(3)
    v_readfirstlane_b32 s44, v44
    s_cmp_lt_u32 s42, s44
    s_cbranch_scc0 K2_COMBINE
    ''')
    a(f'''
    s_mov_b32 s42, 1
    v_mov_b32 v41, 0xff800000
    v_mov_b32 v42, 0xff800000
    v_mov_b32 v45, v{KA}
    s_mov_b32 s43, 0
    K2_MAXLOOP:
    ds_read_b128 {vr(KF,4)}, v45
    v_add_u32 v45, 0x800, v45
    s_waitcnt lgkmcnt(0)
    v_mfma_f32_32x32x16_bf16 {vr(SA,16)}, {vr(KF,4)}, {vr(QA,4)}, 0
    v_mfma_f32_32x32x16_bf16 {vr(SB,16)}, {vr(KF,4)}, {vr(QB,4)}, 0
    s_nop 11
    ''')
    rowmax(SA, 41, True); rowmax(SB, 42, True)
    a(f'''
    s_add_u32 s43, s43, 1
    s_cmp_lt_u32 s43, 32
    s_cbranch_scc1 K2_MAXLOOP
    ''')
    xhalf(41, 43); xhalf(42, 44)
    a(f'''
    s_lshl_b32 s44, s26, 9
    v_lshlrev_b32 v43, 2, v0
    v_add_u32 v43, s44, v43
    v_xor_b32 v45, 0x800, v43
    v_add_u32 v43, {FX}, v43
    v_add_u32 v45, {FX}, v45
    ds_write_b32 v43, v41
    ds_write_b32 v43, v42 offset:256
    s_waitcnt lgkmcnt(0)
    s_barrier
    ds_read_b32 v44, v45
    ds_read_b32 v45, v45 offset:256
    s_waitcnt lgkmcnt(0)
    v_max_f32 v41, v41, v44
    v_max_f32 v42, v42, v45
    v_sub_f32 v41, 0, v41
    v_sub_f32 v42, 0, v42
    s_branch K2_RESTART
    K2_COMBINE:
    ''')
    a.stamp(8)
    srd(a, 48, 8, 0x80000)
    a(f'''
    v_lshrrev_b32 v3, 3, v0
    v_and_b32 v4, 7, v0
    v_and_b32 v5, 2, v3
    v_lshlrev_b32 v5, 1, v5
    v_xor_b32 v4, v4, v5
    v_lshlrev_b32 v4, 4, v4
    v_lshl_add_u32 v3, v3, 10, v4
    s_and_b32 s44, s40, 7
    s_lshl_b32 s45, s44, 7
    s_lshl_b32 s46, s26, 16
    s_add_u32 s45, s45, s46
    s_lshl_b32 s46, s26, 13
    s_waitcnt lgkmcnt(0)
    v_add_f32 v{OA+8}, v{OA+8}, v{SA+8}
    v_rcp_f32 v{OA+8}, v{OA+8}
    ''')
    for r in range(8): a(f'v_add_f32 v{OA+r}, v{OA+r}, v{SA+r}')
    for r in range(8): a(f'v_mul_f32 v{OA+r}, v{OA+r}, v{OA+8}')
    for i in range(4): a(f'v_cvt_pk_bf16_f32 v{SB+i}, v{OA+2*i}, v{OA+2*i+1}')
    a(f'buffer_store_dwordx4 {vr(SB,4)}, v36, s[28:31], s36 offen{SC1}')
    for i in range(8):
        a(f'''
        s_mov_b32 m0, s46
        s_add_u32 s46, s46, 1024
        buffer_load_dwordx4 v3, s[48:51], s45 offen lds
        s_add_u32 s45, s45, 8192
        ''')
    a(f'''
    s_lshl_b32 s45, s41, 2
    s_add_u32 s45, s45, s33
    s_lshl_b32 s45, s45, 5
    s_add_u32 s45, s45, s40
    s_lshl_b32 s45, s45, 1
    s_add_u32 s45, s45, s34
    s_lshl_b32 s45, s45, 4
    s_add_u32 s45, s45, {FLG_O}
    v_mov_b32 v5, s27
    v_mov_b32 v6, 0
    s_waitcnt vmcnt(8)
    s_mov_b64 exec, 1
    buffer_store_dword v5, v6, s[28:31], s45 offen sc1
    s_mov_b64 exec, -1
    ''')

def oproj(a):
    srd(a, 52, 20, 0x400000)
    a(f'''
    v_lshlrev_b32 v2, 4, v0
    s_and_b32 s56, s26, 1
    s_lshr_b32 s57, s26, 1
    s_lshr_b32 s58, s40, 3
    s_lshl_b32 s59, s41, 2
    s_add_u32 s59, s59, s58
    v_lshrrev_b32 v7, 5, v0
    v_bfe_u32 v8, v0, 2, 2
    v_lshl_add_u32 v9, v7, 2, v8
    v_bfe_u32 v10, v0, 4, 1
    v_lshlrev_b32 v10, 1, v10
    v_bfe_u32 v11, v0, 1, 1
    v_add_u32 v10, v10, v11
    v_and_b32 v8, 2, v8
    v_lshlrev_b32 v8, 1, v8
    v_xor_b32 v10, v10, v8
    v_lshlrev_b32 v10, 4, v10
    v_lshl_add_u32 v10, v9, 7, v10
    v_and_b32 v11, 1, v0
    v_lshl_add_u32 v10, v11, 3, v10
    s_lshl_b32 s60, s57, 14
    v_add_u32 v10, s60, v10
    v_xor_b32 v11, 64, v10
    s_lshl_b32 s60, s59, 10
    s_add_u32 s60, s60, {FLG_O}
    s_lshl_b32 s61, s59, 16
    s_lshl_b32 s62, s56, 15
    s_add_u32 s61, s61, s62
    s_lshl_b32 s62, s57, 13
    s_add_u32 s61, s61, s62
    s_add_u32 s61, s61, {OF_OFF}
    s_add_u32 s62, s61, 4096
    s_waitcnt vmcnt(1)
    s_barrier
    ''')
    for hd in range(8):
        for c in range(2):
            b = 64 + (hd*2+c)*4
            ad = 10 + c
            a(f'ds_read_b64_tr_b16 {vr(b,2)}, v{ad} offset:{hd*2048}')
            a(f'ds_read_b64_tr_b16 {vr(b+2,2)}, v{ad} offset:{hd*2048+1024}')
        if hd % 2 == 1 and hd < 7: a('s_waitcnt lgkmcnt(4)')
    poll(a, 'K3', 2, 12, 's60')
    a.stamp(9)
    for hd in range(8):
        a(f'buffer_load_dwordx4 {vr(16+4*hd,4)}, v2, s[28:31], s{61 + hd//4} offen offset:{(hd%4)*1024}{SC1}')
    a(f'''
    s_lshl_b32 s60, s56, 15
    s_add_u32 s60, s60, 65536
    s_lshl_b32 s63, s57, 11
    s_add_u32 s63, s63, s60
    v_add_u32 v13, s63, v2
    s_lshl_b32 s63, s57, 13
    s_add_u32 s63, s63, s60
    v_add_u32 v14, s63, v2
    v_and_b32 v15, 31, v0
    s_lshl_b32 s60, s59, 6
    s_lshl_b32 s63, s56, 5
    s_add_u32 s60, s60, s63
    v_add_u32 v15, s60, v15
    v_lshlrev_b32 v15, 11, v15
    v_lshl_add_u32 v15, v7, 4, v15
    s_lshl_b32 s60, s44, 7
    s_lshl_b32 s63, s57, 5
    s_add_u32 s60, s60, s63
    s_waitcnt lgkmcnt(0)
    ''')
    for hd in range(8):
        a(f's_waitcnt vmcnt({7-hd})')
        for c in range(2):
            d = vr(128+16*c, 16)
            a(f'v_mfma_f32_32x32x16_bf16 {d}, {vr(64+(hd*2+c)*4,4)}, {vr(16+4*hd,4)}, {"0" if hd == 0 else d}')
    a('s_nop 11')
    for g in range(4):
        a(f'ds_write_b128 v13, {vr(128+8*g,4)} offset:{g*8192}')
        a(f'ds_write_b128 v13, {vr(132+8*g,4)} offset:{g*8192+1024}')
    a('s_waitcnt lgkmcnt(0)\ns_barrier')
    for s in range(4):
        a(f'ds_read_b128 {vr(16+8*s,4)}, v14 offset:{s*2048}')
        a(f'ds_read_b128 {vr(20+8*s,4)}, v14 offset:{s*2048+1024}')
    a('s_waitcnt lgkmcnt(4)')
    for r in range(8): a(f'v_add_f32 v{16+r}, v{16+r}, v{24+r}')
    a('s_waitcnt lgkmcnt(0)')
    for r in range(8): a(f'v_add_f32 v{32+r}, v{32+r}, v{40+r}')
    for r in range(8): a(f'v_add_f32 v{16+r}, v{16+r}, v{32+r}')
    for i in range(4): a(f'v_cvt_pk_bf16_f32 v{48+i}, v{16+2*i}, v{17+2*i}')
    a('''
    s_nop 1
    v_permlane32_swap_b32 v48, v50
    v_permlane32_swap_b32 v49, v51
    s_nop 1
    buffer_store_dwordx4 v[48:51], v15, s[52:55], s60 offen
    ''')

def background(a):
    ACC, EXT = 128, 144
    a(f'''
    K2_BG:
    s_setprio 2
    s_sub_u32 s33, s26, 8
    v_lshlrev_b32 v14, 4, v0
    v_mov_b32 v1, {SCR}
    v_mov_b32 v2, 0
    v_mov_b32 v3, 0
    v_mov_b32 v4, 0
    v_mov_b32 v5, 0
    ds_write_b128 v1, v[2:5]
    s_getpc_b64 s[44:45]
    s_and_b32 s44, s44, 0xffffff00
    s_sub_u32 s44, s44, K2_BG-{NAME}
    s_subb_u32 s45, s45, 0
    v_lshlrev_b32 v6, 7, v0
    s_lshl_b32 s46, s33, 13
    v_add_u32 v6, s46, v6
    v_min_u32 v6, K_END-{NAME}, v6
    global_load_dword v7, v6, s[44:45]
    s_memrealtime s[46:47]
    s_waitcnt lgkmcnt(0)
    ''')
    srd(a, 28, 24, WS_USED)
    a(f'''
    s_add_u32 s48, s2, s33
    s_cmp_lg_u32 s48, 0
    s_cbranch_scc1 BG_NONONCE
    s_or_b32 s46, s46, 1
    v_mov_b32 v8, s46
    s_mov_b64 exec, 1
    global_store_dword v2, v8, s[22:23] sc1
    s_mov_b64 exec, -1
    BG_NONONCE:
    ''')
    for i in range(8): a('s_barrier')
    a(f'''
    s_mov_b32 s68, {SPIN_MAX}
    BG_NSP:
    global_load_dword v8, v2, s[22:23] sc1
    s_sub_u32 s68, s68, 1
    s_waitcnt vmcnt(0)
    v_readfirstlane_b32 s27, v8
    s_cbranch_scc1 BG_NOK
    s_cmp_eq_u32 s27, 0
    s_cbranch_scc1 BG_NSP
    BG_NOK:
    ds_write_b32 v1, v8 offset:16
    s_lshl_b32 s44, s41, 2
    s_add_u32 s44, s44, s42
    s_lshl_b32 s44, s44, 4
    s_add_u32 s44, s44, s40
    s_lshl_b32 s44, s44, 6
    s_add_u32 s44, s44, {FLG_P1}
    s_and_b32 s40, s2, 7
    s_lshr_b32 s41, s2, 3
    s_lshl_b32 s40, s40, 2
    s_lshr_b32 s45, s41, 3
    s_add_u32 s40, s40, s45
    s_and_b32 s41, s41, 7
    v_lshlrev_b32 v9, 6, v0
    s_lshr_b32 s45, s40, 3
    s_lshl_b32 s45, s45, 12
    s_add_u32 s45, s45, {FLG_P1}
    s_lshl_b32 s46, s41, 1
    s_lshl_b32 s46, 3, s46
    s_or_b32 s46, s46, 0xffff0000
    s_mov_b32 s47, 0xffff
    s_lshr_b32 s34, s33, 1
    s_and_b32 s35, s33, 1
    s_lshl_b32 s34, s34, 16
    s_lshl_b32 s35, s35, 10
    s_add_u32 s34, s34, s35
    s_lshl_b32 s35, s40, 17
    s_add_u32 s35, s35, s34
    s_add_u32 s35, s35, {KV_OFF}
    s_lshl_b32 s36, s40, 6
    s_lshl_b32 s37, s41, 3
    s_add_u32 s36, s36, s37
    s_lshl_b32 s37, s33, 1
    s_add_u32 s36, s36, s37
    s_lshl_b32 s36, s36, 10
    s_lshl_b32 s37, s33, 11
    s_add_u32 s37, s37, {CMB}
    s_waitcnt lgkmcnt(0)
    ''')
    a.stamp(1)
    a('s_barrier')
    a.stamp(2)
    a(f'''
    s_cmp_lg_u32 s33, 0
    s_cbranch_scc1 BG_NOFLAG
    s_mov_b64 exec, 1
    buffer_store_dword v8, v2, s[28:31], s44 offen sc1
    s_mov_b64 exec, -1
    BG_NOFLAG:
    ''')
    poll(a, 'BG1', 9, 10, 's45', 's[46:47]')
    a.stamp(3)
    a(f'''
    s_mov_b32 m0, s37
    s_nop 0
    buffer_load_dwordx4 v14, s[28:31], s36 offen{SC1} lds
    buffer_load_dwordx4 v14, s[28:31], s36 offen offset:1024{SC1} lds
    s_mov_b32 m0, s34
    ''')
    for t in range(32):
        if t % 2 == 0:
            if t: a('s_add_u32 m0, m0, 4096\ns_add_u32 s35, s35, 4096')
            else: a('s_nop 0')
            a(f'buffer_load_dwordx4 v14, s[28:31], s35 offen{SC1} lds')
        else:
            a(f'buffer_load_dwordx4 v14, s[28:31], s35 offen offset:2048{SC1} lds')
    a(f'''
    s_lshr_b32 s34, s33, 1
    s_and_b32 s35, s33, 1
    s_cmp_eq_u32 s34, 0
    s_cselect_b32 s48, s12, s14
    s_cselect_b32 s49, s13, s15
    s_mov_b32 s50, 0x800000
    s_mov_b32 s51, 0x20000
    s_mov_b32 s37, {BOF_OFF}
    s_cselect_b32 s36, {AEF_OFF}, s37
    s_cselect_b32 s56, s41, s40
    s_cselect_b32 s57, 1, s40
    s_xor_b32 s37, s36, {AEF_OFF ^ BOF_OFF}
    ''')
    srd(a, 52, 20, 0x400000)
    a(f'''
    v_and_b32 v6, 31, v0
    v_lshrrev_b32 v7, 5, v0
    s_lshl_b32 s44, s40, 5
    v_add_u32 v8, s44, v6
    v_lshlrev_b32 v8, 12, v8
    v_lshl_add_u32 v8, v7, 4, v8
    s_lshl_b32 s44, s35, 10
    v_add_u32 v8, s44, v8
    s_lshl_b32 s44, s41, 16
    s_lshl_b32 s45, s35, 15
    s_add_u32 s44, s44, s45
    v_add_u32 v12, s44, v14
    s_cmp_eq_u32 s57, 0
    s_cselect_b32 s58, -2, -1
    s_cselect_b32 s59, -2, -1
    v_mov_b32 v10, 1
    v_mov_b32 v11, 0xbf803f80
    s_lshr_b32 s45, s41, 2
    s_lshl_b32 s45, s45, 12
    s_add_u32 s45, s45, {FLG_P1 + 3*1024}
    v_bfe_u32 v13, v0, 4, 1
    v_lshlrev_b32 v13, 13, v13
    v_and_b32 v9, 15, v0
    v_lshl_add_u32 v9, v9, 6, v13
    ''')
    NS = 8
    for i in range(NS):
        for r in range(4): a(f'v_mov_b32 v{16+12*i+r}, v11')
    for r in range(16): a(f'v_mov_b32 v{EXT+r}, 0')
    a(f'''
    s_waitcnt vmcnt(27)
    s_barrier
    s_waitcnt vmcnt(23)
    ds_add_u32 v1, v10
    s_waitcnt vmcnt(0)
    ds_add_u32 v1, v10 offset:4
    ''')
    a.stamp(4)
    poll(a, 'BG2', 9, 13, 's45')
    def fl(ks, ext):
        b = 16 + 12*(ks % NS)
        a(f'''
        s_mov_b64 exec, s[58:59]
        buffer_load_dwordx4 {vr(b,4)}, v8, s[48:51], 0 offen offset:{32*ks}
        s_mov_b64 exec, -1
        buffer_load_dwordx4 {vr(b+4,4)}, v12, s[28:31], s36 offen offset:{1024*(ks%4)}{SC1}
        ''')
        if ext: a(f'buffer_load_dwordx4 {vr(b+8,4)}, v12, s[28:31], s37 offen offset:{1024*(ks%4)}{SC1}')
        if ks % 4 == 3: a('s_add_u32 s36, s36, 4096\ns_add_u32 s37, s37, 4096')
    def floop(ext):
        per = 3 if ext else 2
        for ks in range(NS): fl(ks, ext)
        for ks in range(32):
            b = 16 + 12*(ks % NS)
            rem = min(32, ks+NS) - ks - 1
            a(f's_waitcnt vmcnt({per*rem})')
            a(f'v_mfma_f32_32x32x16_bf16 {vr(ACC,16)}, {vr(b,4)}, {vr(b+4,4)}, {"0" if ks == 0 else vr(ACC,16)}')
            if ext: a(f'v_mfma_f32_32x32x16_bf16 {vr(EXT,16)}, {vr(b,4)}, {vr(b+8,4)}, {vr(EXT,16)}')
            if ks+NS < 32: fl(ks+NS, ext)
    a('s_cmp_eq_u32 s56, 0\ns_cbranch_scc1 BG_FEXT')
    floop(False)
    a('s_branch BG_FDONE\nBG_FEXT:')
    floop(True)
    a('BG_FDONE:')
    a.stamp(5)
    a(f'''
    s_lshl_b32 s44, s41, 7
    v_lshl_add_u32 v12, v6, 2, s44
    s_mov_b32 s44, {AE1K_OFF}
    v_mov_b32 v13, 1024
    buffer_load_dword v16, v12, s[28:31], s44 offen{SC1}
    buffer_load_dword v17, v13, s[28:31], s44 offen{SC1}
    s_mul_i32 s44, s33, 3072
    s_add_u32 s44, s44, {FX}
    s_lshl_b32 s45, s35, 7
    s_lshl_b32 s46, s34, 8
    s_add_u32 s45, s45, s46
    s_add_u32 s45, s45, {FE}
    v_lshlrev_b32 v3, 6, v7
    v_add_u32 v3, s45, v3
    v_lshl_add_u32 v4, v6, 2, s45
    s_nop 3
    ''')
    for g in range(4):
        a(f'''
        s_sub_u32 s46, {g+3}, s33
        s_and_b32 s46, s46, 3
        s_cmp_eq_u32 s46, 3
        s_cselect_b64 exec, 0, -1
        s_lshl_b32 s46, s46, 10
        s_add_u32 s46, s46, s44
        v_add_u32 v2, s46, v14
        ds_write_b128 v2, {vr(ACC+4*g,4)}
        ''')
    a(f'''
    s_mov_b64 exec, -1
    s_cmp_eq_u32 s34, 0
    s_cbranch_scc0 BG_XQ
    s_mov_b32 exec_lo, 1
    s_mov_b32 exec_hi, 1
    ''')
    for i in range(4): a(f'ds_write_b128 v3, {vr(EXT+4*i,4)} offset:{16*i}')
    a(f'''
    s_branch BG_XD
    BG_XQ:
    s_mov_b32 exec_hi, 0
    ds_write_b32 v4, v{EXT}
    BG_XD:
    s_mov_b64 exec, 1
    s_waitcnt lgkmcnt(0)
    ds_add_u32 v1, v10 offset:12
    s_mov_b64 exec, -1
    s_cmp_lt_u32 s33, 2
    s_cbranch_scc1 BG_M01
    s_cmp_eq_u32 s33, 2
    s_cbranch_scc1 BG_M2
    ''')
    def mv(g):
        for i in range(4): a(f'v_mov_b32 v{20+i}, v{ACC+4*g+i}')
    mv(3); a('s_branch BG_MD\nBG_M2:'); mv(2); a('s_branch BG_MD\nBG_M01:\ns_cmp_eq_u32 s33, 0\ns_cbranch_scc1 BG_M0'); mv(1); a('s_branch BG_MD\nBG_M0:'); mv(0)
    a('BG_MD:')
    for j in range(1, 4):
        a(f'''
        s_add_u32 s46, s33, {j}
        s_and_b32 s46, s46, 3
        s_mul_i32 s46, s46, 3072
        s_add_u32 s46, s46, {FX + (3-j)*1024}
        v_add_u32 v{40+j}, s46, v14
        ''')
    a(f'''
    s_lshl_b32 s46, s33, 4
    s_add_u32 s46, s46, {FE}
    v_lshlrev_b32 v3, 6, v7
    v_add_u32 v3, s46, v3
    v_lshlrev_b32 v4, 2, v6
    v_add_u32 v4, {FE+256}, v4
    BG_FSPIN:
    ds_read_b32 v5, v1 offset:12
    s_waitcnt lgkmcnt(0)
    v_readfirstlane_b32 s46, v5
    s_cmp_ge_u32 s46, 4
    s_cbranch_scc0 BG_FSPIN
    ds_read_b128 v[24:27], v41
    ds_read_b128 v[28:31], v42
    ds_read_b128 v[32:35], v43
    ds_read_b128 v[44:47], v3
    ds_read_b128 v[48:51], v3 offset:128
    ds_read_b32 v52, v4
    ds_read_b32 v53, v4 offset:128
    s_and_b32 s46, s33, 1
    s_cmp_eq_u32 s46, 0
    s_cselect_b64 s[60:61], -1, 0
    s_cmp_eq_u32 s34, 0
    s_cselect_b64 s[62:63], -1, 0
    s_cmp_eq_u32 s41, 0
    s_cselect_b32 s64, 1, 0
    s_mov_b32 s65, s64
    s_or_b32 s46, s40, s33
    s_cmp_eq_u32 s46, 0
    s_cselect_b32 s66, -1, 0
    s_mov_b32 s67, 0
    s_lshl_b32 s46, s41, 5
    v_add_u32 v2, s46, v6
    v_sub_u32 v3, 512, v2
    v_mov_b32 v4, 256
    v_cndmask_b32 v3, v3, v4, s[64:65]
    v_lshlrev_b32 v2, 1, v2
    v_lshlrev_b32 v3, 1, v3
    v_add_u32 v2, 1024, v2
    v_add_u32 v3, 1024, v3
    s_lshl_b32 s46, s40, 5
    s_lshl_b32 s47, s33, 3
    s_add_u32 s46, s46, s47
    v_lshl_add_u32 v4, v7, 2, s46
    v_sub_u32 v5, {2048-3}, v4
    v_lshl_add_u32 v8, v4, 11, v2
    v_lshl_add_u32 v9, v4, 11, v3
    v_lshl_add_u32 v10, v5, 11, v2
    v_lshl_add_u32 v11, v5, 11, v3
    v_mov_b32 v4, {1024-3}
    v_cndmask_b32 v5, v5, v4, s[66:67]
    v_lshl_add_u32 v12, v5, 11, v2
    v_lshl_add_u32 v13, v5, 11, v3
    s_waitcnt vmcnt(0) lgkmcnt(0)
    ''')
    for i in range(4):
        a(f'''
        v_cndmask_b32 v36, v{32+i}, v{24+i}, s[60:61]
        v_cndmask_b32 v37, v{24+i}, v{32+i}, s[60:61]
        v_add_f32 v36, v36, v{20+i}
        v_add_f32 v37, v37, v{28+i}
        v_cndmask_b32 v{20+i}, v37, v36, s[62:63]
        v_cndmask_b32 v{24+i}, v36, v37, s[62:63]
        v_add_f32 v{44+i}, v{44+i}, v{48+i}
        ''')
        op = 'v_add_f32' if i % 2 == 0 else 'v_sub_f32'
        a(f'{op} v{20+i}, v{20+i}, v16\n{op} v{44+i}, v{44+i}, v17')
    a(f'''
    v_add_f32 v52, v52, v53
    v_add_f32 v52, v52, v16
    v_add_f32 v53, v24, v17
    v_cndmask_b32 v24, v24, 0, s[66:67]
    v_cndmask_b32 v53, v52, v53, s[64:65]
    ''')
    for i in range(4):
        t0 = 56 + 8*i
        a(f'''
        v_cndmask_b32 v{24+i}, v{24+i}, 0, s[64:65]
        v_sub_f32 v{t0}, v{20+i}, v{24+i}
        v_add_f32 v{t0+1}, v{20+i}, v{24+i}
        v_cndmask_b32 v{t0+2}, v{t0+1}, v{44+i}, s[64:65]
        v_cndmask_b32 v{t0+3}, v{t0}, v{44+i}, s[64:65]
        ''')
        if i == 0:
            a(f'''
            v_cndmask_b32 v{t0+1}, v{t0+1}, v52, s[66:67]
            v_cndmask_b32 v{t0+3}, v{t0+3}, v53, s[66:67]
            ''')
        a(f'''
        v_cvt_pk_bf16_f32 v{t0+4}, v{t0}, v{t0+1}
        v_cvt_pk_bf16_f32 v{t0+5}, v{t0+2}, v{t0+3}
        s_mov_b32 s46, {i*2048}
        s_mov_b32 s47, {(3-i)*2048}
        buffer_store_short v{t0+4}, v8, s[52:55], s46 offen
        buffer_store_short_d16_hi v{t0+4}, v{12 if i == 0 else 10}, s[52:55], s47 offen
        buffer_store_short v{t0+5}, v9, s[52:55], s46 offen
        buffer_store_short_d16_hi v{t0+5}, v{13 if i == 0 else 11}, s[52:55], s47 offen
        ''')

def fused():
    a = Asm()
    a('s_cmp_ge_u32 s2, 256\ns_cbranch_scc1 K_END')
    a.stamp(0)
    a(f'''
    s_load_dwordx8 s[4:11], s[0:1], 0
    s_load_dwordx8 s[12:19], s[0:1], 32
    s_load_dwordx4 s[20:23], s[0:1], 64
    s_load_dwordx2 s[24:25], s[0:1], 80
    v_lshrrev_b32 v1, 6, v0
    v_and_b32 v0, 63, v0
    s_and_b32 s44, s2, 7
    v_readfirstlane_b32 s26, v1
    s_lshr_b32 s45, s2, 3
    s_and_b32 s46, s45, 7
    s_lshr_b32 s41, s45, 3
    s_and_b32 s40, s44, 1
    s_lshl_b32 s40, s40, 3
    s_add_u32 s40, s40, s46
    s_lshr_b32 s42, s44, 1
    s_lshl_b32 s43, s41, 1
    s_add_u32 s43, s43, s46
    s_and_b32 s43, s43, 7
    s_cmp_ge_u32 s26, 8
    s_cbranch_scc1 K2_BG
    ''')
    phase1(a)
    a('''
    s_and_b32 s40, s2, 7
    s_lshr_b32 s41, s2, 3
    s_lshl_b32 s40, s40, 2
    s_lshr_b32 s45, s41, 3
    s_add_u32 s40, s40, s45
    s_and_b32 s41, s41, 7
    ''')
    attention(a)
    oproj(a)
    if PROF: a('s_waitcnt vmcnt(0)')
    a.flush(0, 26)
    a('s_endpgm')
    a('.p2align 8')
    background(a)
    if PROF: a('s_waitcnt vmcnt(0)')
    a.stamp(6); a.flush(0, 26)
    a('K_END:')
    a('s_endpgm')
    return header(NAME) + a.text(), kd(NAME, 160)

if __name__ == '__main__':
    import sys
    c, d = fused()
    out = '; @launch grid=(256,1,1) block=(768,1,1) lds=163840\n.amdgcn_target "amdgcn-amd-amdhsa--gfx950"\n.text\n' + c + '.section .rodata,"a"\n' + d
    open(sys.argv[1], 'w').write(out)
```

```python
from common import *
NAME = 'concat_heads__mha_block__spectral_fnet__prompt_kernel'
FLG_P1 = 0x710000
FLG_O  = 0x720000
TS = 2064
SCR = 64*TS
MSK, BADF, CNT_F = SCR, SCR+8, SCR+12
CMB = SCR+256
FX = CMB+18432
FE = FX+12288
BIAS = float(os.environ.get('BIAS', '88'))
SPIN_MAX = 1 << 16
KA, VA, IDX, VB = 1, 2, 3, 47
QA, QB = 4, 8
KF = 12
VF = [[20, 24], [28, 32]]
SA, SB, OA, OB, MA, MB = 48, 64, 80, 96, 112, 128
SC1 = ' sc1'
TOUCH = int(os.environ.get('TOUCH', '0'))
FS = int(os.environ.get('FS', '6'))
OFS = int(os.environ.get('OFS', '3'))
def _seq():
    order = [NB, 0, NB+1] + list(range(1, NB)) + list(range(NB+2, 16))
    assert sorted(order) == list(range(16))
    return [sum(g << (4*k) for k, g in enumerate(order[p::2])) for p in range(2)]
LOOPPROF = int(os.environ.get('LOOPPROF', '0'))
ROTC = int(os.environ.get('ROTC', '7'))
ROTR = int(os.environ.get('ROTR', '7'))
NB = int(os.environ.get('NB', '3'))
OOB = int(os.environ.get('OOB', '1'))
ROT = int(os.environ.get('ROT', '6'))
P1PROF = bool(int(os.environ.get('P1PROF', '0')))

SEQ = _seq()
def srd(a, d, lo, size):
    a(f's_mov_b32 s{d}, s{lo}\ns_mov_b32 s{d+1}, s{lo+1}\ns_mov_b32 s{d+2}, {size}\ns_mov_b32 s{d+3}, 0x20000')

def poll(a, tag, vaddr, vt, soff, mask=None):
    if mask: a(f's_mov_b64 exec, {mask}')
    a(f'''
    s_mov_b32 s68, {SPIN_MAX}
    {tag}_SP:
    {os.environ.get('POLLBACK2', '')}
    buffer_load_dword v{vt}, v{vaddr}, s[28:31], {soff} offen sc1
    s_sub_u32 s68, s68, 1
    s_waitcnt vmcnt(0)
    v_cmp_ne_u32 vcc, s27, v{vt}
    s_cbranch_scc1 {tag}_OK
    s_cbranch_vccnz {tag}_SP
    {tag}_OK:
    ''')
    if mask: a('s_mov_b64 exec, -1')

ATT = True
def p1_loader(a):
    a('''
    s_lshl_b32 s44, s40, 7
    s_mov_b32 s45, 1
    s_movk_i32 s46, 3072
    s_lshl_b32 s47, s42, 10
    s_lshl_b32 s48, s41, 8
    s_add_u32 s47, s47, s48
    s_cmp_lg_u32 s42, 3
    s_cbranch_scc1 K1_NOTF
    s_lshl_b32 s44, s40, 6
    s_movk_i32 s46, 1024
    s_and_b32 s47, s48, 256
    s_cmp_lt_u32 s33, 2
    s_cbranch_scc1 K1_NOTF
    s_sub_u32 s44, 2112, s44
    s_mov_b32 s45, -1
    K1_NOTF:
    s_lshl_b32 s49, s33, 5
    v_lshrrev_b32 v6, 3, v0
    v_add_u32 v6, s49, v6
    v_and_b32 v8, 7, v0
    v_mov_b32 v11, 1024
    s_movk_i32 s50, 2048
    ''')
    for j in range(4):
        a(f'''
        v_add_u32 v7, {8*j}, v6
        v_mul_i32_i24 v9, s45, v7
        v_add_u32 v9, s44, v9
        v_cmp_eq_u32 vcc, s50, v9
        v_bfe_u32 v10, v7, 1, 3
        v_xor_b32 v10, v8, v10
        v_cndmask_b32 v9, v9, v11, vcc
        v_lshlrev_b32 v10, 4, v10
        v_lshl_add_u32 v{16+j}, v9, 10, v10
        ''')
    a('''
    v_lshrrev_b32 v6, 4, v0
    s_lshl_b32 s49, s33, 4
    v_add_u32 v7, s49, v6
    v_mul_lo_u32 v7, v7, s46
    v_and_b32 v8, 15, v0
    v_lshlrev_b32 v6, 2, v6
    v_xor_b32 v8, v8, v6
    v_lshlrev_b32 v8, 4, v8
    v_add3_u32 v20, v7, v8, s47
    s_lshl_b32 s49, s46, 2
    v_add_u32 v21, s49, v20
    v_add_u32 v22, s49, v21
    v_add_u32 v23, s49, v22
    s_lshl_b32 s51, s33, 12
    s_lshl_b32 s52, s46, 6
    s_waitcnt lgkmcnt(0)
    s_cmp_eq_u32 s42, 3
    s_cselect_b32 s56, s10, s4
    s_cselect_b32 s57, s11, s5
    s_mov_b32 s58, 0x200000
    s_mov_b32 s59, 0x20000
    s_mov_b32 s38, 0x180000
    s_cselect_b32 s38, 0x80000, s38
    s_cselect_b32 s53, 1, 0
    s_cmp_lt_u32 s41, 2
    s_cselect_b32 s36, s16, s18
    s_cselect_b32 s37, s17, s19
    s_cmp_eq_u32 s53, 1
    s_cselect_b32 s36, s36, s6
    s_cselect_b32 s37, s37, s7
    s_mov_b32 s39, 0x20000
    ''')
    def issue(c):
        slot = c % 4
        a(f'''
        s_add_u32 s54, s43, {c}
        s_and_b32 s54, s54, 7
        s_lshl_b32 s55, s54, 7
        s_mul_i32 s54, s54, s52
        ''')
        for j in range(4):
            a(f'''
            s_add_u32 m0, s51, {slot*32768+j*1024}
            s_nop 0
            buffer_load_dwordx4 v{16+j}, s[56:59], s55 offen lds
            s_add_u32 m0, s51, {slot*32768+16384+j*1024}
            s_nop 0
            buffer_load_dwordx4 v{20+j}, s[36:39], s54 offen lds
            ''')
    a(f'''
    s_add_u32 s48, s2, s33
    s_cmp_lg_u32 s48, 0
    s_cbranch_scc1 BG_NONONCE
    s_or_b32 s60, s60, 1
    v_mov_b32 v8, s60
    s_mov_b64 exec, 1
    global_store_dword v2, v8, s[22:23] sc1
    s_mov_b64 exec, -1
    BG_NONONCE:
    ''')
    a.stamp(7)
    issue(0); issue(1)
    a(f'''
    s_lshl_b32 s49, s33, 4
    v_add_u32 v8, s49, v0
    v_and_b32 v9, 3, v0
    v_lshlrev_b32 v9, 6, v9
    v_lshl_add_u32 v24, v8, 8, v9
    v_add_u32 v25, 0x10000, v24
    v_and_b32 v11, 1, v0
    v_lshlrev_b32 v26, 15, v11
    v_add_u32 v26, 0x3f80, v26
    s_cmp_eq_u32 s41, 2
    s_cselect_b32 s53, s53, 0
    ''')
    srd(a, 28, 24, WS_USED)
    for c in range(8):
        slot = c % 4
        a(f'''
        s_waitcnt vmcnt({8 if c < 7 else 0})
        s_cmp_eq_u32 s53, 0
        s_cbranch_scc1 K1_NP{c}
        s_mov_b64 exec, 0xffff
        ds_write_b16 v{25 if slot>=2 else 24}, v26 offset:{(slot&1)*32768+16384}
        s_mov_b64 exec, -1
        s_waitcnt lgkmcnt(0)
        K1_NP{c}:
        s_barrier
        ''')
        if c + 2 < 8: issue(c+2)

def phase1(a):
    a(f'''
    s_getpc_b64 s[44:45]
    PC_HERE:
    s_sub_u32 s44, s44, PC_HERE-{NAME}
    s_subb_u32 s45, s45, 0
    v_lshlrev_b32 v6, 7, v0
    s_lshl_b32 s47, s26, 13
    v_add_u32 v6, s47, v6
    v_min_u32 v6, K_END-{NAME}, v6
    global_load_dword v112, v6, s[44:45]
    ''')
    a(f'''
    s_and_b32 s57, s26, 1
    s_lshr_b32 s58, s26, 1
    v_and_b32 v6, 31, v0
    v_lshrrev_b32 v7, 5, v0
    s_lshl_b32 s49, s57, 5
    v_add_u32 v8, s49, v6
    v_bfe_u32 v9, v8, 1, 3
    v_xor_b32 v9, v9, v7
    ''')
    for ks in range(4):
        a(f'''
        v_xor_b32 v10, {2*ks}, v9
        v_lshlrev_b32 v10, 4, v10
        v_lshl_add_u32 v{96+ks}, v8, 7, v10
        v_add_u32 v{100+ks}, 0x10000, v{96+ks}
        ''')
    a('''
    v_bfe_u32 v8, v0, 2, 2
    v_lshl_add_u32 v9, v7, 3, v8
    v_bfe_u32 v10, v0, 4, 1
    v_lshlrev_b32 v10, 1, v10
    v_bfe_u32 v11, v0, 1, 1
    v_add_u32 v10, v10, v11
    s_lshl_b32 s49, s58, 2
    v_add_u32 v10, s49, v10
    v_lshlrev_b32 v8, 2, v8
    v_xor_b32 v10, v10, v8
    v_lshlrev_b32 v10, 4, v10
    v_lshl_add_u32 v10, v9, 8, v10
    v_and_b32 v11, 1, v0
    v_lshl_add_u32 v104, v11, 3, v10
    v_add_u32 v105, 0x10000, v104
    s_lshl_b32 s59, s42, 2
    s_add_u32 s59, s59, s41
    s_cmp_eq_u32 s59, 14
    s_cselect_b32 s59, 1, 0
    s_waitcnt lgkmcnt(0)
    s_mov_b32 s28, s24
    s_mov_b32 s29, s25
    s_mov_b32 s30, 10485760
    s_mov_b32 s31, 0x20000
    ''')
    if TOUCH:
        a(f'''
        s_lshl_b32 s60, s41, 3
        s_lshl_b32 s61, s58, 1
        s_add_u32 s60, s60, s61
        s_lshl_b32 s60, s60, 6
        s_lshl_b32 s61, s40, 2
        s_add_u32 s61, s61, s57
        s_add_u32 s60, s60, s61
        s_lshl_b32 s61, s60, 10
        s_lshl_b32 s60, s60, 11
        s_add_u32 s60, s60, {KV_OFF}
        s_cmp_eq_u32 s42, 2
        s_cselect_b32 s62, 1024, 0
        s_add_u32 s60, s60, s62
        s_cmp_eq_u32 s42, 0
        s_cselect_b32 s60, s61, s60
        s_cmp_eq_u32 s42, 3
        s_cselect_b32 s60, {FLG_O + 0x10000}, s60
        v_mov_b32 v113, 0
        s_mov_b32 s61, {FLG_O + 0x10000}
        s_mov_b32 s62, {OF_OFF + 0x200000}
        s_mov_b64 exec, 1
        buffer_load_dword v114, v113, s[28:31], s60 offen
        buffer_load_dword v115, v113, s[28:31], s61 offen
        s_mov_b64 exec, -1
        ''')
    a('''
    s_cmp_ge_u32 s42, 2
    s_cbranch_scc1 K1_LOOP_XW
    ''')
    def reads(slot, ks, fs):
        b = 16 + 12*fs
        hi = slot >= 2
        so = (slot & 1)*32768
        xa = (100 if hi else 96) + ks
        wa = 105 if hi else 104
        a(f'''
        ds_read_b128 {vr(b,4)}, v{xa} offset:{so}
        ds_read_b64_tr_b16 {vr(b+8,2)}, v{wa} offset:{so+16384+ks*4096}
        ds_read_b64_tr_b16 {vr(b+10,2)}, v{wa} offset:{so+16384+ks*4096+1024}
        ds_read_b128 {vr(b+4,4)}, v{xa} offset:{so+8192}
        ''')
    def mfmas(wx, fs, first):
        b = 16 + 12*fs
        for T in range(2):
            d = vr(64+16*T, 16); c = '0' if first else d
            x = vr(b+4*T, 4); w = vr(b+8, 4)
            a(f'v_mfma_f32_32x32x16_bf16 {d}, {w if wx else x}, {x if wx else w}, {c}')
    def loop(wx):
        def enter(c):
            a('s_barrier')
            if c == 0: a.stamp(2)
            if P1PROF and c in (1,2,3,4,6): a.stamp({1:5,2:6,3:7,4:8,6:9}[c])
        enter(0)
        reads(0, 0, 0); reads(0, 1, 1)
        for i in range(32):
            n = i + 2
            if n < 32:
                if n % 4 == 0: enter(n // 4)
                reads((n // 4) % 4, n % 4, n % 4)
            a(f's_waitcnt lgkmcnt({8 if n < 32 else (4 if n == 32 else 0)})')
            mfmas(wx, i % 4, i == 0)
        a.stamp(3)
    tileidx = '''
    s_lshl_b32 s60, s41, 3
    s_lshl_b32 s61, s58, 1
    s_add_u32 s60, s60, s61
    s_lshl_b32 s60, s60, 6
    s_lshl_b32 s61, s40, 2
    s_add_u32 s61, s61, s57
    s_add_u32 s60, s60, s61
    '''
    def pack_store(offs):
        for T in range(2):
            for hh in range(2):
                b = 64 + 16*T + 8*hh
                for i in range(4): a(f'v_cvt_pk_bf16_f32 v{16+(2*T+hh)*4+i}, v{b+2*i}, v{b+2*i+1}')
                a(f's_add_u32 s61, s60, {offs(T, hh)}')
                a(f'buffer_store_dwordx4 {vr(16+(2*T+hh)*4,4)}, v1, s[28:31], s61 offen{SC1}')
    loop(True)
    a(tileidx)
    a(f'''
    s_cmp_eq_u32 s42, 0
    s_cbranch_scc0 K1_EPI_K
    s_lshl_b32 s60, s60, 10
    v_lshlrev_b32 v1, 4, v0
    s_mov_b32 s62, {f2u(QSCALE)}
    s_nop 7
    ''')
    for r in range(32): a(f'v_mul_f32 v{64+r}, s62, v{64+r}')
    pack_store(lambda T, hh: QF_OFF + hh*65536 + T*2048)
    a(f'''
    s_branch K1_DONE
    K1_EPI_K:
    s_lshl_b32 s60, s60, 11
    v_and_b32 v1, 0x33, v0
    v_bfe_u32 v2, v0, 2, 1
    v_bfe_u32 v3, v0, 3, 1
    v_lshl_add_u32 v1, v2, 3, v1
    v_lshl_add_u32 v1, v3, 2, v1
    v_lshlrev_b32 v1, 4, v1
    s_nop 4
    ''')
    pack_store(lambda T, hh: KV_OFF + hh*131072 + T*4096)
    a('s_branch K1_DONE')
    a('K1_LOOP_XW:')
    loop(False)
    a('s_cmp_eq_u32 s42, 3\ns_cbranch_scc1 K1_EPI_F')
    a(tileidx)
    a(f'''
    s_lshl_b32 s60, s60, 11
    v_and_b32 v1, 15, v0
    v_lshlrev_b32 v1, 4, v1
    v_bfe_u32 v2, v0, 4, 1
    v_lshl_add_u32 v1, v2, 17, v1
    v_lshl_add_u32 v1, v7, 8, v1
    s_nop 1
    ''')
    pack_store(lambda T, f: KV_OFF + 1024 + f*512 + T*4096)
    a(f'''
    s_branch K1_DONE
    K1_EPI_F:
    s_cmp_lt_u32 s41, 2
    s_cselect_b32 s62, 1.0, -1.0
    s_mov_b32 s63, {BOF_OFF}
    s_cselect_b32 s63, {AEF_OFF}, s63
    v_mov_b32 v2, s62
    s_or_b32 s61, s40, s57
    s_cmp_eq_u32 s59, 0
    s_cbranch_scc1 K1_F1
    s_cmp_lg_u32 s58, 0
    s_cbranch_scc1 K1_F1
    v_cmp_eq_u32 vcc, 0, v6
    s_nop 1
    v_cndmask_b32 v2, v2, 1.0, vcc
    K1_F1:
    v_mov_b32 v3, v2
    s_cmp_lg_u32 s61, 0
    s_cbranch_scc1 K1_F2
    v_cmp_eq_u32 vcc, 0, v7
    s_nop 1
    v_cndmask_b32 v3, v3, 0, vcc
    s_lshl_b32 s64, s41, 7
    s_lshl_b32 s65, s58, 5
    s_add_u32 s64, s64, s65
    v_add_u32 v4, s64, v6
    v_lshlrev_b32 v5, 2, v4
    v_cmp_gt_u32 vcc, 257, v4
    s_mov_b32 vcc_hi, 0
    s_mov_b32 s65, {AE1K_OFF}
    s_nop 7
    s_and_saveexec_b64 s[66:67], vcc
    s_cbranch_execz K1_F3
    buffer_store_dword v80, v5, s[28:31], s65 offen{SC1}
    K1_F3:
    s_mov_b64 exec, s[66:67]
    K1_F2:
    s_and_b32 s60, s41, 1
    s_lshl_b32 s60, s60, 2
    s_add_u32 s60, s60, s58
    s_lshl_b32 s60, s60, 6
    s_lshl_b32 s61, s40, 2
    s_lshl_b32 s64, s57, 1
    s_add_u32 s61, s61, s64
    s_add_u32 s60, s60, s61
    s_lshl_b32 s60, s60, 10
    s_add_u32 s60, s60, s63
    v_lshlrev_b32 v1, 4, v0
    s_nop 4
    ''')
    for r in range(16): a(f'v_fma_f32 v{64+r}, v{80+r}, v{3 if r == 0 else 2}, v{64+r}')
    for f in range(2):
        b = 64 + 8*f
        for i in range(4): a(f'v_cvt_pk_bf16_f32 v{16+f*4+i}, v{b+2*i}, v{b+2*i+1}')
    a('s_nop 1')
    for f in range(2):
        a(f'v_permlane32_swap_b32 v{16+f*4}, v{18+f*4}')
        a(f'v_permlane32_swap_b32 v{17+f*4}, v{19+f*4}')
    a('s_nop 1')
    for f in range(2):
        a(f'buffer_store_dwordx4 {vr(16+f*4,4)}, v1, s[28:31], s60 offen offset:{f*1024}{SC1}')
    a('K1_DONE:')

def attention(a):
    a(f'''
    v_lshlrev_b32 v36, 4, v0
    s_and_b32 s33, s26, 3
    s_lshr_b32 s34, s26, 2
    s_lshl_b32 s35, s41, 3
    s_lshl_b32 s36, s33, 1
    s_add_u32 s35, s35, s36
    s_cmp_eq_u32 s34, 0
    s_cselect_b32 s38, {NB}, 0
    s_cselect_b32 s39, 16, {NB}
    s_mul_i32 s37, s38, {4*TS}
    v_add_u32 v{KA}, s37, v36
    v_and_b32 v37, 15, v0
    v_lshrrev_b32 v38, 5, v0
    v_lshlrev_b32 v37, 4, v37
    v_lshl_add_u32 v37, v38, 8, v37
    v_and_b32 v39, 16, v0
    v_cmp_ne_u32 vcc, 0, v39
    v_mov_b32 v40, {0x40000 if OOB else 0}
    v_and_b32 v39, 27, v0
    v_cndmask_b32 v40, 0, v40, vcc
    v_add_u32 v37, v37, v40
    v_cmp_eq_u32 vcc, 16, v39
    v_add_u32 v38, 512, v37
    v_mov_b32 v40, 1024
    s_add_u32 s37, s37, 1024
    v_cndmask_b32 v37, v37, v40, vcc
    v_cndmask_b32 v38, v38, v40, vcc
    v_add_u32 v{VA}, s37, v37
    v_add_u32 v{VB}, s37, v38
    v_mov_b32 v{IDX}, 0xdddddddd
    s_mov_b32 s42, 0
    s_mov_b32 s32, 0
    s_lshl_b32 s36, s33, 11
    s_add_u32 s36, s36, {CMB}
    v_add_u32 v41, s36, v36
    v_mov_b32 v46, {MSK}
    ''')
    def zero_acc():
        for r in range(16):
            a(f'v_mov_b32 v{OA+r}, 0'); a(f'v_mov_b32 v{OB+r}, 0')
        for r in range(4): a(f'v_mov_b32 v{VF[1][1]+r}, 0')
    zero_acc()
    a('s_waitcnt vmcnt(0)')
    a.stamp(4)
    a('s_barrier')
    a('s_barrier')
    if not (P1PROF and ATT): a.stamp(5)
    a(f'''
    ds_read_b128 {vr(QA,4)}, v41
    ds_read_b128 {vr(QB,4)}, v41 offset:1024
    ds_read_b128 {vr(KF,4)}, v36
    ds_read_b32 v44, v46 offset:16
    s_cmp_lg_u32 s34, 0
    s_cbranch_scc1 K2_NOPRIO
    s_setprio 1
    K2_NOPRIO:
    s_waitcnt lgkmcnt(0)
    v_mfma_f32_32x32x16_bf16 {vr(SA,16)}, {vr(KF,4)}, {vr(QA,4)}, 0
    v_mfma_f32_32x32x16_bf16 {vr(SB,16)}, {vr(KF,4)}, {vr(QB,4)}, 0
    v_readfirstlane_b32 s27, v44
    s_nop 9
    ''')
    def rowmax(S, dst, acc=False):
        if not acc:
            a(f'v_max3_f32 v{dst}, v{S}, v{S+1}, v{S+2}')
            for i in range(3, 15, 2): a(f'v_max3_f32 v{dst}, v{dst}, v{S+i}, v{S+i+1}')
            a(f'v_max_f32 v{dst}, v{dst}, v{S+15}')
        else:
            for i in range(0, 16, 2): a(f'v_max3_f32 v{dst}, v{dst}, v{S+i}, v{S+i+1}')
    def xhalf(r, t):
        a(f'''
        v_mov_b32 v{t}, v{r}
        s_nop 1
        v_permlane32_swap_b32 v{r}, v{t}
        s_nop 1
        v_max_f32 v{r}, v{r}, v{t}
        ''')
    rowmax(SA, 41); rowmax(SB, 42); xhalf(41, 43); xhalf(42, 44)
    a(f'''
    v_mov_b32 v43, {f2u(-BIAS)}
    v_sub_f32 v41, v43, v41
    v_sub_f32 v42, v43, v42
    K2_RESTART:
    ds_read_b128 {vr(KF,4)}, v{KA}
    ds_read_b128 {vr(VF[0][0],4)}, v{VA}
    ds_read_b128 {vr(VF[0][1],4)}, v{VB}
    ''')
    for r in range(16):
        a(f'v_mov_b32 v{MA+r}, v41'); a(f'v_mov_b32 v{MB+r}, v42')
    for r in range(8, 16): a(f'v_mov_b32 v{SB+r}, 0')
    a(f'''
    s_add_u32 s43, s38, 1
    s_waitcnt lgkmcnt(0)
    v_mfma_f32_32x32x16_bf16 {vr(SA,16)}, {vr(KF,4)}, {vr(QA,4)}, {vr(MA,16)}
    s_nop 10
    ''')
    if LOOPPROF: a.stamp(1)
    elif not (P1PROF and ATT): a.stamp(6)
    a(f'''
    s_branch K2_LOOP
    K2_SPIN:
    ds_read_b64 v[44:45], v46
    s_waitcnt lgkmcnt(0)
    v_and_b32 v44, v44, v45
    s_nop 0
    v_readfirstlane_b32 s32, v44
    s_bitset1_b32 s32, s39
    s_bitcmp1_b32 s32, s43
    s_cbranch_scc0 K2_SPIN
    s_branch K2_READY
    K2_LOOP:
    ''')
    def ex(S, lo, hi):
        for i in range(lo, hi): a(f'v_exp_f32 v{S+i}, v{S+i}')
    def tile(j):
        vs, vp = VF[j & 1], VF[(j+1) & 1]
        ex(SA, 0, 2)
        a(f'v_smfmac_f32_32x32x32_bf16 {vr(OB,16)}, {vr(vp[1],4)}, {vr(SB+8,8)}, v{IDX}')
        ex(SA, 2, 5)
        a(f'v_mfma_f32_32x32x16_bf16 {vr(SB,16)}, {vr(KF,4)}, {vr(QB,4)}, {vr(MB,16)}')
        o = (j+1)*TS
        if j == 3: a('s_bitcmp1_b32 s32, s43\ns_cbranch_scc0 K2_SPIN\nK2_READY:')
        a(f'''
        ds_read_b128 {vr(KF,4)}, v{KA} offset:{o}
        ds_read_b128 {vr(vp[0],4)}, v{VA} offset:{o}
        ds_read_b128 {vr(vp[1],4)}, v{VB} offset:{o}
        ''')
        ex(SA, 5, 10)
        a(f'v_smfmac_f32_32x32x32_bf16 {vr(OA,16)}, {vr(vs[0],4)}, {vr(SA,8)}, v{IDX}')
        ex(SA, 10, 16)
        ex(SB, 0, 2)
        a(f'v_smfmac_f32_32x32x32_bf16 {vr(OA,16)}, {vr(vs[1],4)}, {vr(SA+8,8)}, v{IDX}')
        ex(SB, 2, 5)
        a('s_waitcnt lgkmcnt(0)')
        a(f'v_mfma_f32_32x32x16_bf16 {vr(SA,16)}, {vr(KF,4)}, {vr(QA,4)}, {vr(MA,16)}')
        ex(SB, 5, 10)
        a(f'v_smfmac_f32_32x32x32_bf16 {vr(OB,16)}, {vr(vs[0],4)}, {vr(SB,8)}, v{IDX}')
        if j == 3:
            a(f'v_add_u32 v{KA}, {4*TS}, v{KA}')
            a(f'v_add_u32 v{VA}, {4*TS}, v{VA}')
            a(f'v_add_u32 v{VB}, {4*TS}, v{VB}')
            if LOOPPROF: a('s_mov_b32 m0, s43\ns_nop 3\nv_writelane_b32 v150, s96, m0\ns_memtime s[96:97]')
            a('s_add_u32 s43, s43, 1')
            a('s_cmp_le_u32 s43, s39')
        ex(SB, 10, 16)
    for j in range(4): tile(j)
    a(f'''
    s_cbranch_scc1 K2_LOOP
    s_nop 1
    v_smfmac_f32_32x32x32_bf16 {vr(OB,16)}, {vr(VF[1][1],4)}, {vr(SB+8,8)}, v{IDX}
    ''')
    if not (P1PROF and ATT): a.stamp(7)
    a(f'''
    s_setprio 0
    s_sub_u32 s43, s39, s38
    s_mul_i32 s44, s43, {4*TS}
    v_subrev_u32 v{KA}, s44, v{KA}
    v_subrev_u32 v{VA}, s44, v{VA}
    v_subrev_u32 v{VB}, s44, v{VB}
    s_mul_i32 s44, s26, 2304
    s_add_u32 s44, s44, {CMB}
    v_add_u32 v45, s44, v36
    v_lshlrev_b32 v46, 2, v0
    v_add_u32 v46, s44, v46
    s_mov_b32 s44, {f2u(2.0**100)}
    s_mov_b32 s45, 0x7f800000
    s_mov_b32 s46, {f2u(2.0**-(BIAS+1))}
    s_mov_b32 s47, {f2u(2.0**-105)}
    s_cmp_lg_u32 s42, 0
    s_cbranch_scc1 K2_GOOD
    ''')
    for k, O in enumerate((OA, OB)):
        t = 43+k
        a(f'v_add_f32 v{t}, abs(v{O}), abs(v{O+1})')
        for i in range(2, 8): a(f'v_add_f32 v{t}, v{t}, abs(v{O+i})')
        a(f'''
        v_cmp_ngt_f32 s[48:49], s44, v{O+8}
        v_cmp_ngt_f32 s[50:51], s45, v{t}
        v_cmp_le_f32 s[52:53], s46, v{O+8}
        v_cmp_gt_f32 vcc, s47, v{t}
        s_or_b64 s[48:49], s[48:49], s[50:51]
        s_and_b64 vcc, vcc, s[52:53]
        s_or_b64 s[{54+2*k}:{55+2*k}], s[48:49], vcc
        ''')
    a(f'''
    s_or_b64 s[54:55], s[54:55], s[56:57]
    s_cbranch_scc0 K2_GOOD
    v_mov_b32 v43, {BADF}
    v_mov_b32 v44, 1
    ds_write_b32 v43, v44
    K2_GOOD:
    s_cmp_eq_u32 s34, 0
    s_cbranch_scc1 K2_SENDB
    ds_write_b128 v45, {vr(OA,4)}
    ds_write_b128 v45, {vr(OA+4,4)} offset:1024
    ds_write_b32 v46, v{OA+8} offset:2048
    s_waitcnt lgkmcnt(0)
    ''')
    for r in range(9): a(f'v_mov_b32 v{OA+r}, v{OB+r}')
    a(f'''
    v_subrev_u32 v45, {4*2304}, v45
    v_subrev_u32 v46, {4*2304}, v46
    s_branch K2_SENT
    K2_SENDB:
    ds_write_b128 v45, {vr(OB,4)}
    ds_write_b128 v45, {vr(OB+4,4)} offset:1024
    ds_write_b32 v46, v{OB+8} offset:2048
    v_add_u32 v45, {4*2304}, v45
    v_add_u32 v46, {4*2304}, v46
    K2_SENT:
    v_mov_b32 v43, {BADF}
    s_waitcnt lgkmcnt(0)
    s_barrier
    ds_read_b32 v44, v43
    ds_read_b128 {vr(SA,4)}, v45
    ds_read_b128 {vr(SA+4,4)}, v45 offset:1024
    ds_read_b32 v{SA+8}, v46 offset:2048
    s_add_u32 s36, s35, s34
    s_lshl_b32 s36, s36, 5
    s_add_u32 s36, s36, s40
    s_lshl_b32 s36, s36, 10
    s_add_u32 s36, s36, {OF_OFF}
    s_waitcnt lgkmcnt(3)
    v_readfirstlane_b32 s44, v44
    s_cmp_lt_u32 s42, s44
    s_cbranch_scc0 K2_COMBINE
    ''')
    a(f'''
    s_mov_b32 s42, 1
    v_mov_b32 v41, 0xff800000
    v_mov_b32 v42, 0xff800000
    v_mov_b32 v45, v{KA}
    s_lshl_b32 s43, s43, 2
    K2_MAXLOOP:
    ds_read_b128 {vr(KF,4)}, v45
    v_add_u32 v45, {TS}, v45
    s_waitcnt lgkmcnt(0)
    v_mfma_f32_32x32x16_bf16 {vr(SA,16)}, {vr(KF,4)}, {vr(QA,4)}, 0
    v_mfma_f32_32x32x16_bf16 {vr(SB,16)}, {vr(KF,4)}, {vr(QB,4)}, 0
    s_nop 11
    ''')
    rowmax(SA, 41, True); rowmax(SB, 42, True)
    a(f'''
    s_sub_u32 s43, s43, 1
    s_cmp_lg_u32 s43, 0
    s_cbranch_scc1 K2_MAXLOOP
    ''')
    xhalf(41, 43); xhalf(42, 44)
    a(f'''
    s_lshl_b32 s44, s26, 9
    v_lshlrev_b32 v43, 2, v0
    v_add_u32 v43, s44, v43
    v_xor_b32 v45, 0x800, v43
    v_add_u32 v43, {FX}, v43
    v_add_u32 v45, {FX}, v45
    ds_write_b32 v43, v41
    ds_write_b32 v43, v42 offset:256
    s_waitcnt lgkmcnt(0)
    s_barrier
    ds_read_b32 v44, v45
    ds_read_b32 v45, v45 offset:256
    s_waitcnt lgkmcnt(0)
    v_max_f32 v41, v41, v44
    v_max_f32 v42, v42, v45
    v_sub_f32 v41, 0, v41
    v_sub_f32 v42, 0, v42
    v_mov_b32 v46, {MSK}
    ''')
    zero_acc()
    a(f'''
    s_branch K2_RESTART
    K2_COMBINE:
    ''')
    if LOOPPROF:
        a('v_writelane_b32 v150, s96, 8')
        for k in range(1, 9): a(f'v_readlane_b32 s{76+2*k}, v150, {k}')
    elif not (P1PROF and ATT): a.stamp(8)
    srd(a, 48, 8, 0x80000)
    a(f'''
    v_lshrrev_b32 v3, 3, v0
    v_and_b32 v4, 7, v0
    v_and_b32 v5, 2, v3
    v_lshlrev_b32 v5, 1, v5
    v_xor_b32 v4, v4, v5
    v_lshlrev_b32 v4, 4, v4
    v_lshl_add_u32 v3, v3, 10, v4
    s_and_b32 s44, s40, 7
    s_lshl_b32 s45, s44, 7
    s_lshl_b32 s46, s26, 16
    s_add_u32 s45, s45, s46
    s_lshl_b32 s46, s26, 13
    s_waitcnt lgkmcnt(0)
    v_add_f32 v{OA+8}, v{OA+8}, v{SA+8}
    v_rcp_f32 v{OA+8}, v{OA+8}
    ''')
    for r in range(8): a(f'v_add_f32 v{OA+r}, v{OA+r}, v{SA+r}')
    for r in range(8): a(f'v_mul_f32 v{OA+r}, v{OA+r}, v{OA+8}')
    for i in range(4): a(f'v_cvt_pk_bf16_f32 v{SB+i}, v{OA+2*i}, v{OA+2*i+1}')
    a(f'buffer_store_dwordx4 {vr(SB,4)}, v36, s[28:31], s36 offen{SC1}')
    for i in range(8):
        a(f'''
        s_mov_b32 m0, s46
        s_add_u32 s46, s46, 1024
        buffer_load_dwordx4 v3, s[48:51], s45 offen lds
        s_add_u32 s45, s45, 8192
        ''')
    a(f'''
    s_lshl_b32 s45, s41, 2
    s_add_u32 s45, s45, s33
    s_lshl_b32 s45, s45, 5
    s_add_u32 s45, s45, s40
    s_lshl_b32 s45, s45, 1
    s_add_u32 s45, s45, s34
    s_lshl_b32 s45, s45, {OFS}
    s_add_u32 s45, s45, {FLG_O}
    v_mov_b32 v5, s27
    v_mov_b32 v6, 0
    s_waitcnt vmcnt(8)
    s_mov_b64 exec, 1
    buffer_store_dword v5, v6, s[28:31], s45 offen sc1
    s_mov_b64 exec, -1
    ''')

def oproj(a):
    srd(a, 52, 20, 0x400000)
    a(f'''
    v_lshlrev_b32 v2, 4, v0
    s_and_b32 s56, s26, 1
    s_lshr_b32 s57, s26, 1
    s_lshr_b32 s58, s40, 3
    s_lshl_b32 s59, s41, 2
    s_add_u32 s59, s59, s58
    v_lshrrev_b32 v7, 5, v0
    v_bfe_u32 v8, v0, 2, 2
    v_lshl_add_u32 v9, v7, 2, v8
    v_bfe_u32 v10, v0, 4, 1
    v_lshlrev_b32 v10, 1, v10
    v_bfe_u32 v11, v0, 1, 1
    v_add_u32 v10, v10, v11
    v_and_b32 v8, 2, v8
    v_lshlrev_b32 v8, 1, v8
    v_xor_b32 v10, v10, v8
    v_lshlrev_b32 v10, 4, v10
    v_lshl_add_u32 v10, v9, 7, v10
    v_and_b32 v11, 1, v0
    v_lshl_add_u32 v10, v11, 3, v10
    s_lshl_b32 s60, s57, 14
    v_add_u32 v10, s60, v10
    v_xor_b32 v11, 64, v10
    s_lshl_b32 s60, s59, {OFS+6}
    s_add_u32 s60, s60, {FLG_O}
    v_lshlrev_b32 v3, {OFS}, v0
    s_lshl_b32 s61, s59, 16
    s_lshl_b32 s62, s56, 15
    s_add_u32 s61, s61, s62
    s_lshl_b32 s62, s57, 13
    s_add_u32 s61, s61, s62
    s_add_u32 s61, s61, {OF_OFF}
    s_add_u32 s62, s61, 4096
    s_waitcnt vmcnt(1)
    s_barrier
    ''')
    for hd in range(8):
        for c in range(2):
            b = 64 + (hd*2+c)*4
            ad = 10 + c
            a(f'ds_read_b64_tr_b16 {vr(b,2)}, v{ad} offset:{hd*2048}')
            a(f'ds_read_b64_tr_b16 {vr(b+2,2)}, v{ad} offset:{hd*2048+1024}')
        if hd % 2 == 1 and hd < 7: a('s_waitcnt lgkmcnt(4)')
    a('s_cmp_lg_u32 s26, 0\ns_cbranch_scc1 K3_OK')
    poll(a, 'K3', 3, 12, 's60')
    a('s_barrier')
    if not (P1PROF and ATT) and not LOOPPROF: a.stamp(9)
    for hd in range(8):
        a(f'buffer_load_dwordx4 {vr(16+4*hd,4)}, v2, s[28:31], s{61 + hd//4} offen offset:{(hd%4)*1024}{SC1}')
    a(f'''
    s_lshl_b32 s60, s56, 15
    s_add_u32 s60, s60, 65536
    s_lshl_b32 s63, s57, 11
    s_add_u32 s63, s63, s60
    v_add_u32 v13, s63, v2
    s_lshl_b32 s63, s57, 13
    s_add_u32 s63, s63, s60
    v_add_u32 v14, s63, v2
    v_and_b32 v15, 31, v0
    s_lshl_b32 s60, s59, 6
    s_lshl_b32 s63, s56, 5
    s_add_u32 s60, s60, s63
    v_add_u32 v15, s60, v15
    v_lshlrev_b32 v15, 11, v15
    v_lshl_add_u32 v15, v7, 4, v15
    s_lshl_b32 s60, s44, 7
    s_lshl_b32 s63, s57, 5
    s_add_u32 s60, s60, s63
    s_waitcnt lgkmcnt(0)
    ''')
    for hd in range(8):
        a(f's_waitcnt vmcnt({7-hd})')
        for c in range(2):
            d = vr(128+16*c, 16)
            a(f'v_mfma_f32_32x32x16_bf16 {d}, {vr(64+(hd*2+c)*4,4)}, {vr(16+4*hd,4)}, {"0" if hd == 0 else d}')
    a('s_nop 11')
    for g in range(4):
        a(f'ds_write_b128 v13, {vr(128+8*g,4)} offset:{g*8192}')
        a(f'ds_write_b128 v13, {vr(132+8*g,4)} offset:{g*8192+1024}')
    a('s_waitcnt lgkmcnt(0)\ns_barrier')
    for s in range(4):
        a(f'ds_read_b128 {vr(16+8*s,4)}, v14 offset:{s*2048}')
        a(f'ds_read_b128 {vr(20+8*s,4)}, v14 offset:{s*2048+1024}')
    a('s_waitcnt lgkmcnt(4)')
    for r in range(8): a(f'v_add_f32 v{16+r}, v{16+r}, v{24+r}')
    a('s_waitcnt lgkmcnt(0)')
    for r in range(8): a(f'v_add_f32 v{32+r}, v{32+r}, v{40+r}')
    for r in range(8): a(f'v_add_f32 v{16+r}, v{16+r}, v{32+r}')
    for i in range(4): a(f'v_cvt_pk_bf16_f32 v{48+i}, v{16+2*i}, v{17+2*i}')
    a('''
    s_nop 1
    v_permlane32_swap_b32 v48, v50
    v_permlane32_swap_b32 v49, v51
    s_nop 1
    buffer_store_dwordx4 v[48:51], v15, s[52:55], s60 offen
    ''')

def background(a):
    global ATT
    ATT = False
    ACC, EXT = 128, 144
    a(f'''
    K2_BG:
    s_setprio 2
    s_sub_u32 s33, s26, 8
    v_lshlrev_b32 v14, 4, v0
    v_mov_b32 v1, {SCR}
    v_mov_b32 v2, 0
    v_mov_b32 v3, 0
    v_mov_b32 v4, 0
    v_mov_b32 v5, 0
    ds_write_b128 v1, v[2:5]
    s_memrealtime s[60:61]
    ''')
    p1_loader(a)
    a(f'''
    s_mov_b32 s68, {SPIN_MAX}
    BG_NSP:
    global_load_dword v8, v2, s[22:23] sc1
    s_sub_u32 s68, s68, 1
    s_waitcnt vmcnt(0)
    v_readfirstlane_b32 s27, v8
    s_cbranch_scc1 BG_NOK
    s_cmp_eq_u32 s27, 0
    s_cbranch_scc1 BG_NSP
    BG_NOK:
    ds_write_b32 v1, v8 offset:16
    s_lshl_b32 s44, s41, 2
    s_add_u32 s44, s44, s42
    s_lshl_b32 s44, s44, 4
    s_add_u32 s44, s44, s40
    s_lshl_b32 s44, s44, {FS}
    s_add_u32 s44, s44, {FLG_P1}
    s_and_b32 s40, s2, 7
    s_lshr_b32 s41, s2, 3
    s_lshl_b32 s40, s40, 2
    s_lshr_b32 s45, s41, 3
    s_add_u32 s40, s40, s45
    s_and_b32 s41, s41, 7
    s_and_b32 s34, s33, 1
    s_lshr_b32 s35, s33, 1
    v_and_b32 v9, 15, v0
    v_lshlrev_b32 v9, {FS}, v9
    s_lshl_b32 s45, s34, {FS+4}
    s_add_u32 s45, s45, {16 << FS}
    v_add_u32 v9, s45, v9
    s_lshl_b32 s45, s41, 1
    s_add_u32 s45, s45, s35
    s_lshl_b32 s45, s45, {FS}
    v_mov_b32 v10, s45
    v_cmp_eq_u32 vcc, 16, v0
    s_lshr_b32 s45, s40, 3
    s_lshl_b32 s45, s45, {FS+6}
    s_add_u32 s45, s45, {FLG_P1}
    v_cndmask_b32 v9, v9, v10, vcc
    s_cmp_eq_u32 s35, 0
    s_mov_b32 s47, {SEQ[1]}
    s_cselect_b32 s47, {SEQ[0]}, s47
    s_lshl_b32 s34, s34, 10
    s_lshl_b32 s35, s40, 17
    s_add_u32 s35, s35, s34
    s_add_u32 s35, s35, {KV_OFF}
    v_mul_u32_u24 v11, {TS}, v0
    v_mov_b32 v16, 0x3f803f80
    v_mov_b32 v17, v16
    v_mov_b32 v18, v16
    v_mov_b32 v19, v16
    s_lshr_b32 s48, s34, 8
    v_add_u32 v20, s48, v1
    s_lshl_b32 s36, s40, 6
    s_lshl_b32 s37, s41, 3
    s_add_u32 s36, s36, s37
    s_lshl_b32 s37, s33, 1
    s_add_u32 s36, s36, s37
    s_lshl_b32 s36, s36, 10
    s_lshl_b32 s37, s33, 11
    s_add_u32 s37, s37, {CMB}
    s_waitcnt lgkmcnt(0)
    ''')
    a.stamp(1)
    a('s_barrier')
    a.stamp(2)
    a(f'''
    s_cmp_lg_u32 s33, 0
    s_cbranch_scc1 BG_NOFLAG
    s_mov_b64 exec, 1
    buffer_store_dword v8, v2, s[28:31], s44 offen sc1
    s_mov_b64 exec, -1
    ds_write_b128 v11, v[16:19] offset:2048
    BG_NOFLAG:
    ''')
    def grp_issue():
        a(f'''
        s_mul_i32 s52, s48, {4*TS}
        s_add_u32 m0, s52, s34
        s_lshl_b32 s51, s48, 13
        s_add_u32 s51, s51, s35
        ''')
        for t in range(4):
            a(f'buffer_load_dwordx4 v14, s[28:31], s51 offen{SC1} lds')
            if t < 3: a(f's_add_u32 m0, m0, {TS}\ns_add_u32 s51, s51, 2048')
    def publish():
        a('v_mov_b32 v21, s49\ns_mov_b64 exec, 1\nds_or_b32 v20, v21\ns_mov_b64 exec, -1')
    a(f'''
    s_and_b32 s48, s47, 15
    s_lshl_b32 s49, 1, s48
    s_or_b32 s53, s49, 0x10000
    s_mov_b32 s68, {SPIN_MAX}
    {os.environ.get('POLLDELAY', '')}
    BG1_SP:
    {os.environ.get('POLLBACK', '')}
    buffer_load_dword v10, v9, s[28:31], s45 offen sc1
    s_sub_u32 s68, s68, 1
    s_waitcnt vmcnt(0)
    v_cmp_eq_u32 vcc, s27, v10
    s_cbranch_scc1 BG1_OK
    s_and_b32 s46, vcc_lo, s53
    s_cmp_eq_u32 s46, s53
    s_cbranch_scc0 BG1_SP
    BG1_OK:
    s_mov_b32 s46, vcc_lo
    ''')
    a.stamp(3)
    grp_issue()
    a(f'''
    s_mov_b32 m0, s37
    s_mov_b32 s50, 1
    buffer_load_dwordx4 v14, s[28:31], s36 offen{SC1} lds
    buffer_load_dwordx4 v14, s[28:31], s36 offen offset:1024{SC1} lds
    s_waitcnt vmcnt(0) lgkmcnt(0)
    s_barrier
    BGL_LOOP:
    s_lshr_b32 s47, s47, 4
    s_and_b32 s48, s47, 15
    s_bitcmp1_b32 s46, s48
    s_cbranch_scc1 BGL_RDY
    s_waitcnt vmcnt(0)
    ''')
    publish()
    a(f'''
    s_mov_b32 s68, {SPIN_MAX}
    BGL_SP:
    buffer_load_dword v10, v9, s[28:31], s45 offen sc1
    s_sub_u32 s68, s68, 1
    s_waitcnt vmcnt(0)
    v_cmp_eq_u32 vcc, s27, v10
    s_cbranch_scc1 BGL_RDY
    s_mov_b32 s46, vcc_lo
    s_bitcmp1_b32 s46, s48
    s_cbranch_scc0 BGL_SP
    BGL_RDY:
    ''')
    grp_issue()
    a('s_waitcnt vmcnt(4)')
    publish()
    a(f'''
    s_lshl_b32 s49, 1, s48
    s_add_u32 s50, s50, 1
    s_cmp_lt_u32 s50, 8
    s_cbranch_scc1 BGL_LOOP
    s_waitcnt vmcnt(0)
    ''')
    publish()
    a(f'''
    s_lshr_b32 s34, s33, 1
    s_and_b32 s35, s33, 1
    s_cmp_eq_u32 s34, 0
    s_cselect_b32 s48, s12, s14
    s_cselect_b32 s49, s13, s15
    s_mov_b32 s50, 0x800000
    s_mov_b32 s51, 0x20000
    s_mov_b32 s37, {BOF_OFF}
    s_cselect_b32 s36, {AEF_OFF}, s37
    s_cselect_b32 s56, s41, s40
    s_cselect_b32 s57, 1, s40
    s_xor_b32 s37, s36, {AEF_OFF ^ BOF_OFF}
    ''')
    srd(a, 52, 20, 0x400000)
    a(f'''
    v_and_b32 v6, 31, v0
    v_lshrrev_b32 v7, 5, v0
    s_lshl_b32 s44, s40, 5
    v_add_u32 v8, s44, v6
    v_lshlrev_b32 v8, 12, v8
    v_lshl_add_u32 v8, v7, 4, v8
    s_lshl_b32 s44, s35, 10
    v_add_u32 v8, s44, v8
    s_lshl_b32 s44, s41, 16
    s_lshl_b32 s45, s35, 15
    s_add_u32 s44, s44, s45
    v_add_u32 v12, s44, v14
    s_cmp_eq_u32 s57, 0
    s_cselect_b32 s58, -2, -1
    s_cselect_b32 s59, -2, -1
    v_mov_b32 v10, 1
    v_mov_b32 v11, 0xbf803f80
    s_lshr_b32 s45, s41, 2
    s_lshl_b32 s45, s45, {FS+6}
    s_add_u32 s45, s45, {FLG_P1 + (48 << FS)}
    v_bfe_u32 v13, v0, 4, 1
    v_lshlrev_b32 v13, {FS+7}, v13
    v_and_b32 v9, 15, v0
    v_lshl_add_u32 v9, v9, {FS}, v13
    ''')
    NS = 8
    for i in range(NS):
        for r in range(4): a(f'v_mov_b32 v{16+12*i+r}, v11')
    for r in range(16): a(f'v_mov_b32 v{EXT+r}, 0')
    a.stamp(4)
    if os.environ.get('NOFNET'): a('s_branch K_END')
    if os.environ.get('BGPRIO'): a('s_setprio ' + os.environ['BGPRIO'])
    poll(a, 'BG2', 9, 13, 's45')
    def fl(ks, ext):
        b = 16 + 12*(ks % NS)
        a(f'''
        s_mov_b64 exec, s[58:59]
        buffer_load_dwordx4 {vr(b,4)}, v8, s[48:51], 0 offen offset:{32*ks}
        s_mov_b64 exec, -1
        buffer_load_dwordx4 {vr(b+4,4)}, v12, s[28:31], s36 offen offset:{1024*(ks%4)}{SC1}
        ''')
        if ext: a(f'buffer_load_dwordx4 {vr(b+8,4)}, v12, s[28:31], s37 offen offset:{1024*(ks%4)}{SC1}')
        if ks % 4 == 3: a('s_add_u32 s36, s36, 4096\ns_add_u32 s37, s37, 4096')
    def floop(ext):
        per = 3 if ext else 2
        for ks in range(NS): fl(ks, ext)
        for ks in range(32):
            b = 16 + 12*(ks % NS)
            rem = min(32, ks+NS) - ks - 1
            a(f's_waitcnt vmcnt({per*rem})')
            a(f'v_mfma_f32_32x32x16_bf16 {vr(ACC,16)}, {vr(b,4)}, {vr(b+4,4)}, {"0" if ks == 0 else vr(ACC,16)}')
            if ext: a(f'v_mfma_f32_32x32x16_bf16 {vr(EXT,16)}, {vr(b,4)}, {vr(b+8,4)}, {vr(EXT,16)}')
            if ks+NS < 32: fl(ks+NS, ext)
    a('s_cmp_eq_u32 s56, 0\ns_cbranch_scc1 BG_FEXT')
    floop(False)
    a('s_branch BG_FDONE\nBG_FEXT:')
    floop(True)
    a('BG_FDONE:')
    if not (P1PROF and ATT): a.stamp(5)
    a(f'''
    s_lshl_b32 s44, s41, 7
    v_lshl_add_u32 v12, v6, 2, s44
    s_mov_b32 s44, {AE1K_OFF}
    v_mov_b32 v13, 1024
    buffer_load_dword v16, v12, s[28:31], s44 offen{SC1}
    buffer_load_dword v17, v13, s[28:31], s44 offen{SC1}
    s_mul_i32 s44, s33, 3072
    s_add_u32 s44, s44, {FX}
    s_lshl_b32 s45, s35, 7
    s_lshl_b32 s46, s34, 8
    s_add_u32 s45, s45, s46
    s_add_u32 s45, s45, {FE}
    v_lshlrev_b32 v3, 6, v7
    v_add_u32 v3, s45, v3
    v_lshl_add_u32 v4, v6, 2, s45
    s_nop 3
    ''')
    for g in range(4):
        a(f'''
        s_sub_u32 s46, {g+3}, s33
        s_and_b32 s46, s46, 3
        s_cmp_eq_u32 s46, 3
        s_cselect_b64 exec, 0, -1
        s_lshl_b32 s46, s46, 10
        s_add_u32 s46, s46, s44
        v_add_u32 v2, s46, v14
        ds_write_b128 v2, {vr(ACC+4*g,4)}
        ''')
    a(f'''
    s_mov_b64 exec, -1
    s_cmp_eq_u32 s34, 0
    s_cbranch_scc0 BG_XQ
    s_mov_b32 exec_lo, 1
    s_mov_b32 exec_hi, 1
    ''')
    for i in range(4): a(f'ds_write_b128 v3, {vr(EXT+4*i,4)} offset:{16*i}')
    a(f'''
    s_branch BG_XD
    BG_XQ:
    s_mov_b32 exec_hi, 0
    ds_write_b32 v4, v{EXT}
    BG_XD:
    s_mov_b64 exec, 1
    s_waitcnt lgkmcnt(0)
    ds_add_u32 v1, v10 offset:12
    s_mov_b64 exec, -1
    s_cmp_lt_u32 s33, 2
    s_cbranch_scc1 BG_M01
    s_cmp_eq_u32 s33, 2
    s_cbranch_scc1 BG_M2
    ''')
    def mv(g):
        for i in range(4): a(f'v_mov_b32 v{20+i}, v{ACC+4*g+i}')
    mv(3); a('s_branch BG_MD\nBG_M2:'); mv(2); a('s_branch BG_MD\nBG_M01:\ns_cmp_eq_u32 s33, 0\ns_cbranch_scc1 BG_M0'); mv(1); a('s_branch BG_MD\nBG_M0:'); mv(0)
    a('BG_MD:')
    for j in range(1, 4):
        a(f'''
        s_add_u32 s46, s33, {j}
        s_and_b32 s46, s46, 3
        s_mul_i32 s46, s46, 3072
        s_add_u32 s46, s46, {FX + (3-j)*1024}
        v_add_u32 v{40+j}, s46, v14
        ''')
    a(f'''
    s_lshl_b32 s46, s33, 4
    s_add_u32 s46, s46, {FE}
    v_lshlrev_b32 v3, 6, v7
    v_add_u32 v3, s46, v3
    v_lshlrev_b32 v4, 2, v6
    v_add_u32 v4, {FE+256}, v4
    BG_FSPIN:
    ds_read_b32 v5, v1 offset:12
    s_waitcnt lgkmcnt(0)
    v_readfirstlane_b32 s46, v5
    s_cmp_ge_u32 s46, 4
    s_cbranch_scc0 BG_FSPIN
    ds_read_b128 v[24:27], v41
    ds_read_b128 v[28:31], v42
    ds_read_b128 v[32:35], v43
    ds_read_b128 v[44:47], v3
    ds_read_b128 v[48:51], v3 offset:128
    ds_read_b32 v52, v4
    ds_read_b32 v53, v4 offset:128
    s_and_b32 s46, s33, 1
    s_cmp_eq_u32 s46, 0
    s_cselect_b64 s[60:61], -1, 0
    s_cmp_eq_u32 s34, 0
    s_cselect_b64 s[62:63], -1, 0
    s_cmp_eq_u32 s41, 0
    s_cselect_b32 s64, 1, 0
    s_mov_b32 s65, s64
    s_or_b32 s46, s40, s33
    s_cmp_eq_u32 s46, 0
    s_cselect_b32 s66, -1, 0
    s_mov_b32 s67, 0
    s_lshl_b32 s46, s41, 5
    v_add_u32 v2, s46, v6
    v_sub_u32 v3, 512, v2
    v_mov_b32 v4, 256
    v_cndmask_b32 v3, v3, v4, s[64:65]
    v_lshlrev_b32 v2, 1, v2
    v_lshlrev_b32 v3, 1, v3
    v_add_u32 v2, 1024, v2
    v_add_u32 v3, 1024, v3
    s_lshl_b32 s46, s40, 5
    s_lshl_b32 s47, s33, 3
    s_add_u32 s46, s46, s47
    v_lshl_add_u32 v4, v7, 2, s46
    v_sub_u32 v5, {2048-3}, v4
    v_lshl_add_u32 v8, v4, 11, v2
    v_lshl_add_u32 v9, v4, 11, v3
    v_lshl_add_u32 v10, v5, 11, v2
    v_lshl_add_u32 v11, v5, 11, v3
    v_mov_b32 v4, {1024-3}
    v_cndmask_b32 v5, v5, v4, s[66:67]
    v_lshl_add_u32 v12, v5, 11, v2
    v_lshl_add_u32 v13, v5, 11, v3
    s_waitcnt vmcnt(0) lgkmcnt(0)
    ''')
    for i in range(4):
        a(f'''
        v_cndmask_b32 v36, v{32+i}, v{24+i}, s[60:61]
        v_cndmask_b32 v37, v{24+i}, v{32+i}, s[60:61]
        v_add_f32 v36, v36, v{20+i}
        v_add_f32 v37, v37, v{28+i}
        v_cndmask_b32 v{20+i}, v37, v36, s[62:63]
        v_cndmask_b32 v{24+i}, v36, v37, s[62:63]
        v_add_f32 v{44+i}, v{44+i}, v{48+i}
        ''')
        op = 'v_add_f32' if i % 2 == 0 else 'v_sub_f32'
        a(f'{op} v{20+i}, v{20+i}, v16\n{op} v{44+i}, v{44+i}, v17')
    a(f'''
    v_add_f32 v52, v52, v53
    v_add_f32 v52, v52, v16
    v_add_f32 v53, v24, v17
    v_cndmask_b32 v24, v24, 0, s[66:67]
    v_cndmask_b32 v53, v52, v53, s[64:65]
    ''')
    for i in range(4):
        t0 = 56 + 8*i
        a(f'''
        v_cndmask_b32 v{24+i}, v{24+i}, 0, s[64:65]
        v_sub_f32 v{t0}, v{20+i}, v{24+i}
        v_add_f32 v{t0+1}, v{20+i}, v{24+i}
        v_cndmask_b32 v{t0+2}, v{t0+1}, v{44+i}, s[64:65]
        v_cndmask_b32 v{t0+3}, v{t0}, v{44+i}, s[64:65]
        ''')
        if i == 0:
            a(f'''
            v_cndmask_b32 v{t0+1}, v{t0+1}, v52, s[66:67]
            v_cndmask_b32 v{t0+3}, v{t0+3}, v53, s[66:67]
            ''')
        a(f'''
        v_cvt_pk_bf16_f32 v{t0+4}, v{t0}, v{t0+1}
        v_cvt_pk_bf16_f32 v{t0+5}, v{t0+2}, v{t0+3}
        s_mov_b32 s46, {i*2048}
        s_mov_b32 s47, {(3-i)*2048}
        buffer_store_short v{t0+4}, v8, s[52:55], s46 offen
        buffer_store_short_d16_hi v{t0+4}, v{12 if i == 0 else 10}, s[52:55], s47 offen
        buffer_store_short v{t0+5}, v9, s[52:55], s46 offen
        buffer_store_short_d16_hi v{t0+5}, v{13 if i == 0 else 11}, s[52:55], s47 offen
        ''')

def fused():
    a = Asm()
    a('s_cmp_ge_u32 s2, 256\ns_cbranch_scc1 K_END')
    a.stamp(0)
    a(f'''
    s_load_dwordx8 s[4:11], s[0:1], 0
    s_load_dwordx8 s[12:19], s[0:1], 32
    s_load_dwordx4 s[20:23], s[0:1], 64
    s_load_dwordx2 s[24:25], s[0:1], 80
    v_lshrrev_b32 v1, 6, v0
    v_and_b32 v0, 63, v0
    s_and_b32 s44, s2, 7
    v_readfirstlane_b32 s26, v1
    s_lshr_b32 s45, s2, 3
    s_and_b32 s46, s45, 7
    s_lshr_b32 s41, s45, 3
    s_and_b32 s40, s44, 1
    s_lshl_b32 s40, s40, 3
    s_add_u32 s40, s40, s46
    s_lshr_b32 s42, s44, 1
    s_lshl_b32 s43, s41, 1
    s_and_b32 s43, s43, {ROTC}
    s_and_b32 s47, s46, {ROTR}
    s_add_u32 s43, s43, s47
    s_and_b32 s43, s43, {ROT}
    s_cmp_ge_u32 s26, 8
    s_cbranch_scc1 K2_BG
    ''')
    phase1(a)
    a('''
    s_and_b32 s40, s2, 7
    s_lshr_b32 s41, s2, 3
    s_lshl_b32 s40, s40, 2
    s_lshr_b32 s45, s41, 3
    s_add_u32 s40, s40, s45
    s_and_b32 s41, s41, 7
    ''')
    attention(a)
    oproj(a)
    if PROF: a('s_waitcnt vmcnt(0)')
    a.flush(0, 26)
    a('s_endpgm')
    a('.p2align 8')
    background(a)
    if PROF: a('s_waitcnt vmcnt(0)')
    a.stamp(6); a.flush(0, 26, grp=1)
    a('K_END:')
    a('s_endpgm')
    return header(NAME) + a.text(), kd(NAME, 160, 100)

if __name__ == '__main__':
    import sys
    c, d = fused()
    out = '; @launch grid=(256,1,1) block=(768,1,1) lds=163840\n.amdgcn_target "amdgcn-amd-amdhsa--gfx950"\n.text\n' + c + '.section .rodata,"a"\n' + d
    open(sys.argv[1], 'w').write(out)
```

```python
QF_OFF   = 0x000000
KV_OFF   = 0x200000
AEF_OFF  = 0x600000
BOF_OFF  = 0x680000
AE1K_OFF = 0x700000
OF_OFF   = 0x800000
WS_USED  = 0xA00000
QSCALE = 0.25*1.4426950408889634
import struct
def f2u(x): return struct.unpack('<I', struct.pack('<f', x))[0]

import os
PROF = bool(int(os.environ.get('PROF', '0')))
PROF_OFF = 0x1000000
class Asm:
    def __init__(self): self.L = []
    def stamp(self, i):
        if not PROF: return
        if i == 0:
            for r in range(76, 94): self(f's_mov_b32 s{r}, 0')
            self('s_memrealtime s[70:71]')
        self(f's_mem{"real" if os.environ.get("RT") else ""}time s[{74+2*i}:{75+2*i}]')
    def flush(self, kidx, wave_sreg, vt=1, grp=0):
        if not PROF: return
        if os.environ.get('DBGPROF'):
            base = 2 if grp == 0 else 12
            self('s_memrealtime s[72:73]')
            self('s_load_dwordx2 s[94:95], s[0:1], 72')
            self('s_mov_b64 exec, -1')
            self('s_waitcnt lgkmcnt(0)')
            self(f'v_mov_b32 v{vt}, 0')
            self('s_not_b32 s70, s70')
            sel = [70, 78, 80, 82, 84, 86, 88, 90, 92, 72] if grp == 0 else [80, 82, 84, 72]
            for i, r in enumerate(sel): self(f'v_writelane_b32 v{vt}, s{r}, {i}')
            self(f'v_mbcnt_lo_u32_b32 v{vt+1}, -1, 0')
            self(f'v_lshlrev_b32 v{vt+1}, 2, v{vt+1}')
            self(f's_mov_b64 exec, {(1 << len(sel)) - 1}')
            self(f'global_atomic_umax v{vt+1}, v{vt}, s[94:95] offset:{base*4} sc1')
            return
        self('s_memrealtime s[72:73]')
        self('s_load_dwordx2 s[94:95], s[0:1], 80')
        self('s_mov_b64 exec, -1')
        self('s_waitcnt lgkmcnt(0)')
        self(f'v_mov_b32 v{vt}, 0')
        self(f'v_writelane_b32 v{vt}, s70, 0')
        self(f'v_writelane_b32 v{vt}, s72, 1')
        for i in range(10): self(f'v_writelane_b32 v{vt}, s{74+2*i}, {2+i}')
        self(f's_lshl_b32 s70, s2, 4')
        self(f's_add_u32 s70, s70, s{wave_sreg}')
        self(f's_add_u32 s70, s70, {kidx*4096}')
        self(f's_lshl_b32 s70, s70, 6')
        self(f's_add_u32 s70, s70, {PROF_OFF}')
        self(f'v_mbcnt_lo_u32_b32 v{vt+1}, -1, 0')
        self(f'v_lshlrev_b32 v{vt+1}, 2, v{vt+1}')
        self(f'v_add_u32 v{vt+1}, s70, v{vt+1}')
        self('s_mov_b64 exec, 0xffff')
        self(f'global_store_dword v{vt+1}, v{vt}, s[94:95]')
    def __call__(self, s):
        for l in s.strip('\n').split('\n'):
            l = l.strip()
            if l: self.L.append(l if l.endswith(':') else '    ' + l)
    def label(self, n): self.L.append(n + ':')
    def text(self): return '\n'.join(self.L) + '\n'

def vr(a, n): return f'v[{a}:{a+n-1}]' if n > 1 else f'v{a}'
def sr(a, n): return f's[{a}:{a+n-1}]' if n > 1 else f's{a}'

def header(name):
    return f'.globl {name}\n.p2align 8\n.type {name},@function\n{name}:\n'
def kd(name, vgpr, sgpr=96):
    acc = (vgpr + 3)//4*4
    return f'''.p2align 6
.amdhsa_kernel {name}
  .amdhsa_next_free_vgpr {vgpr}
  .amdhsa_next_free_sgpr {sgpr}
  .amdhsa_accum_offset {acc}
  .amdhsa_group_segment_fixed_size 0
  .amdhsa_kernarg_size 88
  .amdhsa_user_sgpr_count 2
  .amdhsa_user_sgpr_kernarg_segment_ptr 1
  .amdhsa_system_sgpr_workgroup_id_x 1
.end_amdhsa_kernel
'''
```

```python
from common import *
NAME = 'concat_heads__mha_block__spectral_fnet__prompt_kernel'
FLG_P1 = 0x710000
FLG_O  = 0x720000
TS = 2064
SCR = 64*TS
MSK, BADF, CNT_F = SCR, SCR+8, SCR+12
CMB = SCR+256
FX = CMB+18432
FE = FX+12288
BIAS = float(os.environ.get('BIAS', '88'))
SPIN_MAX = 1 << 16
KA, VA, IDX, VB = 1, 2, 3, 47
QA, QB = 4, 8
KF = 12
VF = [[20, 24], [28, 32]]
SA, SB, OA, OB, MA, MB = 48, 64, 80, 96, 112, 128
SC1 = ' sc1'
FST = os.environ.get('FST', '')
OST = os.environ.get('OST', '')
TOUCH = int(os.environ.get('TOUCH', '0'))
FS = int(os.environ.get('FS', '6'))
OFS = int(os.environ.get('OFS', '3'))
def _seq():
    order = [NB, 0, NB+1] + list(range(1, NB)) + list(range(NB+2, 16))
    assert sorted(order) == list(range(16))
    return [sum(g << (4*k) for k, g in enumerate(order[p::2])) for p in range(2)]
LOOPPROF = int(os.environ.get('LOOPPROF', '0'))
ROTC = int(os.environ.get('ROTC', '7'))
ROTR = int(os.environ.get('ROTR', '7'))
NB = int(os.environ.get('NB', '3'))
OOB = int(os.environ.get('OOB', '1'))
ROT = int(os.environ.get('ROT', '6'))
P1PROF = bool(int(os.environ.get('P1PROF', '0')))

SEQ = _seq()
def srd(a, d, lo, size):
    a(f's_mov_b32 s{d}, s{lo}\ns_mov_b32 s{d+1}, s{lo+1}\ns_mov_b32 s{d+2}, {size}\ns_mov_b32 s{d+3}, 0x20000')

def poll(a, tag, vaddr, vt, soff, mask=None):
    if mask: a(f's_mov_b64 exec, {mask}')
    a(f'''
    s_mov_b32 s68, {SPIN_MAX}
    {tag}_SP:
    {os.environ.get('POLLBACK2', '')}
    buffer_load_dword v{vt}, v{vaddr}, s[28:31], {soff} offen sc1
    s_sub_u32 s68, s68, 1
    s_waitcnt vmcnt(0)
    v_cmp_ne_u32 vcc, s27, v{vt}
    s_cbranch_scc1 {tag}_OK
    s_cbranch_vccnz {tag}_SP
    {tag}_OK:
    ''')
    if mask: a('s_mov_b64 exec, -1')

ATT = True
def p1_loader(a):
    a('''
    s_lshl_b32 s44, s40, 7
    s_mov_b32 s45, 1
    s_movk_i32 s46, 3072
    s_lshl_b32 s47, s42, 10
    s_lshl_b32 s48, s41, 8
    s_add_u32 s47, s47, s48
    s_cmp_lg_u32 s42, 3
    s_cbranch_scc1 K1_NOTF
    s_lshl_b32 s44, s40, 6
    s_movk_i32 s46, 1024
    s_and_b32 s47, s48, 256
    s_cmp_lt_u32 s33, 2
    s_cbranch_scc1 K1_NOTF
    s_sub_u32 s44, 2112, s44
    s_mov_b32 s45, -1
    K1_NOTF:
    s_lshl_b32 s49, s33, 5
    v_lshrrev_b32 v6, 3, v0
    v_add_u32 v6, s49, v6
    v_and_b32 v8, 7, v0
    v_mov_b32 v11, 1024
    s_movk_i32 s50, 2048
    ''')
    for j in range(4):
        a(f'''
        v_add_u32 v7, {8*j}, v6
        v_mul_i32_i24 v9, s45, v7
        v_add_u32 v9, s44, v9
        v_cmp_eq_u32 vcc, s50, v9
        v_bfe_u32 v10, v7, 1, 3
        v_xor_b32 v10, v8, v10
        v_cndmask_b32 v9, v9, v11, vcc
        v_lshlrev_b32 v10, 4, v10
        v_lshl_add_u32 v{16+j}, v9, 10, v10
        ''')
    a('''
    v_lshrrev_b32 v6, 4, v0
    s_lshl_b32 s49, s33, 4
    v_add_u32 v7, s49, v6
    v_mul_lo_u32 v7, v7, s46
    v_and_b32 v8, 15, v0
    v_lshlrev_b32 v6, 2, v6
    v_xor_b32 v8, v8, v6
    v_lshlrev_b32 v8, 4, v8
    v_add3_u32 v20, v7, v8, s47
    s_lshl_b32 s49, s46, 2
    v_add_u32 v21, s49, v20
    v_add_u32 v22, s49, v21
    v_add_u32 v23, s49, v22
    s_lshl_b32 s51, s33, 12
    s_lshl_b32 s52, s46, 6
    s_waitcnt lgkmcnt(0)
    s_cmp_eq_u32 s42, 3
    s_cselect_b32 s56, s10, s4
    s_cselect_b32 s57, s11, s5
    s_mov_b32 s58, 0x200000
    s_mov_b32 s59, 0x20000
    s_mov_b32 s38, 0x180000
    s_cselect_b32 s38, 0x80000, s38
    s_cselect_b32 s53, 1, 0
    s_cmp_lt_u32 s41, 2
    s_cselect_b32 s36, s16, s18
    s_cselect_b32 s37, s17, s19
    s_cmp_eq_u32 s53, 1
    s_cselect_b32 s36, s36, s6
    s_cselect_b32 s37, s37, s7
    s_mov_b32 s39, 0x20000
    ''')
    def issue(c):
        slot = c % 4
        a(f'''
        s_add_u32 s54, s43, {c}
        s_and_b32 s54, s54, 7
        s_lshl_b32 s55, s54, 7
        s_mul_i32 s54, s54, s52
        ''')
        for j in range(4):
            a(f'''
            s_add_u32 m0, s51, {slot*32768+j*1024}
            s_nop 0
            buffer_load_dwordx4 v{16+j}, s[56:59], s55 offen lds
            s_add_u32 m0, s51, {slot*32768+16384+j*1024}
            s_nop 0
            buffer_load_dwordx4 v{20+j}, s[36:39], s54 offen lds
            ''')
    a(f'''
    s_add_u32 s48, s2, s33
    s_cmp_lg_u32 s48, 0
    s_cbranch_scc1 BG_NONONCE
    s_or_b32 s60, s60, 1
    v_mov_b32 v8, s60
    s_mov_b64 exec, 1
    global_store_dword v2, v8, s[22:23] sc1
    s_mov_b64 exec, -1
    BG_NONONCE:
    ''')
    a.stamp(7)
    issue(0); issue(1)
    a(f'''
    s_lshl_b32 s49, s33, 4
    v_add_u32 v8, s49, v0
    v_and_b32 v9, 3, v0
    v_lshlrev_b32 v9, 6, v9
    v_lshl_add_u32 v24, v8, 8, v9
    v_add_u32 v25, 0x10000, v24
    v_and_b32 v11, 1, v0
    v_lshlrev_b32 v26, 15, v11
    v_add_u32 v26, 0x3f80, v26
    s_cmp_eq_u32 s41, 2
    s_cselect_b32 s53, s53, 0
    ''')
    srd(a, 28, 24, WS_USED)
    for c in range(8):
        slot = c % 4
        a(f'''
        s_waitcnt vmcnt({8 if c < 7 else 0})
        s_cmp_eq_u32 s53, 0
        s_cbranch_scc1 K1_NP{c}
        s_mov_b64 exec, 0xffff
        ds_write_b16 v{25 if slot>=2 else 24}, v26 offset:{(slot&1)*32768+16384}
        s_mov_b64 exec, -1
        s_waitcnt lgkmcnt(0)
        K1_NP{c}:
        s_barrier
        ''')
        if c + 2 < 8: issue(c+2)

def phase1(a):
    a(f'''
    s_getpc_b64 s[44:45]
    PC_HERE:
    s_sub_u32 s44, s44, PC_HERE-{NAME}
    s_subb_u32 s45, s45, 0
    v_lshlrev_b32 v6, 7, v0
    s_lshl_b32 s47, s26, 13
    v_add_u32 v6, s47, v6
    v_min_u32 v6, K_END-{NAME}, v6
    global_load_dword v112, v6, s[44:45]
    ''')
    a(f'''
    s_and_b32 s57, s26, 1
    s_lshr_b32 s58, s26, 1
    v_and_b32 v6, 31, v0
    v_lshrrev_b32 v7, 5, v0
    s_lshl_b32 s49, s57, 5
    v_add_u32 v8, s49, v6
    v_bfe_u32 v9, v8, 1, 3
    v_xor_b32 v9, v9, v7
    ''')
    for ks in range(4):
        a(f'''
        v_xor_b32 v10, {2*ks}, v9
        v_lshlrev_b32 v10, 4, v10
        v_lshl_add_u32 v{96+ks}, v8, 7, v10
        v_add_u32 v{100+ks}, 0x10000, v{96+ks}
        ''')
    a('''
    v_bfe_u32 v8, v0, 2, 2
    v_lshl_add_u32 v9, v7, 3, v8
    v_bfe_u32 v10, v0, 4, 1
    v_lshlrev_b32 v10, 1, v10
    v_bfe_u32 v11, v0, 1, 1
    v_add_u32 v10, v10, v11
    s_lshl_b32 s49, s58, 2
    v_add_u32 v10, s49, v10
    v_lshlrev_b32 v8, 2, v8
    v_xor_b32 v10, v10, v8
    v_lshlrev_b32 v10, 4, v10
    v_lshl_add_u32 v10, v9, 8, v10
    v_and_b32 v11, 1, v0
    v_lshl_add_u32 v104, v11, 3, v10
    v_add_u32 v105, 0x10000, v104
    s_lshl_b32 s59, s42, 2
    s_add_u32 s59, s59, s41
    s_cmp_eq_u32 s59, 14
    s_cselect_b32 s59, 1, 0
    s_waitcnt lgkmcnt(0)
    s_mov_b32 s28, s24
    s_mov_b32 s29, s25
    s_mov_b32 s30, 10485760
    s_mov_b32 s31, 0x20000
    ''')
    if TOUCH:
        a(f'''
        s_lshl_b32 s60, s41, 3
        s_lshl_b32 s61, s58, 1
        s_add_u32 s60, s60, s61
        s_lshl_b32 s60, s60, 6
        s_lshl_b32 s61, s40, 2
        s_add_u32 s61, s61, s57
        s_add_u32 s60, s60, s61
        s_lshl_b32 s61, s60, 10
        s_lshl_b32 s60, s60, 11
        s_add_u32 s60, s60, {KV_OFF}
        s_cmp_eq_u32 s42, 2
        s_cselect_b32 s62, 1024, 0
        s_add_u32 s60, s60, s62
        s_cmp_eq_u32 s42, 0
        s_cselect_b32 s60, s61, s60
        s_cmp_eq_u32 s42, 3
        s_cselect_b32 s60, {FLG_O + 0x10000}, s60
        v_mov_b32 v113, 0
        s_mov_b32 s61, {FLG_O + 0x10000}
        s_mov_b32 s62, {OF_OFF + 0x200000}
        s_mov_b64 exec, 1
        buffer_load_dword v114, v113, s[28:31], s60 offen
        buffer_load_dword v115, v113, s[28:31], s61 offen
        s_mov_b64 exec, -1
        ''')
    a('''
    s_cmp_ge_u32 s42, 2
    s_cbranch_scc1 K1_LOOP_XW
    ''')
    def reads(slot, ks, fs):
        b = 16 + 12*fs
        hi = slot >= 2
        so = (slot & 1)*32768
        xa = (100 if hi else 96) + ks
        wa = 105 if hi else 104
        a(f'''
        ds_read_b128 {vr(b,4)}, v{xa} offset:{so}
        ds_read_b64_tr_b16 {vr(b+8,2)}, v{wa} offset:{so+16384+ks*4096}
        ds_read_b64_tr_b16 {vr(b+10,2)}, v{wa} offset:{so+16384+ks*4096+1024}
        ds_read_b128 {vr(b+4,4)}, v{xa} offset:{so+8192}
        ''')
    def mfmas(wx, fs, first):
        b = 16 + 12*fs
        for T in range(2):
            d = vr(64+16*T, 16); c = '0' if first else d
            x = vr(b+4*T, 4); w = vr(b+8, 4)
            a(f'v_mfma_f32_32x32x16_bf16 {d}, {w if wx else x}, {x if wx else w}, {c}')
    def loop(wx):
        def enter(c):
            a('s_barrier')
            if c == 0: a.stamp(2)
            if P1PROF and c in (1,2,3,4,6): a.stamp({1:5,2:6,3:7,4:8,6:9}[c])
        enter(0)
        reads(0, 0, 0); reads(0, 1, 1)
        for i in range(32):
            n = i + 2
            if n < 32:
                if n % 4 == 0: enter(n // 4)
                reads((n // 4) % 4, n % 4, n % 4)
            a(f's_waitcnt lgkmcnt({8 if n < 32 else (4 if n == 32 else 0)})')
            mfmas(wx, i % 4, i == 0)
        a.stamp(3)
    tileidx = '''
    s_lshl_b32 s60, s41, 3
    s_lshl_b32 s61, s58, 1
    s_add_u32 s60, s60, s61
    s_lshl_b32 s60, s60, 6
    s_lshl_b32 s61, s40, 2
    s_add_u32 s61, s61, s57
    s_add_u32 s60, s60, s61
    '''
    def pack_store(offs):
        for T in range(2):
            for hh in range(2):
                b = 64 + 16*T + 8*hh
                for i in range(4): a(f'v_cvt_pk_bf16_f32 v{16+(2*T+hh)*4+i}, v{b+2*i}, v{b+2*i+1}')
                a(f's_add_u32 s61, s60, {offs(T, hh)}')
                a(f'buffer_store_dwordx4 {vr(16+(2*T+hh)*4,4)}, v1, s[28:31], s61 offen{SC1}')
    loop(True)
    a(tileidx)
    a(f'''
    s_cmp_eq_u32 s42, 0
    s_cbranch_scc0 K1_EPI_K
    s_lshl_b32 s60, s60, 10
    v_lshlrev_b32 v1, 4, v0
    s_mov_b32 s62, {f2u(QSCALE)}
    s_nop 7
    ''')
    for r in range(32): a(f'v_mul_f32 v{64+r}, s62, v{64+r}')
    pack_store(lambda T, hh: QF_OFF + hh*65536 + T*2048)
    a(f'''
    s_branch K1_DONE
    K1_EPI_K:
    s_lshl_b32 s60, s60, 11
    v_and_b32 v1, 0x33, v0
    v_bfe_u32 v2, v0, 2, 1
    v_bfe_u32 v3, v0, 3, 1
    v_lshl_add_u32 v1, v2, 3, v1
    v_lshl_add_u32 v1, v3, 2, v1
    v_lshlrev_b32 v1, 4, v1
    s_nop 4
    ''')
    pack_store(lambda T, hh: KV_OFF + hh*131072 + T*4096)
    a('s_branch K1_DONE')
    a('K1_LOOP_XW:')
    loop(False)
    a('s_cmp_eq_u32 s42, 3\ns_cbranch_scc1 K1_EPI_F')
    a(tileidx)
    a(f'''
    s_lshl_b32 s60, s60, 11
    v_and_b32 v1, 15, v0
    v_lshlrev_b32 v1, 4, v1
    v_bfe_u32 v2, v0, 4, 1
    v_lshl_add_u32 v1, v2, 17, v1
    v_lshl_add_u32 v1, v7, 8, v1
    s_nop 1
    ''')
    pack_store(lambda T, f: KV_OFF + 1024 + f*512 + T*4096)
    a(f'''
    s_branch K1_DONE
    K1_EPI_F:
    s_cmp_lt_u32 s41, 2
    s_cselect_b32 s62, 1.0, -1.0
    s_mov_b32 s63, {BOF_OFF}
    s_cselect_b32 s63, {AEF_OFF}, s63
    v_mov_b32 v2, s62
    s_or_b32 s61, s40, s57
    s_cmp_eq_u32 s59, 0
    s_cbranch_scc1 K1_F1
    s_cmp_lg_u32 s58, 0
    s_cbranch_scc1 K1_F1
    v_cmp_eq_u32 vcc, 0, v6
    s_nop 1
    v_cndmask_b32 v2, v2, 1.0, vcc
    K1_F1:
    v_mov_b32 v3, v2
    s_cmp_lg_u32 s61, 0
    s_cbranch_scc1 K1_F2
    v_cmp_eq_u32 vcc, 0, v7
    s_nop 1
    v_cndmask_b32 v3, v3, 0, vcc
    s_lshl_b32 s64, s41, 7
    s_lshl_b32 s65, s58, 5
    s_add_u32 s64, s64, s65
    v_add_u32 v4, s64, v6
    v_lshlrev_b32 v5, 2, v4
    v_cmp_gt_u32 vcc, 257, v4
    s_mov_b32 vcc_hi, 0
    s_mov_b32 s65, {AE1K_OFF}
    s_nop 7
    s_and_saveexec_b64 s[66:67], vcc
    s_cbranch_execz K1_F3
    buffer_store_dword v80, v5, s[28:31], s65 offen{SC1}
    K1_F3:
    s_mov_b64 exec, s[66:67]
    K1_F2:
    s_and_b32 s60, s41, 1
    s_lshl_b32 s60, s60, 2
    s_add_u32 s60, s60, s58
    s_lshl_b32 s60, s60, 6
    s_lshl_b32 s61, s40, 2
    s_lshl_b32 s64, s57, 1
    s_add_u32 s61, s61, s64
    s_add_u32 s60, s60, s61
    s_lshl_b32 s60, s60, 10
    s_add_u32 s60, s60, s63
    v_lshlrev_b32 v1, 4, v0
    s_nop 4
    ''')
    for r in range(16): a(f'v_fma_f32 v{64+r}, v{80+r}, v{3 if r == 0 else 2}, v{64+r}')
    for f in range(2):
        b = 64 + 8*f
        for i in range(4): a(f'v_cvt_pk_bf16_f32 v{16+f*4+i}, v{b+2*i}, v{b+2*i+1}')
    a('s_nop 1')
    for f in range(2):
        a(f'v_permlane32_swap_b32 v{16+f*4}, v{18+f*4}')
        a(f'v_permlane32_swap_b32 v{17+f*4}, v{19+f*4}')
    a('s_nop 1')
    for f in range(2):
        a(f'buffer_store_dwordx4 {vr(16+f*4,4)}, v1, s[28:31], s60 offen offset:{f*1024}{SC1}')
    a('K1_DONE:')

def attention(a):
    a(f'''
    v_lshlrev_b32 v36, 4, v0
    s_and_b32 s33, s26, 3
    s_lshr_b32 s34, s26, 2
    s_lshl_b32 s35, s41, 3
    s_lshl_b32 s36, s33, 1
    s_add_u32 s35, s35, s36
    s_cmp_eq_u32 s34, 0
    s_cselect_b32 s38, {NB}, 0
    s_cselect_b32 s39, 16, {NB}
    s_mul_i32 s37, s38, {4*TS}
    v_add_u32 v{KA}, s37, v36
    v_and_b32 v37, 15, v0
    v_lshrrev_b32 v38, 5, v0
    v_lshlrev_b32 v37, 4, v37
    v_lshl_add_u32 v37, v38, 8, v37
    v_and_b32 v39, 16, v0
    v_cmp_ne_u32 vcc, 0, v39
    v_mov_b32 v40, {0x40000 if OOB else 0}
    v_and_b32 v39, 27, v0
    v_cndmask_b32 v40, 0, v40, vcc
    v_add_u32 v37, v37, v40
    v_cmp_eq_u32 vcc, 16, v39
    v_add_u32 v38, 512, v37
    v_mov_b32 v40, 1024
    s_add_u32 s37, s37, 1024
    v_cndmask_b32 v37, v37, v40, vcc
    v_cndmask_b32 v38, v38, v40, vcc
    v_add_u32 v{VA}, s37, v37
    v_add_u32 v{VB}, s37, v38
    v_mov_b32 v{IDX}, 0xdddddddd
    s_mov_b32 s42, 0
    s_mov_b32 s32, 0
    s_lshl_b32 s36, s33, 11
    s_add_u32 s36, s36, {CMB}
    v_add_u32 v41, s36, v36
    v_mov_b32 v46, {MSK}
    ''')
    def zero_acc():
        for r in range(16):
            a(f'v_mov_b32 v{OA+r}, 0'); a(f'v_mov_b32 v{OB+r}, 0')
        for r in range(4): a(f'v_mov_b32 v{VF[1][1]+r}, 0')
    zero_acc()
    a('s_waitcnt vmcnt(0)')
    a.stamp(4)
    a('s_barrier')
    a('s_barrier')
    if not (P1PROF and ATT): a.stamp(5)
    a(f'''
    ds_read_b128 {vr(QA,4)}, v41
    ds_read_b128 {vr(QB,4)}, v41 offset:1024
    ds_read_b128 {vr(KF,4)}, v36
    ds_read_b32 v44, v46 offset:16
    s_cmp_lg_u32 s34, 0
    s_cbranch_scc1 K2_NOPRIO
    s_setprio 1
    K2_NOPRIO:
    s_waitcnt lgkmcnt(0)
    v_mfma_f32_32x32x16_bf16 {vr(SA,16)}, {vr(KF,4)}, {vr(QA,4)}, 0
    v_mfma_f32_32x32x16_bf16 {vr(SB,16)}, {vr(KF,4)}, {vr(QB,4)}, 0
    v_readfirstlane_b32 s27, v44
    s_nop 9
    ''')
    def rowmax(S, dst, acc=False):
        if not acc:
            a(f'v_max3_f32 v{dst}, v{S}, v{S+1}, v{S+2}')
            for i in range(3, 15, 2): a(f'v_max3_f32 v{dst}, v{dst}, v{S+i}, v{S+i+1}')
            a(f'v_max_f32 v{dst}, v{dst}, v{S+15}')
        else:
            for i in range(0, 16, 2): a(f'v_max3_f32 v{dst}, v{dst}, v{S+i}, v{S+i+1}')
    def xhalf(r, t):
        a(f'''
        v_mov_b32 v{t}, v{r}
        s_nop 1
        v_permlane32_swap_b32 v{r}, v{t}
        s_nop 1
        v_max_f32 v{r}, v{r}, v{t}
        ''')
    rowmax(SA, 41); rowmax(SB, 42); xhalf(41, 43); xhalf(42, 44)
    a(f'''
    v_mov_b32 v43, {f2u(-BIAS)}
    v_sub_f32 v41, v43, v41
    v_sub_f32 v42, v43, v42
    K2_RESTART:
    ds_read_b128 {vr(KF,4)}, v{KA}
    ds_read_b128 {vr(VF[0][0],4)}, v{VA}
    ds_read_b128 {vr(VF[0][1],4)}, v{VB}
    ''')
    for r in range(16):
        a(f'v_mov_b32 v{MA+r}, v41'); a(f'v_mov_b32 v{MB+r}, v42')
    for r in range(8, 16): a(f'v_mov_b32 v{SB+r}, 0')
    a(f'''
    s_add_u32 s43, s38, 1
    s_waitcnt lgkmcnt(0)
    v_mfma_f32_32x32x16_bf16 {vr(SA,16)}, {vr(KF,4)}, {vr(QA,4)}, {vr(MA,16)}
    s_nop 10
    ''')
    if LOOPPROF: a.stamp(1)
    elif not (P1PROF and ATT): a.stamp(6)
    a(f'''
    s_branch K2_LOOP
    K2_SPIN:
    ds_read_b64 v[44:45], v46
    s_waitcnt lgkmcnt(0)
    v_and_b32 v44, v44, v45
    s_nop 0
    v_readfirstlane_b32 s32, v44
    s_bitset1_b32 s32, s39
    s_bitcmp1_b32 s32, s43
    s_cbranch_scc0 K2_SPIN
    s_branch K2_READY
    K2_LOOP:
    ''')
    def ex(S, lo, hi):
        for i in range(lo, hi): a(f'v_exp_f32 v{S+i}, v{S+i}')
    def tile(j):
        vs, vp = VF[j & 1], VF[(j+1) & 1]
        ex(SA, 0, 2)
        a(f'v_smfmac_f32_32x32x32_bf16 {vr(OB,16)}, {vr(vp[1],4)}, {vr(SB+8,8)}, v{IDX}')
        ex(SA, 2, 5)
        a(f'v_mfma_f32_32x32x16_bf16 {vr(SB,16)}, {vr(KF,4)}, {vr(QB,4)}, {vr(MB,16)}')
        o = (j+1)*TS
        if j == 3: a('s_bitcmp1_b32 s32, s43\ns_cbranch_scc0 K2_SPIN\nK2_READY:')
        a(f'''
        ds_read_b128 {vr(KF,4)}, v{KA} offset:{o}
        ds_read_b128 {vr(vp[0],4)}, v{VA} offset:{o}
        ds_read_b128 {vr(vp[1],4)}, v{VB} offset:{o}
        ''')
        ex(SA, 5, 10)
        a(f'v_smfmac_f32_32x32x32_bf16 {vr(OA,16)}, {vr(vs[0],4)}, {vr(SA,8)}, v{IDX}')
        ex(SA, 10, 16)
        ex(SB, 0, 2)
        a(f'v_smfmac_f32_32x32x32_bf16 {vr(OA,16)}, {vr(vs[1],4)}, {vr(SA+8,8)}, v{IDX}')
        ex(SB, 2, 5)
        a('s_waitcnt lgkmcnt(0)')
        a(f'v_mfma_f32_32x32x16_bf16 {vr(SA,16)}, {vr(KF,4)}, {vr(QA,4)}, {vr(MA,16)}')
        ex(SB, 5, 10)
        a(f'v_smfmac_f32_32x32x32_bf16 {vr(OB,16)}, {vr(vs[0],4)}, {vr(SB,8)}, v{IDX}')
        if j == 3:
            a(f'v_add_u32 v{KA}, {4*TS}, v{KA}')
            a(f'v_add_u32 v{VA}, {4*TS}, v{VA}')
            a(f'v_add_u32 v{VB}, {4*TS}, v{VB}')
            if LOOPPROF: a('s_mov_b32 m0, s43\ns_nop 3\nv_writelane_b32 v150, s96, m0\ns_memtime s[96:97]')
            a('s_add_u32 s43, s43, 1')
            a('s_cmp_le_u32 s43, s39')
        ex(SB, 10, 16)
    for j in range(4): tile(j)
    a(f'''
    s_cbranch_scc1 K2_LOOP
    s_nop 1
    v_smfmac_f32_32x32x32_bf16 {vr(OB,16)}, {vr(VF[1][1],4)}, {vr(SB+8,8)}, v{IDX}
    ''')
    if not (P1PROF and ATT): a.stamp(7)
    a(f'''
    s_setprio 0
    s_sub_u32 s43, s39, s38
    s_mul_i32 s44, s43, {4*TS}
    v_subrev_u32 v{KA}, s44, v{KA}
    v_subrev_u32 v{VA}, s44, v{VA}
    v_subrev_u32 v{VB}, s44, v{VB}
    s_mul_i32 s44, s26, 2304
    s_add_u32 s44, s44, {CMB}
    v_add_u32 v45, s44, v36
    v_lshlrev_b32 v46, 2, v0
    v_add_u32 v46, s44, v46
    s_mov_b32 s44, {f2u(2.0**100)}
    s_mov_b32 s45, 0x7f800000
    s_mov_b32 s46, {f2u(2.0**-(BIAS+1))}
    s_mov_b32 s47, {f2u(2.0**-105)}
    s_cmp_lg_u32 s42, 0
    s_cbranch_scc1 K2_GOOD
    ''')
    for k, O in enumerate((OA, OB)):
        t = 43+k
        a(f'v_add_f32 v{t}, abs(v{O}), abs(v{O+1})')
        for i in range(2, 8): a(f'v_add_f32 v{t}, v{t}, abs(v{O+i})')
        a(f'''
        v_cmp_ngt_f32 s[48:49], s44, v{O+8}
        v_cmp_ngt_f32 s[50:51], s45, v{t}
        v_cmp_le_f32 s[52:53], s46, v{O+8}
        v_cmp_gt_f32 vcc, s47, v{t}
        s_or_b64 s[48:49], s[48:49], s[50:51]
        s_and_b64 vcc, vcc, s[52:53]
        s_or_b64 s[{54+2*k}:{55+2*k}], s[48:49], vcc
        ''')
    a(f'''
    s_or_b64 s[54:55], s[54:55], s[56:57]
    s_cbranch_scc0 K2_GOOD
    v_mov_b32 v43, {BADF}
    v_mov_b32 v44, 1
    ds_write_b32 v43, v44
    K2_GOOD:
    s_cmp_eq_u32 s34, 0
    s_cbranch_scc1 K2_SENDB
    ds_write_b128 v45, {vr(OA,4)}
    ds_write_b128 v45, {vr(OA+4,4)} offset:1024
    ds_write_b32 v46, v{OA+8} offset:2048
    s_waitcnt lgkmcnt(0)
    ''')
    for r in range(9): a(f'v_mov_b32 v{OA+r}, v{OB+r}')
    a(f'''
    v_subrev_u32 v45, {4*2304}, v45
    v_subrev_u32 v46, {4*2304}, v46
    s_branch K2_SENT
    K2_SENDB:
    ds_write_b128 v45, {vr(OB,4)}
    ds_write_b128 v45, {vr(OB+4,4)} offset:1024
    ds_write_b32 v46, v{OB+8} offset:2048
    v_add_u32 v45, {4*2304}, v45
    v_add_u32 v46, {4*2304}, v46
    K2_SENT:
    v_mov_b32 v43, {BADF}
    s_waitcnt lgkmcnt(0)
    s_barrier
    ds_read_b32 v44, v43
    ds_read_b128 {vr(SA,4)}, v45
    ds_read_b128 {vr(SA+4,4)}, v45 offset:1024
    ds_read_b32 v{SA+8}, v46 offset:2048
    s_add_u32 s36, s35, s34
    s_lshl_b32 s36, s36, 5
    s_add_u32 s36, s36, s40
    s_lshl_b32 s36, s36, 10
    s_add_u32 s36, s36, {OF_OFF}
    s_waitcnt lgkmcnt(3)
    v_readfirstlane_b32 s44, v44
    s_cmp_lt_u32 s42, s44
    s_cbranch_scc0 K2_COMBINE
    ''')
    a(f'''
    s_mov_b32 s42, 1
    v_mov_b32 v41, 0xff800000
    v_mov_b32 v42, 0xff800000
    v_mov_b32 v45, v{KA}
    s_lshl_b32 s43, s43, 2
    K2_MAXLOOP:
    ds_read_b128 {vr(KF,4)}, v45
    v_add_u32 v45, {TS}, v45
    s_waitcnt lgkmcnt(0)
    v_mfma_f32_32x32x16_bf16 {vr(SA,16)}, {vr(KF,4)}, {vr(QA,4)}, 0
    v_mfma_f32_32x32x16_bf16 {vr(SB,16)}, {vr(KF,4)}, {vr(QB,4)}, 0
    s_nop 11
    ''')
    rowmax(SA, 41, True); rowmax(SB, 42, True)
    a(f'''
    s_sub_u32 s43, s43, 1
    s_cmp_lg_u32 s43, 0
    s_cbranch_scc1 K2_MAXLOOP
    ''')
    xhalf(41, 43); xhalf(42, 44)
    a(f'''
    s_lshl_b32 s44, s26, 9
    v_lshlrev_b32 v43, 2, v0
    v_add_u32 v43, s44, v43
    v_xor_b32 v45, 0x800, v43
    v_add_u32 v43, {FX}, v43
    v_add_u32 v45, {FX}, v45
    ds_write_b32 v43, v41
    ds_write_b32 v43, v42 offset:256
    s_waitcnt lgkmcnt(0)
    s_barrier
    ds_read_b32 v44, v45
    ds_read_b32 v45, v45 offset:256
    s_waitcnt lgkmcnt(0)
    v_max_f32 v41, v41, v44
    v_max_f32 v42, v42, v45
    v_sub_f32 v41, 0, v41
    v_sub_f32 v42, 0, v42
    v_mov_b32 v46, {MSK}
    ''')
    zero_acc()
    a(f'''
    s_branch K2_RESTART
    K2_COMBINE:
    ''')
    if LOOPPROF:
        a('v_writelane_b32 v150, s96, 8')
        for k in range(1, 9): a(f'v_readlane_b32 s{76+2*k}, v150, {k}')
    elif not (P1PROF and ATT): a.stamp(8)
    srd(a, 48, 8, 0x80000)
    a(f'''
    v_lshrrev_b32 v3, 3, v0
    v_and_b32 v4, 7, v0
    v_and_b32 v5, 2, v3
    v_lshlrev_b32 v5, 1, v5
    v_xor_b32 v4, v4, v5
    v_lshlrev_b32 v4, 4, v4
    v_lshl_add_u32 v3, v3, 10, v4
    s_and_b32 s44, s40, 7
    s_lshl_b32 s45, s44, 7
    s_lshl_b32 s46, s26, 16
    s_add_u32 s45, s45, s46
    s_lshl_b32 s46, s26, 13
    s_waitcnt lgkmcnt(0)
    v_add_f32 v{OA+8}, v{OA+8}, v{SA+8}
    v_rcp_f32 v{OA+8}, v{OA+8}
    ''')
    for r in range(8): a(f'v_add_f32 v{OA+r}, v{OA+r}, v{SA+r}')
    for r in range(8): a(f'v_mul_f32 v{OA+r}, v{OA+r}, v{OA+8}')
    for i in range(4): a(f'v_cvt_pk_bf16_f32 v{SB+i}, v{OA+2*i}, v{OA+2*i+1}')
    a(f'buffer_store_dwordx4 {vr(SB,4)}, v36, s[28:31], s36 offen{SC1}')
    for i in range(8):
        a(f'''
        s_mov_b32 m0, s46
        s_add_u32 s46, s46, 1024
        buffer_load_dwordx4 v3, s[48:51], s45 offen lds
        s_add_u32 s45, s45, 8192
        ''')
    a(f'''
    s_lshl_b32 s45, s41, 2
    s_add_u32 s45, s45, s33
    s_lshl_b32 s45, s45, 5
    s_add_u32 s45, s45, s40
    s_lshl_b32 s45, s45, 1
    s_add_u32 s45, s45, s34
    s_lshl_b32 s45, s45, {OFS}
    s_add_u32 s45, s45, {FLG_O}
    v_mov_b32 v5, s27
    v_mov_b32 v6, 0
    s_waitcnt vmcnt(8)
    s_mov_b64 exec, 1
    buffer_store_dword v5, v6, s[28:31], s45 offen sc1
    s_mov_b64 exec, -1
    ''')

def oproj(a):
    srd(a, 52, 20, 0x400000)
    a(f'''
    v_lshlrev_b32 v2, 4, v0
    s_and_b32 s56, s26, 1
    s_lshr_b32 s57, s26, 1
    s_lshr_b32 s58, s40, 3
    s_lshl_b32 s59, s41, 2
    s_add_u32 s59, s59, s58
    v_lshrrev_b32 v7, 5, v0
    v_bfe_u32 v8, v0, 2, 2
    v_lshl_add_u32 v9, v7, 2, v8
    v_bfe_u32 v10, v0, 4, 1
    v_lshlrev_b32 v10, 1, v10
    v_bfe_u32 v11, v0, 1, 1
    v_add_u32 v10, v10, v11
    v_and_b32 v8, 2, v8
    v_lshlrev_b32 v8, 1, v8
    v_xor_b32 v10, v10, v8
    v_lshlrev_b32 v10, 4, v10
    v_lshl_add_u32 v10, v9, 7, v10
    v_and_b32 v11, 1, v0
    v_lshl_add_u32 v10, v11, 3, v10
    s_lshl_b32 s60, s57, 14
    v_add_u32 v10, s60, v10
    v_xor_b32 v11, 64, v10
    s_lshl_b32 s60, s59, {OFS+6}
    s_add_u32 s60, s60, {FLG_O}
    v_lshlrev_b32 v3, {OFS}, v0
    s_lshl_b32 s61, s59, 16
    s_lshl_b32 s62, s56, 15
    s_add_u32 s61, s61, s62
    s_lshl_b32 s62, s57, 13
    s_add_u32 s61, s61, s62
    s_add_u32 s61, s61, {OF_OFF}
    s_add_u32 s62, s61, 4096
    s_waitcnt vmcnt(1)
    s_barrier
    ''')
    for hd in range(8):
        for c in range(2):
            b = 64 + (hd*2+c)*4
            ad = 10 + c
            a(f'ds_read_b64_tr_b16 {vr(b,2)}, v{ad} offset:{hd*2048}')
            a(f'ds_read_b64_tr_b16 {vr(b+2,2)}, v{ad} offset:{hd*2048+1024}')
        if hd % 2 == 1 and hd < 7: a('s_waitcnt lgkmcnt(4)')
    a('s_cmp_lg_u32 s26, 0\ns_cbranch_scc1 K3_OK')
    poll(a, 'K3', 3, 12, 's60')
    a('s_barrier')
    if not (P1PROF and ATT) and not LOOPPROF: a.stamp(9)
    for hd in range(8):
        a(f'buffer_load_dwordx4 {vr(16+4*hd,4)}, v2, s[28:31], s{61 + hd//4} offen offset:{(hd%4)*1024}{SC1}')
    a(f'''
    s_lshl_b32 s60, s56, 15
    s_add_u32 s60, s60, 65536
    s_lshl_b32 s63, s57, 11
    s_add_u32 s63, s63, s60
    v_add_u32 v13, s63, v2
    s_lshl_b32 s63, s57, 13
    s_add_u32 s63, s63, s60
    v_add_u32 v14, s63, v2
    v_and_b32 v15, 31, v0
    s_lshl_b32 s60, s59, 6
    s_lshl_b32 s63, s56, 5
    s_add_u32 s60, s60, s63
    v_add_u32 v15, s60, v15
    v_lshlrev_b32 v15, 11, v15
    v_lshl_add_u32 v15, v7, 4, v15
    s_lshl_b32 s60, s44, 7
    s_lshl_b32 s63, s57, 5
    s_add_u32 s60, s60, s63
    s_waitcnt lgkmcnt(0)
    ''')
    for hd in range(8):
        a(f's_waitcnt vmcnt({7-hd})')
        for c in range(2):
            d = vr(128+16*c, 16)
            a(f'v_mfma_f32_32x32x16_bf16 {d}, {vr(64+(hd*2+c)*4,4)}, {vr(16+4*hd,4)}, {"0" if hd == 0 else d}')
    a('s_nop 11')
    for g in range(4):
        a(f'ds_write_b128 v13, {vr(128+8*g,4)} offset:{g*8192}')
        a(f'ds_write_b128 v13, {vr(132+8*g,4)} offset:{g*8192+1024}')
    a('s_waitcnt lgkmcnt(0)\ns_barrier')
    for s in range(4):
        a(f'ds_read_b128 {vr(16+8*s,4)}, v14 offset:{s*2048}')
        a(f'ds_read_b128 {vr(20+8*s,4)}, v14 offset:{s*2048+1024}')
    a('s_waitcnt lgkmcnt(4)')
    for r in range(8): a(f'v_add_f32 v{16+r}, v{16+r}, v{24+r}')
    a('s_waitcnt lgkmcnt(0)')
    for r in range(8): a(f'v_add_f32 v{32+r}, v{32+r}, v{40+r}')
    for r in range(8): a(f'v_add_f32 v{16+r}, v{16+r}, v{32+r}')
    for i in range(4): a(f'v_cvt_pk_bf16_f32 v{48+i}, v{16+2*i}, v{17+2*i}')
    a(f'''
    s_nop 1
    v_permlane32_swap_b32 v48, v50
    v_permlane32_swap_b32 v49, v51
    s_nop 1
    buffer_store_dwordx4 v[48:51], v15, s[52:55], s60 offen{OST}
    ''')

def background(a):
    global ATT
    ATT = False
    ACC, EXT = 128, 144
    a(f'''
    K2_BG:
    s_setprio 2
    s_sub_u32 s33, s26, 8
    v_lshlrev_b32 v14, 4, v0
    v_mov_b32 v1, {SCR}
    v_mov_b32 v2, 0
    v_mov_b32 v3, 0
    v_mov_b32 v4, 0
    v_mov_b32 v5, 0
    ds_write_b128 v1, v[2:5]
    s_memrealtime s[60:61]
    ''')
    p1_loader(a)
    a(f'''
    s_mov_b32 s68, {SPIN_MAX}
    BG_NSP:
    global_load_dword v8, v2, s[22:23] sc1
    s_sub_u32 s68, s68, 1
    s_waitcnt vmcnt(0)
    v_readfirstlane_b32 s27, v8
    s_cbranch_scc1 BG_NOK
    s_cmp_eq_u32 s27, 0
    s_cbranch_scc1 BG_NSP
    BG_NOK:
    ds_write_b32 v1, v8 offset:16
    s_lshl_b32 s44, s41, 2
    s_add_u32 s44, s44, s42
    s_lshl_b32 s44, s44, 4
    s_add_u32 s44, s44, s40
    s_lshl_b32 s44, s44, {FS}
    s_add_u32 s44, s44, {FLG_P1}
    s_and_b32 s40, s2, 7
    s_lshr_b32 s41, s2, 3
    s_lshl_b32 s40, s40, 2
    s_lshr_b32 s45, s41, 3
    s_add_u32 s40, s40, s45
    s_and_b32 s41, s41, 7
    s_and_b32 s34, s33, 1
    s_lshr_b32 s35, s33, 1
    v_and_b32 v9, 15, v0
    v_lshlrev_b32 v9, {FS}, v9
    s_lshl_b32 s45, s34, {FS+4}
    s_add_u32 s45, s45, {16 << FS}
    v_add_u32 v9, s45, v9
    s_lshl_b32 s45, s41, 1
    s_add_u32 s45, s45, s35
    s_lshl_b32 s45, s45, {FS}
    v_mov_b32 v10, s45
    v_cmp_eq_u32 vcc, 16, v0
    s_lshr_b32 s45, s40, 3
    s_lshl_b32 s45, s45, {FS+6}
    s_add_u32 s45, s45, {FLG_P1}
    v_cndmask_b32 v9, v9, v10, vcc
    s_cmp_eq_u32 s35, 0
    s_mov_b32 s47, {SEQ[1]}
    s_cselect_b32 s47, {SEQ[0]}, s47
    s_lshl_b32 s34, s34, 10
    s_lshl_b32 s35, s40, 17
    s_add_u32 s35, s35, s34
    s_add_u32 s35, s35, {KV_OFF}
    v_mul_u32_u24 v11, {TS}, v0
    v_mov_b32 v16, 0x3f803f80
    v_mov_b32 v17, v16
    v_mov_b32 v18, v16
    v_mov_b32 v19, v16
    s_lshr_b32 s48, s34, 8
    v_add_u32 v20, s48, v1
    s_lshl_b32 s36, s40, 6
    s_lshl_b32 s37, s41, 3
    s_add_u32 s36, s36, s37
    s_lshl_b32 s37, s33, 1
    s_add_u32 s36, s36, s37
    s_lshl_b32 s36, s36, 10
    s_lshl_b32 s37, s33, 11
    s_add_u32 s37, s37, {CMB}
    s_waitcnt lgkmcnt(0)
    ''')
    a.stamp(1)
    a('s_barrier')
    a.stamp(2)
    a(f'''
    s_cmp_lg_u32 s33, 0
    s_cbranch_scc1 BG_NOFLAG
    s_mov_b64 exec, 1
    buffer_store_dword v8, v2, s[28:31], s44 offen sc1
    s_mov_b64 exec, -1
    ds_write_b128 v11, v[16:19] offset:2048
    BG_NOFLAG:
    ''')
    def grp_issue():
        a(f'''
        s_mul_i32 s52, s48, {4*TS}
        s_add_u32 m0, s52, s34
        s_lshl_b32 s51, s48, 13
        s_add_u32 s51, s51, s35
        ''')
        for t in range(4):
            a(f'buffer_load_dwordx4 v14, s[28:31], s51 offen{SC1} lds')
            if t < 3: a(f's_add_u32 m0, m0, {TS}\ns_add_u32 s51, s51, 2048')
    def publish():
        a('v_mov_b32 v21, s49\ns_mov_b64 exec, 1\nds_or_b32 v20, v21\ns_mov_b64 exec, -1')
    a(f'''
    s_and_b32 s48, s47, 15
    s_lshl_b32 s49, 1, s48
    s_or_b32 s53, s49, 0x10000
    s_mov_b32 s68, {SPIN_MAX}
    {os.environ.get('POLLDELAY', '')}
    BG1_SP:
    {os.environ.get('POLLBACK', '')}
    buffer_load_dword v10, v9, s[28:31], s45 offen sc1
    s_sub_u32 s68, s68, 1
    s_waitcnt vmcnt(0)
    v_cmp_eq_u32 vcc, s27, v10
    s_cbranch_scc1 BG1_OK
    s_and_b32 s46, vcc_lo, s53
    s_cmp_eq_u32 s46, s53
    s_cbranch_scc0 BG1_SP
    BG1_OK:
    s_mov_b32 s46, vcc_lo
    ''')
    a.stamp(3)
    grp_issue()
    a(f'''
    s_mov_b32 m0, s37
    s_mov_b32 s50, 1
    buffer_load_dwordx4 v14, s[28:31], s36 offen{SC1} lds
    buffer_load_dwordx4 v14, s[28:31], s36 offen offset:1024{SC1} lds
    s_waitcnt vmcnt(0) lgkmcnt(0)
    s_barrier
    BGL_LOOP:
    s_lshr_b32 s47, s47, 4
    s_and_b32 s48, s47, 15
    s_bitcmp1_b32 s46, s48
    s_cbranch_scc1 BGL_RDY
    s_waitcnt vmcnt(0)
    ''')
    publish()
    a(f'''
    s_mov_b32 s68, {SPIN_MAX}
    BGL_SP:
    buffer_load_dword v10, v9, s[28:31], s45 offen sc1
    s_sub_u32 s68, s68, 1
    s_waitcnt vmcnt(0)
    v_cmp_eq_u32 vcc, s27, v10
    s_cbranch_scc1 BGL_RDY
    s_mov_b32 s46, vcc_lo
    s_bitcmp1_b32 s46, s48
    s_cbranch_scc0 BGL_SP
    BGL_RDY:
    ''')
    grp_issue()
    a('s_waitcnt vmcnt(4)')
    publish()
    a(f'''
    s_lshl_b32 s49, 1, s48
    s_add_u32 s50, s50, 1
    s_cmp_lt_u32 s50, 8
    s_cbranch_scc1 BGL_LOOP
    s_waitcnt vmcnt(0)
    ''')
    publish()
    a(f'''
    s_lshr_b32 s34, s33, 1
    s_and_b32 s35, s33, 1
    s_cmp_eq_u32 s34, 0
    s_cselect_b32 s48, s12, s14
    s_cselect_b32 s49, s13, s15
    s_mov_b32 s50, 0x800000
    s_mov_b32 s51, 0x20000
    s_mov_b32 s37, {BOF_OFF}
    s_cselect_b32 s36, {AEF_OFF}, s37
    s_cselect_b32 s56, s41, s40
    s_cselect_b32 s57, 1, s40
    s_xor_b32 s37, s36, {AEF_OFF ^ BOF_OFF}
    ''')
    srd(a, 52, 20, 0x400000)
    a(f'''
    v_and_b32 v6, 31, v0
    v_lshrrev_b32 v7, 5, v0
    s_lshl_b32 s44, s40, 5
    v_add_u32 v8, s44, v6
    v_lshlrev_b32 v8, 12, v8
    v_lshl_add_u32 v8, v7, 4, v8
    s_lshl_b32 s44, s35, 10
    v_add_u32 v8, s44, v8
    s_lshl_b32 s44, s41, 16
    s_lshl_b32 s45, s35, 15
    s_add_u32 s44, s44, s45
    v_add_u32 v12, s44, v14
    s_cmp_eq_u32 s57, 0
    s_cselect_b32 s58, -2, -1
    s_cselect_b32 s59, -2, -1
    v_mov_b32 v10, 1
    v_mov_b32 v11, 0xbf803f80
    s_lshr_b32 s45, s41, 2
    s_lshl_b32 s45, s45, {FS+6}
    s_add_u32 s45, s45, {FLG_P1 + (48 << FS)}
    v_bfe_u32 v13, v0, 4, 1
    v_lshlrev_b32 v13, {FS+7}, v13
    v_and_b32 v9, 15, v0
    v_lshl_add_u32 v9, v9, {FS}, v13
    ''')
    NS = 8
    for i in range(NS):
        for r in range(4): a(f'v_mov_b32 v{16+12*i+r}, v11')
    for r in range(16): a(f'v_mov_b32 v{EXT+r}, 0')
    a.stamp(4)
    if os.environ.get('NOFNET'): a('s_branch K_END')
    if os.environ.get('BGPRIO'): a('s_setprio ' + os.environ['BGPRIO'])
    poll(a, 'BG2', 9, 13, 's45')
    def fl(ks, ext):
        b = 16 + 12*(ks % NS)
        a(f'''
        s_mov_b64 exec, s[58:59]
        buffer_load_dwordx4 {vr(b,4)}, v8, s[48:51], 0 offen offset:{32*ks}
        s_mov_b64 exec, -1
        buffer_load_dwordx4 {vr(b+4,4)}, v12, s[28:31], s36 offen offset:{1024*(ks%4)}{SC1}
        ''')
        if ext: a(f'buffer_load_dwordx4 {vr(b+8,4)}, v12, s[28:31], s37 offen offset:{1024*(ks%4)}{SC1}')
        if ks % 4 == 3: a('s_add_u32 s36, s36, 4096\ns_add_u32 s37, s37, 4096')
    def floop(ext):
        per = 3 if ext else 2
        for ks in range(NS): fl(ks, ext)
        for ks in range(32):
            b = 16 + 12*(ks % NS)
            rem = min(32, ks+NS) - ks - 1
            a(f's_waitcnt vmcnt({per*rem})')
            a(f'v_mfma_f32_32x32x16_bf16 {vr(ACC,16)}, {vr(b,4)}, {vr(b+4,4)}, {"0" if ks == 0 else vr(ACC,16)}')
            if ext: a(f'v_mfma_f32_32x32x16_bf16 {vr(EXT,16)}, {vr(b,4)}, {vr(b+8,4)}, {vr(EXT,16)}')
            if ks+NS < 32: fl(ks+NS, ext)
    a('s_cmp_eq_u32 s56, 0\ns_cbranch_scc1 BG_FEXT')
    floop(False)
    a('s_branch BG_FDONE\nBG_FEXT:')
    floop(True)
    a('BG_FDONE:')
    if not (P1PROF and ATT): a.stamp(5)
    a(f'''
    s_lshl_b32 s44, s41, 7
    v_lshl_add_u32 v12, v6, 2, s44
    s_mov_b32 s44, {AE1K_OFF}
    v_mov_b32 v13, 1024
    buffer_load_dword v16, v12, s[28:31], s44 offen{SC1}
    buffer_load_dword v17, v13, s[28:31], s44 offen{SC1}
    s_mul_i32 s44, s33, 3072
    s_add_u32 s44, s44, {FX}
    s_lshl_b32 s45, s35, 7
    s_lshl_b32 s46, s34, 8
    s_add_u32 s45, s45, s46
    s_add_u32 s45, s45, {FE}
    v_lshlrev_b32 v3, 6, v7
    v_add_u32 v3, s45, v3
    v_lshl_add_u32 v4, v6, 2, s45
    s_nop 3
    ''')
    for g in range(4):
        a(f'''
        s_sub_u32 s46, {g+3}, s33
        s_and_b32 s46, s46, 3
        s_cmp_eq_u32 s46, 3
        s_cselect_b64 exec, 0, -1
        s_lshl_b32 s46, s46, 10
        s_add_u32 s46, s46, s44
        v_add_u32 v2, s46, v14
        ds_write_b128 v2, {vr(ACC+4*g,4)}
        ''')
    a(f'''
    s_mov_b64 exec, -1
    s_cmp_eq_u32 s34, 0
    s_cbranch_scc0 BG_XQ
    s_mov_b32 exec_lo, 1
    s_mov_b32 exec_hi, 1
    ''')
    for i in range(4): a(f'ds_write_b128 v3, {vr(EXT+4*i,4)} offset:{16*i}')
    a(f'''
    s_branch BG_XD
    BG_XQ:
    s_mov_b32 exec_hi, 0
    ds_write_b32 v4, v{EXT}
    BG_XD:
    s_mov_b64 exec, 1
    s_waitcnt lgkmcnt(0)
    ds_add_u32 v1, v10 offset:12
    s_mov_b64 exec, -1
    s_cmp_lt_u32 s33, 2
    s_cbranch_scc1 BG_M01
    s_cmp_eq_u32 s33, 2
    s_cbranch_scc1 BG_M2
    ''')
    def mv(g):
        for i in range(4): a(f'v_mov_b32 v{20+i}, v{ACC+4*g+i}')
    mv(3); a('s_branch BG_MD\nBG_M2:'); mv(2); a('s_branch BG_MD\nBG_M01:\ns_cmp_eq_u32 s33, 0\ns_cbranch_scc1 BG_M0'); mv(1); a('s_branch BG_MD\nBG_M0:'); mv(0)
    a('BG_MD:')
    for j in range(1, 4):
        a(f'''
        s_add_u32 s46, s33, {j}
        s_and_b32 s46, s46, 3
        s_mul_i32 s46, s46, 3072
        s_add_u32 s46, s46, {FX + (3-j)*1024}
        v_add_u32 v{40+j}, s46, v14
        ''')
    a(f'''
    s_lshl_b32 s46, s33, 4
    s_add_u32 s46, s46, {FE}
    v_lshlrev_b32 v3, 6, v7
    v_add_u32 v3, s46, v3
    v_lshlrev_b32 v4, 2, v6
    v_add_u32 v4, {FE+256}, v4
    BG_FSPIN:
    ds_read_b32 v5, v1 offset:12
    s_waitcnt lgkmcnt(0)
    v_readfirstlane_b32 s46, v5
    s_cmp_ge_u32 s46, 4
    s_cbranch_scc0 BG_FSPIN
    ds_read_b128 v[24:27], v41
    ds_read_b128 v[28:31], v42
    ds_read_b128 v[32:35], v43
    ds_read_b128 v[44:47], v3
    ds_read_b128 v[48:51], v3 offset:128
    ds_read_b32 v52, v4
    ds_read_b32 v53, v4 offset:128
    s_and_b32 s46, s33, 1
    s_cmp_eq_u32 s46, 0
    s_cselect_b64 s[60:61], -1, 0
    s_cmp_eq_u32 s34, 0
    s_cselect_b64 s[62:63], -1, 0
    s_cmp_eq_u32 s41, 0
    s_cselect_b32 s64, 1, 0
    s_mov_b32 s65, s64
    s_or_b32 s46, s40, s33
    s_cmp_eq_u32 s46, 0
    s_cselect_b32 s66, -1, 0
    s_mov_b32 s67, 0
    s_lshl_b32 s46, s41, 5
    v_add_u32 v2, s46, v6
    v_sub_u32 v3, 512, v2
    v_mov_b32 v4, 256
    v_cndmask_b32 v3, v3, v4, s[64:65]
    v_lshlrev_b32 v2, 1, v2
    v_lshlrev_b32 v3, 1, v3
    v_add_u32 v2, 1024, v2
    v_add_u32 v3, 1024, v3
    s_lshl_b32 s46, s40, 5
    s_lshl_b32 s47, s33, 3
    s_add_u32 s46, s46, s47
    v_lshl_add_u32 v4, v7, 2, s46
    v_sub_u32 v5, {2048-3}, v4
    v_lshl_add_u32 v8, v4, 11, v2
    v_lshl_add_u32 v9, v4, 11, v3
    v_lshl_add_u32 v10, v5, 11, v2
    v_lshl_add_u32 v11, v5, 11, v3
    v_mov_b32 v4, {1024-3}
    v_cndmask_b32 v5, v5, v4, s[66:67]
    v_lshl_add_u32 v12, v5, 11, v2
    v_lshl_add_u32 v13, v5, 11, v3
    s_waitcnt vmcnt(0) lgkmcnt(0)
    ''')
    for i in range(4):
        a(f'''
        v_cndmask_b32 v36, v{32+i}, v{24+i}, s[60:61]
        v_cndmask_b32 v37, v{24+i}, v{32+i}, s[60:61]
        v_add_f32 v36, v36, v{20+i}
        v_add_f32 v37, v37, v{28+i}
        v_cndmask_b32 v{20+i}, v37, v36, s[62:63]
        v_cndmask_b32 v{24+i}, v36, v37, s[62:63]
        v_add_f32 v{44+i}, v{44+i}, v{48+i}
        ''')
        op = 'v_add_f32' if i % 2 == 0 else 'v_sub_f32'
        a(f'{op} v{20+i}, v{20+i}, v16\n{op} v{44+i}, v{44+i}, v17')
    a(f'''
    v_add_f32 v52, v52, v53
    v_add_f32 v52, v52, v16
    v_add_f32 v53, v24, v17
    v_cndmask_b32 v24, v24, 0, s[66:67]
    v_cndmask_b32 v53, v52, v53, s[64:65]
    ''')
    for i in range(4):
        t0 = 56 + 8*i
        a(f'''
        v_cndmask_b32 v{24+i}, v{24+i}, 0, s[64:65]
        v_sub_f32 v{t0}, v{20+i}, v{24+i}
        v_add_f32 v{t0+1}, v{20+i}, v{24+i}
        v_cndmask_b32 v{t0+2}, v{t0+1}, v{44+i}, s[64:65]
        v_cndmask_b32 v{t0+3}, v{t0}, v{44+i}, s[64:65]
        ''')
        if i == 0:
            a(f'''
            v_cndmask_b32 v{t0+1}, v{t0+1}, v52, s[66:67]
            v_cndmask_b32 v{t0+3}, v{t0+3}, v53, s[66:67]
            ''')
        a(f'''
        v_cvt_pk_bf16_f32 v{t0+4}, v{t0}, v{t0+1}
        v_cvt_pk_bf16_f32 v{t0+5}, v{t0+2}, v{t0+3}
        s_mov_b32 s46, {i*2048}
        s_mov_b32 s47, {(3-i)*2048}
        buffer_store_short v{t0+4}, v8, s[52:55], s46 offen{FST}
        buffer_store_short_d16_hi v{t0+4}, v{12 if i == 0 else 10}, s[52:55], s47 offen{FST}
        buffer_store_short v{t0+5}, v9, s[52:55], s46 offen{FST}
        buffer_store_short_d16_hi v{t0+5}, v{13 if i == 0 else 11}, s[52:55], s47 offen{FST}
        ''')

def fused():
    a = Asm()
    a('s_cmp_ge_u32 s2, 256\ns_cbranch_scc1 K_END')
    a.stamp(0)
    a(f'''
    s_load_dwordx8 s[4:11], s[0:1], 0
    s_load_dwordx8 s[12:19], s[0:1], 32
    s_load_dwordx4 s[20:23], s[0:1], 64
    s_load_dwordx2 s[24:25], s[0:1], 80
    v_lshrrev_b32 v1, 6, v0
    v_and_b32 v0, 63, v0
    s_and_b32 s44, s2, 7
    v_readfirstlane_b32 s26, v1
    s_lshr_b32 s45, s2, 3
    s_and_b32 s46, s45, 7
    s_lshr_b32 s41, s45, 3
    s_and_b32 s40, s44, 1
    s_lshl_b32 s40, s40, 3
    s_add_u32 s40, s40, s46
    s_lshr_b32 s42, s44, 1
    s_lshl_b32 s43, s41, 1
    s_and_b32 s43, s43, {ROTC}
    s_and_b32 s47, s46, {ROTR}
    s_add_u32 s43, s43, s47
    s_and_b32 s43, s43, {ROT}
    s_cmp_ge_u32 s26, 8
    s_cbranch_scc1 K2_BG
    ''')
    phase1(a)
    a('''
    s_and_b32 s40, s2, 7
    s_lshr_b32 s41, s2, 3
    s_lshl_b32 s40, s40, 2
    s_lshr_b32 s45, s41, 3
    s_add_u32 s40, s40, s45
    s_and_b32 s41, s41, 7
    ''')
    attention(a)
    oproj(a)
    if PROF: a('s_waitcnt vmcnt(0)')
    a.flush(0, 26)
    a('s_endpgm')
    a('.p2align 8')
    background(a)
    if PROF: a('s_waitcnt vmcnt(0)')
    a.stamp(6); a.flush(0, 26, grp=1)
    a('K_END:')
    a('s_endpgm')
    return header(NAME) + a.text(), kd(NAME, 160, 100)

if __name__ == '__main__':
    import sys
    c, d = fused()
    out = '; @launch grid=(256,1,1) block=(768,1,1) lds=163840\n.amdgcn_target "amdgcn-amd-amdhsa--gfx950"\n.text\n' + c + '.section .rodata,"a"\n' + d
    open(sys.argv[1], 'w').write(out)
```

```python
QF_OFF   = 0x000000
KV_OFF   = 0x200000
AEF_OFF  = 0x600000
BOF_OFF  = 0x680000
AE1K_OFF = 0x700000
OF_OFF   = 0x800000
CSF_OFF  = 0xA00000
WS_USED  = 0xE00000
QSCALE = 0.25*1.4426950408889634
import struct
def f2u(x): return struct.unpack('<I', struct.pack('<f', x))[0]

import os
PROF = bool(int(os.environ.get('PROF', '0')))
PROF_OFF = 0x1000000
class Asm:
    def __init__(self): self.L = []
    def stamp(self, i):
        if not PROF: return
        if i == 0:
            for r in range(76, 94): self(f's_mov_b32 s{r}, 0')
            self('s_memrealtime s[70:71]')
        self(f's_mem{"real" if os.environ.get("RT") else ""}time s[{74+2*i}:{75+2*i}]')
    def flush(self, kidx, wave_sreg, vt=1, grp=0):
        if not PROF: return
        if os.environ.get('XSPIN'):
            k = int(os.environ['XSPIN'])
            if grp: return
            self('s_memrealtime s[72:73]')
            self('s_waitcnt lgkmcnt(0)')
            src = 72 if k == 10 else 74 + 2*k
            self(f's_sub_u32 s70, s{src}, s74')
            self('s_add_u32 s70, s70, s72')
            self('XSP:')
            self('s_memrealtime s[72:73]')
            self('s_waitcnt lgkmcnt(0)')
            self('s_sub_u32 s71, s72, s70')
            self('s_cmp_lt_i32 s71, 0')
            self('s_cbranch_scc1 XSP')
            return
        if os.environ.get('DBGPROF'):
            base = 2 if grp == 0 else 12
            self('s_memrealtime s[72:73]')
            self('s_load_dwordx2 s[94:95], s[0:1], 72')
            self('s_mov_b64 exec, -1')
            self('s_waitcnt lgkmcnt(0)')
            self(f'v_mov_b32 v{vt}, 0')
            self('s_not_b32 s70, s70')
            sel = [70, 78, 80, 82, 84, 86, 88, 90, 92, 72] if grp == 0 else [80, 82, 84, 72]
            for i, r in enumerate(sel): self(f'v_writelane_b32 v{vt}, s{r}, {i}')
            self(f'v_mbcnt_lo_u32_b32 v{vt+1}, -1, 0')
            self(f'v_lshlrev_b32 v{vt+1}, 2, v{vt+1}')
            self(f's_mov_b64 exec, {(1 << len(sel)) - 1}')
            self(f'global_atomic_umax v{vt+1}, v{vt}, s[94:95] offset:{base*4} sc1')
            return
        self('s_memrealtime s[72:73]')
        self('s_load_dwordx2 s[94:95], s[0:1], 80')
        self('s_mov_b64 exec, -1')
        self('s_waitcnt lgkmcnt(0)')
        self(f'v_mov_b32 v{vt}, 0')
        self(f'v_writelane_b32 v{vt}, s70, 0')
        self(f'v_writelane_b32 v{vt}, s72, 1')
        for i in range(10): self(f'v_writelane_b32 v{vt}, s{74+2*i}, {2+i}')
        self(f's_lshl_b32 s70, s2, 4')
        self(f's_add_u32 s70, s70, s{wave_sreg}')
        self(f's_add_u32 s70, s70, {kidx*4096}')
        self(f's_lshl_b32 s70, s70, 6')
        self(f's_add_u32 s70, s70, {PROF_OFF}')
        self(f'v_mbcnt_lo_u32_b32 v{vt+1}, -1, 0')
        self(f'v_lshlrev_b32 v{vt+1}, 2, v{vt+1}')
        self(f'v_add_u32 v{vt+1}, s70, v{vt+1}')
        self('s_mov_b64 exec, 0xffff')
        self(f'global_store_dword v{vt+1}, v{vt}, s[94:95]')
    def __call__(self, s):
        for l in s.strip('\n').split('\n'):
            l = l.strip()
            if l: self.L.append(l if l.endswith(':') else '    ' + l)
    def label(self, n): self.L.append(n + ':')
    def text(self): return '\n'.join(self.L) + '\n'

def vr(a, n): return f'v[{a}:{a+n-1}]' if n > 1 else f'v{a}'
def sr(a, n): return f's[{a}:{a+n-1}]' if n > 1 else f's{a}'

def header(name):
    return f'.globl {name}\n.p2align 8\n.type {name},@function\n{name}:\n'
def kd(name, vgpr, sgpr=96):
    acc = (vgpr + 3)//4*4
    return f'''.p2align 6
.amdhsa_kernel {name}
  .amdhsa_next_free_vgpr {vgpr}
  .amdhsa_next_free_sgpr {sgpr}
  .amdhsa_accum_offset {acc}
  .amdhsa_group_segment_fixed_size 0
  .amdhsa_kernarg_size 88
  .amdhsa_user_sgpr_count 2
  .amdhsa_user_sgpr_kernarg_segment_ptr 1
  .amdhsa_system_sgpr_workgroup_id_x 1
.end_amdhsa_kernel
'''
```

```python
from common import *
NAME = 'concat_heads__mha_block__spectral_fnet__prompt_kernel'
FLG_P1 = 0x710000
FLG_F1 = 0x720000
FLG_CS = 0x728000
FLG_O  = 0x730000
TS = 2064
SCR = 64*TS
MSK, BADF, CNT_F, NONCE, DCNT, QCNT, F1C = SCR, SCR+8, SCR+12, SCR+16, SCR+20, SCR+32, SCR+48
CMB = SCR+256
QST = CMB
FX = CMB+18432
FE = FX+12288
BIAS = float(os.environ.get('BIAS', '88'))
SPIN_MAX = 1 << 16
KA, VA, IDX, VB = 1, 2, 3, 47
KA0, VA0, VB0, QC, ONE = 36, 16, 17, 18, 19
QA, QB = 4, 8
KF = 12
VF = [[20, 24], [28, 32]]
SA, SB, OA, OB, MA, MB = 48, 64, 80, 96, 112, 128
PKD = 144
SC1 = ' sc1'
FST = OST = ''
OFS = 3
ROT = int(os.environ.get('ROT', '6'))
DEFER = int(os.environ.get('DEFER', '3'))
GSH = 1 if DEFER == 1 else 2
P1PROF = int(os.environ.get('P1PROF', '0'))
TBP = int(os.environ.get('TBP', '3'))
MAINPRIO = int(os.environ.get('MAINPRIO', '1'))
assert FE + 512 <= 163840

def srd(a, d, lo, size):
    a(f's_mov_b32 s{d}, s{lo}\ns_mov_b32 s{d+1}, s{lo+1}\ns_mov_b32 s{d+2}, {size}\ns_mov_b32 s{d+3}, 0x20000')

def poll(a, tag, vaddr, vt, soff, mask=None):
    if mask: a(f's_mov_b64 exec, {mask}')
    a(f'''
    s_mov_b32 s68, {SPIN_MAX}
    {tag}_SP:
    buffer_load_dword v{vt}, v{vaddr}, s[28:31], {soff} offen sc1
    s_sub_u32 s68, s68, 1
    s_waitcnt vmcnt(0)
    v_cmp_ne_u32 vcc, s27, v{vt}
    s_cbranch_scc1 {tag}_OK
    s_cbranch_vccnz {tag}_SP
    {tag}_OK:
    ''')
    if mask: a('s_mov_b64 exec, -1')


def p1_loader(a):
    a(f"""
    v_lshrrev_b32 v6, 3, v0
    v_and_b32 v8, 7, v0
    v_lshrrev_b32 v9, 4, v0
    v_xor_b32 v8, v8, v9
    v_lshlrev_b32 v8, 4, v8
    v_lshl_add_u32 v16, v6, 10, v8
    v_xor_b32 v17, 64, v16
    v_add_u32 v17, 0x2000, v17
    v_add_u32 v18, 0x4000, v16
    v_add_u32 v19, 0x4000, v17
    s_lshl_b32 s44, s40, 17
    s_lshl_b32 s45, s33, 15
    s_add_u32 s44, s44, s45
    v_mul_u32_u24 v7, 3072, v9
    v_and_b32 v8, 15, v0
    v_lshlrev_b32 v9, 2, v9
    v_xor_b32 v8, v8, v9
    v_lshl_add_u32 v20, v8, 4, v7
    v_add_u32 v21, {4*3072}, v20
    v_add_u32 v22, {8*3072}, v20
    v_add_u32 v23, {12*3072}, v20
    s_lshl_b32 s47, s42, 10
    s_lshl_b32 s48, s41, 8
    s_add_u32 s47, s47, s48
    s_mul_i32 s48, s33, {16*3072}
    s_add_u32 s47, s47, s48
    s_lshl_b32 s51, s33, 12
    s_waitcnt lgkmcnt(0)
    """)
    srd(a, 56, 4, 0x200000); srd(a, 36, 6, 0x180000)
    def issue(c):
        slot = c % 4
        a(f"""
        s_add_u32 s54, s43, {c}
        s_and_b32 s54, s54, 7
        s_lshl_b32 s55, s54, 7
        s_add_u32 s55, s55, s44
        s_mul_i32 s54, s54, {64*3072}
        s_add_u32 m0, s51, {slot*32768}
        s_add_u32 s54, s54, s47
        """)
        for j in range(4):
            a(f"""
            buffer_load_dwordx4 v{16+j}, s[56:59], s55 offen lds
            s_add_u32 m0, s51, {slot*32768+16384+j*1024}
            s_nop 0
            buffer_load_dwordx4 v{20+j}, s[36:39], s54 offen lds
            """)
            if j < 3: a(f"s_add_u32 m0, s51, {slot*32768+(j+1)*1024}\ns_nop 0")
    a.stamp(7)
    issue(0)
    a(f"""
    s_add_u32 s48, s2, s33
    s_cmp_lg_u32 s48, 0
    s_cbranch_scc1 BG_NONONCE
    s_or_b32 s60, s60, 1
    v_mov_b32 v8, s60
    s_mov_b64 exec, 1
    global_store_dword v2, v8, s[22:23] sc1
    s_mov_b64 exec, -1
    BG_NONONCE:
    """)
    issue(1)
    for c in range(8):
        a(f"s_waitcnt vmcnt({8 if c < 7 else 0})\ns_barrier")
        if c + 2 < 8: issue(c+2)

def phase1(a):
    a(f"""
    s_getpc_b64 s[44:45]
    PC_HERE:
    s_sub_u32 s44, s44, PC_HERE-{NAME}
    s_subb_u32 s45, s45, 0
    v_lshlrev_b32 v6, 7, v0
    s_lshl_b32 s47, s26, 13
    v_add_u32 v6, s47, v6
    v_min_u32 v6, K_END-{NAME}, v6
    global_load_dword v143, v6, s[44:45]
    s_mov_b32 s66, 0
    v_mov_b32 v142, 0
    s_cmp_eq_u32 s42, 3
    s_cbranch_scc0 K1_GEMM
    s_waitcnt lgkmcnt(0)
    """)
    srd(a, 28, 24, WS_USED)
    a(f"""
    s_barrier
    s_and_b32 s44, s2, 7
    s_lshl_b32 s44, s44, 3
    s_lshr_b32 s45, s2, 3
    s_add_u32 s44, s44, s45
    s_sub_u32 s44, s44, 24
    s_lshr_b32 s45, s44, 1
    s_lshl_b32 s45, s45, 5
    v_and_b32 v6, 31, v0
    v_add_u32 v6, s45, v6
    s_and_b32 s45, s44, 1
    s_mul_i32 s46, s45, {f2u(0.25)}
    v_mov_b32 v8, s46
    v_cmp_gt_u32 vcc, s45, v6
    v_mov_b32 v9, 1024
    v_lshrrev_b32 v7, 5, v0
    v_cndmask_b32 v6, v6, v9, vcc
    v_cndmask_b32 v8, v8, 0, vcc
    v_cvt_f32_u32 v6, v6
    v_mul_f32 v6, {f2u(1/2048)}, v6
    s_lshl_b32 s46, s26, 4
    v_add_u32 v7, s46, v7
    v_lshlrev_b32 v7, 3, v7
    v_cvt_f32_u32 v7, v7
    v_fma_f32 v8, v6, v7, v8
    v_mul_f32 v7, {f2u(16.0)}, v6
    v_lshlrev_b32 v10, 4, v0
    s_lshl_b32 s44, s44, 16
    s_lshl_b32 s46, s26, 13
    s_add_u32 s44, s44, s46
    s_add_u32 s44, s44, {CSF_OFF}
    """)
    for ks in range(8):
        b = 32 + 4*ks
        a("v_fract_f32 v9, v8\nv_add_f32 v8, v8, v7")
        for j in range(8):
            a(f"v_cos_f32 v{16+j}, v9")
            if j < 7: a("v_add_f32 v9, v9, v6")
        a("s_nop 0")
        for q in range(4): a(f"v_cvt_pk_bf16_f32 v{b+q}, v{16+2*q}, v{17+2*q}")
    if TBP >= 0: a("s_barrier")
    for ks in range(8):
        b = 32 + 4*ks
        a(f"buffer_store_dwordx4 {vr(b,4)}, v10, s[28:31], s44 offen offset:{1024*(ks%4)}{SC1}")
        if ks == 3: a("s_add_u32 s44, s44, 4096")
    a("s_branch K1_DONE\nK1_GEMM:")
    a(f'''
    s_and_b32 s57, s26, 1
    s_lshr_b32 s58, s26, 1
    v_and_b32 v6, 31, v0
    v_lshrrev_b32 v7, 5, v0
    s_lshl_b32 s49, s57, 5
    v_add_u32 v8, s49, v6
    v_bfe_u32 v9, v8, 1, 3
    v_xor_b32 v9, v9, v7
    ''')
    for ks in range(4):
        a(f'''
        v_xor_b32 v10, {2*ks}, v9
        v_lshlrev_b32 v10, 4, v10
        v_lshl_add_u32 v{96+ks}, v8, 7, v10
        v_add_u32 v{100+ks}, 0x10000, v{96+ks}
        ''')
    a('''
    v_bfe_u32 v8, v0, 2, 2
    v_lshl_add_u32 v9, v7, 3, v8
    v_bfe_u32 v10, v0, 4, 1
    v_lshlrev_b32 v10, 1, v10
    v_bfe_u32 v11, v0, 1, 1
    v_add_u32 v10, v10, v11
    s_lshl_b32 s49, s58, 2
    v_add_u32 v10, s49, v10
    v_lshlrev_b32 v8, 2, v8
    v_xor_b32 v10, v10, v8
    v_lshlrev_b32 v10, 4, v10
    v_lshl_add_u32 v10, v9, 8, v10
    v_and_b32 v11, 1, v0
    v_lshl_add_u32 v104, v11, 3, v10
    v_add_u32 v105, 0x10000, v104
    s_waitcnt lgkmcnt(0)
    s_mov_b32 s28, s24
    s_mov_b32 s29, s25
    s_mov_b32 s30, 14680064
    s_mov_b32 s31, 0x20000
    ''')
    a(f"""
    s_lshl_b32 s60, s41, 3
    s_lshl_b32 s61, s58, 1
    s_add_u32 s60, s60, s61
    s_lshl_b32 s60, s60, 6
    s_lshl_b32 s61, s40, 2
    s_add_u32 s61, s61, s57
    s_add_u32 s60, s60, s61
    s_lshl_b32 s67, s41, 2
    s_add_u32 s67, s67, s42
    s_lshl_b32 s67, s67, 4
    s_add_u32 s67, s67, s40
    s_lshl_b32 s67, s67, 6
    s_add_u32 s67, s67, {FLG_P1}
    s_and_b32 s66, s40, {DEFER}
    s_cmp_eq_u32 s42, 0
    s_cselect_b32 s66, 0, s66
    """)
    a('''
    s_cmp_ge_u32 s42, 2
    s_cbranch_scc1 K1_LOOP_XW
    ''')
    def reads(slot, ks, fs):
        b = 16 + 12*fs
        hi = slot >= 2
        so = (slot & 1)*32768
        xa = (100 if hi else 96) + ks
        wa = 105 if hi else 104
        a(f'''
        ds_read_b128 {vr(b,4)}, v{xa} offset:{so}
        ds_read_b64_tr_b16 {vr(b+8,2)}, v{wa} offset:{so+16384+ks*4096}
        ds_read_b64_tr_b16 {vr(b+10,2)}, v{wa} offset:{so+16384+ks*4096+1024}
        ds_read_b128 {vr(b+4,4)}, v{xa} offset:{so+8192}
        ''')
    def mfmas(wx, fs, first):
        b = 16 + 12*fs
        for T in range(2):
            d = vr(64+16*T, 16); c = '0' if first else d
            x = vr(b+4*T, 4); w = vr(b+8, 4)
            a(f'v_mfma_f32_32x32x16_bf16 {d}, {w if wx else x}, {x if wx else w}, {c}')
    def loop(wx):
        def enter(c):
            a('s_barrier')
            if c == 0: a.stamp(2)
            if P1PROF and c in (1,2,3,4,6): a.stamp({1:5,2:6,3:7,4:8,6:9}[c])
        enter(0)
        reads(0, 0, 0); reads(0, 1, 1)
        for i in range(32):
            n = i + 2
            if n < 32:
                if n % 4 == 0: enter(n // 4)
                reads((n // 4) % 4, n % 4, n % 4)
            a(f's_waitcnt lgkmcnt({8 if n < 32 else (4 if n == 32 else 0)})')
            mfmas(wx, i % 4, i == 0)
        a.stamp(3)
    def pack():
        for T in range(2):
            for hh in range(2):
                b = 64 + 16*T + 8*hh
                for i in range(4): a(f'v_cvt_pk_bf16_f32 v{PKD+(2*T+hh)*4+i}, v{b+2*i}, v{b+2*i+1}')
    def offs(f):
        for T in range(2):
            for hh in range(2): a(f's_add_u32 s{62+2*T+hh}, s60, {f(T, hh)}')
    loop(True)
    a(f"""
    s_cmp_eq_u32 s42, 0
    s_cbranch_scc0 K1_EPI_K
    s_lshl_b32 s60, s60, 10
    v_lshlrev_b32 v142, 4, v0
    s_mov_b32 s61, {f2u(QSCALE)}
    """)
    offs(lambda T, hh: QF_OFF + hh*65536 + T*2048)
    a('s_nop 2')
    for r in range(32): a(f'v_mul_f32 v{64+r}, s61, v{64+r}')
    a(f"""
    s_branch K1_PACK
    K1_EPI_K:
    s_lshl_b32 s60, s60, 11
    v_and_b32 v1, 0x33, v0
    v_bfe_u32 v2, v0, 2, 1
    v_bfe_u32 v3, v0, 3, 1
    v_lshl_add_u32 v1, v2, 3, v1
    v_lshl_add_u32 v1, v3, 2, v1
    v_lshlrev_b32 v142, 4, v1
    """)
    offs(lambda T, hh: KV_OFF + hh*131072 + T*4096)
    a('s_branch K1_PACK')
    a('K1_LOOP_XW:')
    loop(False)
    a(f"""
    s_lshl_b32 s60, s60, 11
    v_and_b32 v1, 15, v0
    v_lshlrev_b32 v1, 4, v1
    v_bfe_u32 v2, v0, 4, 1
    v_lshl_add_u32 v1, v2, 17, v1
    v_lshl_add_u32 v142, v7, 8, v1
    """)
    offs(lambda T, f: KV_OFF + 1024 + f*512 + T*4096)
    a('s_nop 1\nK1_PACK:')
    pack()
    a('s_cmp_lg_u32 s66, 0\ns_cbranch_scc1 K1_DONE')
    p1_stores(a)
    a('K1_DONE:')

def p1_stores(a):
    for k in range(4): a(f'buffer_store_dwordx4 {vr(PKD+4*k,4)}, v142, s[28:31], s{62+k} offen{SC1}')

def arrive_deferred(a, tag):
    a(f"""
    s_waitcnt vmcnt(0)
    s_mov_b64 exec, 1
    ds_add_rtn_u32 v44, v46, v{ONE} offset:{DCNT-MSK}
    v_mov_b32 v45, s27
    v_mov_b32 v43, 0
    s_waitcnt lgkmcnt(0)
    v_cmp_eq_u32 vcc, 7, v44
    s_mov_b32 s66, 0
    s_cbranch_vccz {tag}
    buffer_store_dword v45, v43, s[28:31], s67 offen sc1
    {tag}:
    s_mov_b64 exec, -1
    """)

def attention(a):
    a(f"""
    s_and_b32 s40, s2, 7
    s_lshr_b32 s41, s2, 3
    s_lshl_b32 s40, s40, 2
    s_lshr_b32 s45, s41, 3
    s_add_u32 s40, s40, s45
    s_and_b32 s41, s41, 7
    s_and_b32 s33, s26, 3
    s_lshr_b32 s34, s26, 2
    s_lshl_b32 s35, s41, 3
    s_lshl_b32 s36, s33, 1
    s_add_u32 s35, s35, s36
    v_lshlrev_b32 v36, 4, v0
    v_and_b32 v39, 15, v0
    v_lshrrev_b32 v38, 5, v0
    v_lshlrev_b32 v39, 4, v39
    v_lshl_add_u32 v39, v38, 8, v39
    v_bfe_u32 v38, v0, 4, 1
    v_lshl_add_u32 v39, v38, 18, v39
    v_and_b32 v41, 27, v0
    v_cmp_eq_u32 vcc, 16, v41
    v_add_u32 v{VA0}, 1024, v39
    v_add_u32 v{VB0}, 1536, v39
    v_mov_b32 v41, 2048
    v_mov_b32 v{IDX}, 0xdddddddd
    v_cndmask_b32 v{VA0}, v{VA0}, v41, vcc
    v_cndmask_b32 v{VB0}, v{VB0}, v41, vcc
    s_mov_b32 s42, 0
    s_mov_b32 s32, 0xffff0003
    s_lshl_b32 s36, s33, 11
    s_add_u32 s36, s36, {QST}
    v_add_u32 v41, s36, v36
    v_mov_b32 v46, {MSK}
    s_lshl_b32 s36, s33, 2
    s_add_u32 s36, s36, {QCNT}
    v_mov_b32 v{QC}, s36
    v_mov_b32 v{ONE}, 1
    """)
    def zero_acc():
        for r in range(16):
            a(f'v_mov_b32 v{OA+r}, 0'); a(f'v_mov_b32 v{OB+r}, 0')
        for r in range(4): a(f'v_mov_b32 v{VF[1][1]+r}, 0')
    zero_acc()
    a('s_waitcnt vmcnt(0)')
    a.stamp(4)
    a('s_barrier')
    a('s_barrier')
    if not P1PROF: a.stamp(5)
    a(f"""
    ds_read_b128 {vr(QA,4)}, v41
    ds_read_b128 {vr(QB,4)}, v41 offset:1024
    ds_read_b128 {vr(KF,4)}, v36
    ds_read_b32 v44, v46 offset:16
    s_cmp_eq_u32 s66, 0
    s_cbranch_scc1 K2_NODEF
    """)
    p1_stores(a)
    a(f"""
    K2_NODEF:
    s_waitcnt lgkmcnt(0)
    v_mfma_f32_32x32x16_bf16 {vr(SA,16)}, {vr(KF,4)}, {vr(QA,4)}, 0
    v_mfma_f32_32x32x16_bf16 {vr(SB,16)}, {vr(KF,4)}, {vr(QB,4)}, 0
    v_readfirstlane_b32 s27, v44
    s_cmp_lg_u32 s34, 0
    s_cbranch_scc1 K2_FILL
    s_setprio {MAINPRIO}
    s_nop 6
    s_branch K2_GO
    K2_FILL:
    s_nop 7
    s_cmp_eq_u32 s66, 0
    s_cbranch_scc1 K2_GO
    """)
    arrive_deferred(a, 'K2_AD0')
    a('K2_GO:')
    def rowmax(S, dst, acc=False):
        if not acc:
            a(f'v_max3_f32 v{dst}, v{S}, v{S+1}, v{S+2}')
            for i in range(3, 15, 2): a(f'v_max3_f32 v{dst}, v{dst}, v{S+i}, v{S+i+1}')
            a(f'v_max_f32 v{dst}, v{dst}, v{S+15}')
        else:
            for i in range(0, 16, 2): a(f'v_max3_f32 v{dst}, v{dst}, v{S+i}, v{S+i+1}')
    def xhalf(r, t):
        a(f'''
        v_mov_b32 v{t}, v{r}
        s_nop 1
        v_permlane32_swap_b32 v{r}, v{t}
        s_nop 1
        v_max_f32 v{r}, v{r}, v{t}
        ''')
    rowmax(SA, 41); rowmax(SB, 42); xhalf(41, 43); xhalf(42, 44)
    a(f'''
    v_mov_b32 v43, {f2u(-BIAS)}
    v_sub_f32 v41, v43, v41
    v_sub_f32 v42, v43, v42
    K2_RESTART:
    s_mul_i32 s44, s34, {4*TS}
    v_add_u32 v{KA}, s44, v{KA0}
    v_add_u32 v{VA}, s44, v{VA0}
    v_add_u32 v{VB}, s44, v{VB0}
    ds_read_b128 {vr(KF,4)}, v{KA}
    ds_read_b128 {vr(VF[0][0],4)}, v{VA}
    ds_read_b128 {vr(VF[0][1],4)}, v{VB}
    ''')
    for r in range(16):
        a(f'v_mov_b32 v{MA+r}, v41'); a(f'v_mov_b32 v{MB+r}, v42')
    for r in range(8, 16): a(f'v_mov_b32 v{SB+r}, 0')
    a(f'''
    s_waitcnt lgkmcnt(0)
    v_mfma_f32_32x32x16_bf16 {vr(SA,16)}, {vr(KF,4)}, {vr(QA,4)}, {vr(MA,16)}
    s_nop 10
    ''')
    if not P1PROF: a.stamp(6)
    a(f'''
    s_branch K2_LOOP
    K2_SPIN:
    ds_read_b64 v[44:45], v46
    s_waitcnt lgkmcnt(0)
    v_and_b32 v44, v44, v45
    s_nop 0
    v_readfirstlane_b32 s32, v44
    s_or_b32 s32, s32, 0xffff0000
    s_bitcmp1_b32 s32, s43
    s_cbranch_scc0 K2_SPIN
    s_branch K2_READY
    K2_BACK:
    s_cmp_eq_u32 s66, 0
    s_cbranch_scc1 K2_LOOP
    ''')
    arrive_deferred(a, 'K2_AD1')
    a(f'''
    K2_LOOP:
    ''')
    def ex(S, lo, hi):
        for i in range(lo, hi): a(f'v_exp_f32 v{S+i}, v{S+i}')
    def tile(j):
        vs, vp = VF[j & 1], VF[(j+1) & 1]
        ex(SA, 0, 2)
        a(f'v_smfmac_f32_32x32x32_bf16 {vr(OB,16)}, {vr(vp[1],4)}, {vr(SB+8,8)}, v{IDX}')
        ex(SA, 2, 5)
        a(f'v_mfma_f32_32x32x16_bf16 {vr(SB,16)}, {vr(KF,4)}, {vr(QB,4)}, {vr(MB,16)}')
        o = (j+1)*TS
        if j == 3:
            o = 0
            a(f"""
            s_min_u32 s44, s43, 15
            s_mulk_i32 s44, {4*TS}
            s_bitcmp1_b32 s32, s43
            s_cbranch_scc0 K2_SPIN
            K2_READY:
            v_add_u32 v{KA}, s44, v{KA0}
            v_add_u32 v{VA}, s44, v{VA0}
            v_add_u32 v{VB}, s44, v{VB0}
            """)
        a(f"""
        ds_read_b128 {vr(KF,4)}, v{KA} offset:{o}
        ds_read_b128 {vr(vp[0],4)}, v{VA} offset:{o}
        ds_read_b128 {vr(vp[1],4)}, v{VB} offset:{o}
        """)
        if j == 2: a(f's_mov_b64 exec, 1\nds_add_rtn_u32 v43, v{QC}, v{ONE}\ns_mov_b64 exec, -1')
        ex(SA, 5, 10)
        a(f'v_smfmac_f32_32x32x32_bf16 {vr(OA,16)}, {vr(vs[0],4)}, {vr(SA,8)}, v{IDX}')
        ex(SA, 10, 16)
        ex(SB, 0, 2)
        a(f'v_smfmac_f32_32x32x32_bf16 {vr(OA,16)}, {vr(vs[1],4)}, {vr(SA+8,8)}, v{IDX}')
        ex(SB, 2, 5)
        a('s_waitcnt lgkmcnt(0)')
        a(f'v_mfma_f32_32x32x16_bf16 {vr(SA,16)}, {vr(KF,4)}, {vr(QA,4)}, {vr(MA,16)}')
        ex(SB, 5, 10)
        a(f'v_smfmac_f32_32x32x32_bf16 {vr(OB,16)}, {vr(vs[0],4)}, {vr(SB,8)}, v{IDX}')
        if j == 2: a('v_readfirstlane_b32 s43, v43')
        if j == 3: a('s_cmp_lt_u32 s43, 16')
        ex(SB, 10, 16)
    for j in range(4): tile(j)
    a(f'''
    s_cbranch_scc1 K2_BACK
    s_nop 1
    v_smfmac_f32_32x32x32_bf16 {vr(OB,16)}, {vr(VF[1][1],4)}, {vr(SB+8,8)}, v{IDX}
    ''')
    if not P1PROF: a.stamp(7)
    a(f'''
    s_setprio 0
    s_cmp_eq_u32 s66, 0
    s_cbranch_scc1 K2_NOAD
    ''')
    arrive_deferred(a, 'K2_AD2')
    a(f'''
    K2_NOAD:
    s_nop 1
    s_mul_i32 s44, s26, 2304
    s_add_u32 s44, s44, {CMB}
    v_add_u32 v45, s44, v36
    v_lshlrev_b32 v46, 2, v0
    v_add_u32 v46, s44, v46
    s_mov_b32 s44, {f2u(2.0**100)}
    s_mov_b32 s45, 0x7f800000
    s_mov_b32 s46, {f2u(2.0**-(BIAS+1))}
    s_mov_b32 s47, {f2u(2.0**-105)}
    s_cmp_lg_u32 s42, 0
    s_cbranch_scc1 K2_GOOD
    ''')
    for k, O in enumerate((OA, OB)):
        t = 43+k
        a(f'v_add_f32 v{t}, abs(v{O}), abs(v{O+1})')
        for i in range(2, 8): a(f'v_add_f32 v{t}, v{t}, abs(v{O+i})')
        a(f'''
        v_cmp_ngt_f32 s[48:49], s44, v{O+8}
        v_cmp_ngt_f32 s[50:51], s45, v{t}
        v_cmp_le_f32 s[52:53], s46, v{O+8}
        v_cmp_gt_f32 vcc, s47, v{t}
        s_or_b64 s[48:49], s[48:49], s[50:51]
        s_and_b64 vcc, vcc, s[52:53]
        s_or_b64 s[{54+2*k}:{55+2*k}], s[48:49], vcc
        ''')
    a(f'''
    s_or_b64 s[54:55], s[54:55], s[56:57]
    s_cbranch_scc0 K2_GOOD
    v_mov_b32 v43, {BADF}
    v_mov_b32 v44, 1
    ds_write_b32 v43, v44
    K2_GOOD:
    s_cmp_eq_u32 s34, 0
    s_cbranch_scc1 K2_SENDB
    ds_write_b128 v45, {vr(OA,4)}
    ds_write_b128 v45, {vr(OA+4,4)} offset:1024
    ds_write_b32 v46, v{OA+8} offset:2048
    s_waitcnt lgkmcnt(0)
    ''')
    for r in range(9): a(f'v_mov_b32 v{OA+r}, v{OB+r}')
    a(f'''
    v_subrev_u32 v45, {4*2304}, v45
    v_subrev_u32 v46, {4*2304}, v46
    s_branch K2_SENT
    K2_SENDB:
    ds_write_b128 v45, {vr(OB,4)}
    ds_write_b128 v45, {vr(OB+4,4)} offset:1024
    ds_write_b32 v46, v{OB+8} offset:2048
    v_add_u32 v45, {4*2304}, v45
    v_add_u32 v46, {4*2304}, v46
    K2_SENT:
    v_mov_b32 v43, {BADF}
    s_waitcnt lgkmcnt(0)
    s_barrier
    ds_read_b32 v44, v43
    ds_read_b128 {vr(SA,4)}, v45
    ds_read_b128 {vr(SA+4,4)}, v45 offset:1024
    ds_read_b32 v{SA+8}, v46 offset:2048
    s_add_u32 s36, s35, s34
    s_lshl_b32 s36, s36, 5
    s_add_u32 s36, s36, s40
    s_lshl_b32 s36, s36, 10
    s_add_u32 s36, s36, {OF_OFF}
    s_waitcnt lgkmcnt(3)
    v_readfirstlane_b32 s44, v44
    s_cmp_lt_u32 s42, s44
    s_cbranch_scc0 K2_COMBINE
    ''')
    a(f'''
    s_mov_b32 s42, 1
    v_mov_b32 v41, 0xff800000
    v_mov_b32 v42, 0xff800000
    s_mul_i32 s44, s34, {32*TS}
    v_add_u32 v45, s44, v{KA0}
    v_mov_b32 v43, 2
    ds_write_b32 v{QC}, v43
    s_mov_b32 s43, 32
    K2_MAXLOOP:
    ds_read_b128 {vr(KF,4)}, v45
    v_add_u32 v45, {TS}, v45
    s_waitcnt lgkmcnt(0)
    v_mfma_f32_32x32x16_bf16 {vr(SA,16)}, {vr(KF,4)}, {vr(QA,4)}, 0
    v_mfma_f32_32x32x16_bf16 {vr(SB,16)}, {vr(KF,4)}, {vr(QB,4)}, 0
    s_nop 11
    ''')
    rowmax(SA, 41, True); rowmax(SB, 42, True)
    a(f'''
    s_sub_u32 s43, s43, 1
    s_cmp_lg_u32 s43, 0
    s_cbranch_scc1 K2_MAXLOOP
    ''')
    xhalf(41, 43); xhalf(42, 44)
    a(f'''
    s_lshl_b32 s44, s26, 9
    v_lshlrev_b32 v43, 2, v0
    v_add_u32 v43, s44, v43
    v_xor_b32 v45, 0x800, v43
    v_add_u32 v43, {FX}, v43
    v_add_u32 v45, {FX}, v45
    ds_write_b32 v43, v41
    ds_write_b32 v43, v42 offset:256
    s_waitcnt lgkmcnt(0)
    s_barrier
    ds_read_b32 v44, v45
    ds_read_b32 v45, v45 offset:256
    s_waitcnt lgkmcnt(0)
    v_max_f32 v41, v41, v44
    v_max_f32 v42, v42, v45
    v_sub_f32 v41, 0, v41
    v_sub_f32 v42, 0, v42
    v_mov_b32 v46, {MSK}
    ''')
    zero_acc()
    a(f'''
    s_branch K2_RESTART
    K2_COMBINE:
    ''')
    if not P1PROF: a.stamp(8)
    srd(a, 48, 8, 0x80000)
    a(f'''
    v_lshrrev_b32 v3, 3, v0
    v_and_b32 v4, 7, v0
    v_and_b32 v5, 2, v3
    v_lshlrev_b32 v5, 1, v5
    v_xor_b32 v4, v4, v5
    v_lshlrev_b32 v4, 4, v4
    v_lshl_add_u32 v3, v3, 10, v4
    s_and_b32 s44, s40, 7
    s_lshl_b32 s45, s44, 7
    s_lshl_b32 s46, s26, 16
    s_add_u32 s45, s45, s46
    s_lshl_b32 s46, s26, 13
    s_waitcnt lgkmcnt(0)
    v_add_f32 v{OA+8}, v{OA+8}, v{SA+8}
    v_rcp_f32 v{OA+8}, v{OA+8}
    ''')
    for r in range(8): a(f'v_add_f32 v{OA+r}, v{OA+r}, v{SA+r}')
    for r in range(8): a(f'v_mul_f32 v{OA+r}, v{OA+r}, v{OA+8}')
    for i in range(4): a(f'v_cvt_pk_bf16_f32 v{SB+i}, v{OA+2*i}, v{OA+2*i+1}')
    a(f'buffer_store_dwordx4 {vr(SB,4)}, v36, s[28:31], s36 offen{SC1}')
    for i in range(8):
        a(f'''
        s_mov_b32 m0, s46
        s_add_u32 s46, s46, 1024
        buffer_load_dwordx4 v3, s[48:51], s45 offen lds
        s_add_u32 s45, s45, 8192
        ''')
    a(f'''
    s_lshl_b32 s45, s41, 2
    s_add_u32 s45, s45, s33
    s_lshl_b32 s45, s45, 5
    s_add_u32 s45, s45, s40
    s_lshl_b32 s45, s45, 1
    s_add_u32 s45, s45, s34
    s_lshl_b32 s45, s45, {OFS}
    s_add_u32 s45, s45, {FLG_O}
    v_mov_b32 v5, s27
    v_mov_b32 v6, 0
    s_waitcnt vmcnt(8)
    s_mov_b64 exec, 1
    buffer_store_dword v5, v6, s[28:31], s45 offen sc1
    s_mov_b64 exec, -1
    ''')

def oproj(a):
    srd(a, 52, 20, 0x400000)
    a(f'''
    v_lshlrev_b32 v2, 4, v0
    s_and_b32 s56, s26, 1
    s_lshr_b32 s57, s26, 1
    s_lshr_b32 s58, s40, 3
    s_lshl_b32 s59, s41, 2
    s_add_u32 s59, s59, s58
    v_lshrrev_b32 v7, 5, v0
    v_bfe_u32 v8, v0, 2, 2
    v_lshl_add_u32 v9, v7, 2, v8
    v_bfe_u32 v10, v0, 4, 1
    v_lshlrev_b32 v10, 1, v10
    v_bfe_u32 v11, v0, 1, 1
    v_add_u32 v10, v10, v11
    v_and_b32 v8, 2, v8
    v_lshlrev_b32 v8, 1, v8
    v_xor_b32 v10, v10, v8
    v_lshlrev_b32 v10, 4, v10
    v_lshl_add_u32 v10, v9, 7, v10
    v_and_b32 v11, 1, v0
    v_lshl_add_u32 v10, v11, 3, v10
    s_lshl_b32 s60, s57, 14
    v_add_u32 v10, s60, v10
    v_xor_b32 v11, 64, v10
    s_lshl_b32 s60, s59, {OFS+6}
    s_add_u32 s60, s60, {FLG_O}
    v_lshlrev_b32 v3, {OFS}, v0
    s_lshl_b32 s61, s59, 16
    s_lshl_b32 s62, s56, 15
    s_add_u32 s61, s61, s62
    s_lshl_b32 s62, s57, 13
    s_add_u32 s61, s61, s62
    s_add_u32 s61, s61, {OF_OFF}
    s_add_u32 s62, s61, 4096
    s_waitcnt vmcnt(1)
    s_barrier
    ''')
    for hd in range(8):
        for c in range(2):
            b = 64 + (hd*2+c)*4
            ad = 10 + c
            a(f'ds_read_b64_tr_b16 {vr(b,2)}, v{ad} offset:{hd*2048}')
            a(f'ds_read_b64_tr_b16 {vr(b+2,2)}, v{ad} offset:{hd*2048+1024}')
        if hd % 2 == 1 and hd < 7: a('s_waitcnt lgkmcnt(4)')
    a('s_cmp_lg_u32 s26, 0\ns_cbranch_scc1 K3_OK')
    poll(a, 'K3', 3, 12, 's60')
    a('s_barrier')
    if not P1PROF: a.stamp(9)
    for hd in range(8):
        a(f'buffer_load_dwordx4 {vr(16+4*hd,4)}, v2, s[28:31], s{61 + hd//4} offen offset:{(hd%4)*1024}{SC1}')
    a(f'''
    s_lshl_b32 s60, s56, 15
    s_add_u32 s60, s60, 65536
    s_lshl_b32 s63, s57, 11
    s_add_u32 s63, s63, s60
    v_add_u32 v13, s63, v2
    s_lshl_b32 s63, s57, 13
    s_add_u32 s63, s63, s60
    v_add_u32 v14, s63, v2
    v_and_b32 v15, 31, v0
    s_lshl_b32 s60, s59, 6
    s_lshl_b32 s63, s56, 5
    s_add_u32 s60, s60, s63
    v_add_u32 v15, s60, v15
    v_lshlrev_b32 v15, 11, v15
    v_lshl_add_u32 v15, v7, 4, v15
    s_lshl_b32 s60, s44, 7
    s_lshl_b32 s63, s57, 5
    s_add_u32 s60, s60, s63
    s_waitcnt lgkmcnt(0)
    ''')
    for hd in range(8):
        a(f's_waitcnt vmcnt({7-hd})')
        for c in range(2):
            d = vr(128+16*c, 16)
            a(f'v_mfma_f32_32x32x16_bf16 {d}, {vr(64+(hd*2+c)*4,4)}, {vr(16+4*hd,4)}, {"0" if hd == 0 else d}')
    a('s_nop 11')
    for g in range(4):
        a(f'ds_write_b128 v13, {vr(128+8*g,4)} offset:{g*8192}')
        a(f'ds_write_b128 v13, {vr(132+8*g,4)} offset:{g*8192+1024}')
    a('s_waitcnt lgkmcnt(0)\ns_barrier')
    for s in range(4):
        a(f'ds_read_b128 {vr(16+8*s,4)}, v14 offset:{s*2048}')
        a(f'ds_read_b128 {vr(20+8*s,4)}, v14 offset:{s*2048+1024}')
    a('s_waitcnt lgkmcnt(4)')
    for r in range(8): a(f'v_add_f32 v{16+r}, v{16+r}, v{24+r}')
    a('s_waitcnt lgkmcnt(0)')
    for r in range(8): a(f'v_add_f32 v{32+r}, v{32+r}, v{40+r}')
    for r in range(8): a(f'v_add_f32 v{16+r}, v{16+r}, v{32+r}')
    for i in range(4): a(f'v_cvt_pk_bf16_f32 v{48+i}, v{16+2*i}, v{17+2*i}')
    a(f'''
    s_nop 1
    v_permlane32_swap_b32 v48, v50
    v_permlane32_swap_b32 v49, v51
    s_nop 1
    buffer_store_dwordx4 v[48:51], v15, s[52:55], s60 offen{OST}
    ''')

def lds_sync(a, tag, off, n):
    a(f"""
    v_mov_b32 v137, 1
    s_mov_b64 exec, 1
    s_waitcnt lgkmcnt(0)
    ds_add_u32 v159, v137 offset:{off}
    s_mov_b64 exec, -1
    {tag}:
    ds_read_b32 v137, v159 offset:{off}
    s_waitcnt lgkmcnt(0)
    v_readfirstlane_b32 s44, v137
    s_cmp_ge_u32 s44, {n}
    s_cbranch_scc0 {tag}
    """)

def get_nonce(a, tag):
    a(f"""
    s_mov_b32 s68, {SPIN_MAX}
    {tag}_NSP:
    global_load_dword v8, v2, s[22:23] sc1
    s_sub_u32 s68, s68, 1
    s_waitcnt vmcnt(0)
    v_readfirstlane_b32 s27, v8
    s_cbranch_scc1 {tag}_NOK
    s_cmp_eq_u32 s27, 0
    s_cbranch_scc1 {tag}_NSP
    {tag}_NOK:
    """)

def fnet1(a):
    RE = [3, 4, 5, 8, 9, 10, 11, 12, 13]
    PK = 140
    a(f"""
    s_and_b32 s42, s33, 1
    s_lshr_b32 s64, s33, 1
    s_and_b32 s43, s2, 7
    s_lshl_b32 s43, s43, 3
    s_lshr_b32 s44, s2, 3
    s_add_u32 s43, s43, s44
    s_sub_u32 s43, s43, 24
    s_lshl_b32 s43, s43, 1
    s_add_u32 s43, s43, s64
    v_and_b32 v6, 31, v0
    v_lshrrev_b32 v7, 5, v0
    v_and_b32 v8, 15, v0
    s_lshl_b32 s45, s43, 3
    s_lshl_b32 s46, s42, 2
    s_add_u32 s45, s45, s46
    s_lshl_b32 s46, s33, 13
    s_lshl_b32 s65, s64, 13
    s_add_u32 s65, s65, 32768
    s_lshl_b32 s64, s64, 2
    v_add_u32 v159, s64, v1
    s_waitcnt lgkmcnt(0)
    """)
    srd(a, 56, 10, 0x200000)
    for p in range(4):
        base = p*2048
        a(f"""
        s_add_u32 m0, s46, {base}
        s_add_u32 s47, s45, {p}
        s_lshl_b32 s44, s47, 10
        buffer_load_dwordx4 v14, s[56:59], s44 offen lds
        s_sub_u32 s44, 2048, s47
        s_cmp_eq_u32 s47, 0
        s_cselect_b32 s44, 1024, s44
        s_add_u32 m0, s46, {base+1024}
        s_lshl_b32 s44, s44, 10
        buffer_load_dwordx4 v14, s[56:59], s44 offen lds
        """)
    a('s_barrier')
    srd(a, 28, 24, WS_USED)
    a(f"""
    s_mov_b32 s60, 0xffff0000
    s_mov_b32 s61, 0xffff0000
    s_mov_b32 s62, 0x80008000
    v_mov_b32 v138, s62
    v_cndmask_b32 v138, 0, v138, s[60:61]
    v_bfe_u32 v3, v0, 2, 2
    v_lshl_add_u32 v3, v7, 3, v3
    v_lshlrev_b32 v3, 6, v3
    v_bfe_u32 v4, v0, 4, 1
    v_lshl_add_u32 v3, v4, 5, v3
    v_and_b32 v5, 3, v0
    v_lshl_add_u32 v3, v5, 3, v3
    v_add_u32 v15, s46, v3
    v_lshlrev_b32 v136, 12, v4
    v_lshl_add_u32 v136, v8, 4, v136
    v_lshl_add_u32 v136, v7, 10, v136
    s_lshl_b32 s44, s42, 3
    s_add_u32 s44, s44, s65
    v_add_u32 v136, s44, v136
    v_lshlrev_b32 v158, 2, v8
    v_lshl_add_u32 v158, v7, 8, v158
    s_or_b32 s63, s43, s42
    v_cvt_f32_u32 v9, v8
    v_cvt_f32_u32 v10, v7
    v_cvt_f32_u32 v11, v6
    v_cvt_f32_u32 v12, v4
    v_mul_f32 v13, {f2u(1/16)}, v9
    v_mul_f32 v3, v9, v10
    v_mul_f32 v3, 0.5, v3
    """)
    for j_ in range(8):
        a(f"v_cos_f32 v{88+j_}, v3\nv_sin_f32 v{96+j_}, -v3\nv_add_f32 v3, v3, v13")
    for q in range(4):
        a(f"v_cvt_pk_bf16_f32 v{16+q}, v{88+2*q}, v{89+2*q}\nv_cvt_pk_bf16_f32 v{20+q}, v{96+2*q}, v{97+2*q}")
    a(f"""
    v_mul_f32 v13, {f2u(1/512)}, v9
    v_mul_f32 v5, 4.0, v13
    v_mul_f32 v3, v10, v5
    v_mul_f32 v12, {f2u(0.25)}, v12
    v_add_f32 v3, v3, v12
    """)
    for r in range(16):
        a(f"v_cos_f32 v{48+r}, v3\nv_sin_f32 v{64+r}, -v3\nv_add_f32 v3, v3, v13")
        if r % 4 == 3: a("v_add_f32 v3, v3, v5")
    a(f"""
    v_mul_f32 v13, {f2u(1/32)}, v11
    v_mul_f32 v5, 4.0, v13
    v_mul_f32 v3, v10, v5
    """)
    for r in range(16):
        a(f"v_cos_f32 v{88+r}, v3\nv_sin_f32 v{104+r}, v3\nv_add_f32 v3, v3, v13")
        if r % 4 == 3: a("v_add_f32 v3, v3, v5")
    for q in range(8):
        a(f"v_cvt_pk_bf16_f32 v{32+q}, v{88+2*q}, v{89+2*q}\nv_cvt_pk_bf16_f32 v{40+q}, v{104+2*q}, v{105+2*q}\nv_xor_b32 v{24+q}, v138, v{16+q}")
    a("s_waitcnt vmcnt(0)")
    for p in range(4):
        ad = 15
        o = p*2048
        a(f"""
        ds_read_b64_tr_b16 v[80:81], v{ad} offset:{o}
        ds_read_b64_tr_b16 v[82:83], v{ad} offset:{o+256}
        ds_read_b64_tr_b16 v[84:85], v{ad} offset:{o+1024}
        ds_read_b64_tr_b16 v[86:87], v{ad} offset:{o+1280}
        """)
        if p == 0:
            a('s_cmp_lg_u32 s63, 0\ns_cbranch_scc1 F1_G0')
            for r in range(8):
                a(f'v_cndmask_b32 v{24+r}, 0, v{16+r}, s[60:61]\nv_cndmask_b32 v{16+r}, v{16+r}, 0, s[60:61]')
            a('F1_G0:')
        a(f"""
        s_waitcnt lgkmcnt(0)
        v_mfma_f32_32x32x16_bf16 v[88:103], v[80:83], v[16:19], 0
        v_mfma_f32_32x32x16_bf16 v[104:119], v[80:83], v[20:23], 0
        v_mfma_f32_32x32x16_bf16 v[88:103], v[84:87], v[24:27], v[88:103]
        v_mfma_f32_32x32x16_bf16 v[104:119], v[84:87], v[28:31], v[104:119]
        s_nop 11
        """)
        for r in range(16):
            a(f"""
            v_mul_f32 v137, v{88+r}, v{64+r}
            v_mul_f32 v{88+r}, v{88+r}, v{48+r}
            v_fma_f32 v{88+r}, -v{104+r}, v{64+r}, v{88+r}
            v_fma_f32 v{104+r}, v{104+r}, v{48+r}, v137
            """)
        for r in range(8):
            a(f'v_cvt_pk_bf16_f32 v{120+r}, v{88+2*r}, v{89+2*r}\nv_cvt_pk_bf16_f32 v{128+r}, v{104+2*r}, v{105+2*r}')
        if p == 0:
            a('s_cmp_lg_u32 s63, 0\ns_cbranch_scc1 F1_G1')
            for r in range(8):
                a(f"""
                v_xor_b32 v137, s62, v{128+r}
                v_cndmask_b32 v{128+r}, v{128+r}, v{120+r}, s[60:61]
                v_cndmask_b32 v{120+r}, v{120+r}, v137, s[60:61]
                v_or_b32 v{16+r}, v{16+r}, v{24+r}
                v_xor_b32 v{24+r}, v138, v{16+r}
                """)
            a('F1_G1:')
        a(f"""
        s_nop 1
        v_mfma_f32_32x32x16_bf16 v[88:103], v[32:35], v[120:123], 0
        v_mfma_f32_32x32x16_bf16 v[88:103], v[36:39], v[124:127], v[88:103]
        v_mfma_f32_32x32x16_bf16 v[88:103], v[40:43], v[128:131], v[88:103]
        v_mfma_f32_32x32x16_bf16 v[88:103], v[44:47], v[132:135], v[88:103]
        s_nop 11
        """)
        if p == 0:
            a(f's_cmp_lg_u32 s63, 0\ns_cbranch_scc1 F1_G2\ns_mov_b32 s44, {AE1K_OFF}\ns_mov_b64 exec, s[60:61]')
            for r in range(8): a(f'buffer_store_dword v{88+r}, v158, s[28:31], s44 offen offset:{(r&3)*64+(r>>2)*512}{SC1}')
            a(f's_mov_b64 exec, 0x10000\nbuffer_store_dword v96, v158, s[28:31], s44 offen offset:1024{SC1}\ns_mov_b64 exec, -1\nF1_G2:')
        for r in range(9):
            if p % 2 == 0: a(f'v_mov_b32 v{RE[r]}, v{88+r}')
            else: a(f'v_cvt_pk_bf16_f32 v{PK+2*r+p//2}, v{RE[r]}, v{88+r}')
        if p == TBP: a('s_barrier')
    for r in range(8): a(f'ds_write_b64 v136, {vr(PK+2*r,2)} offset:{((r&3)+8*(r>>2))*256}')
    a(f's_mov_b64 exec, 1\nds_write_b64 v136, {vr(PK+16,2)} offset:4096\ns_mov_b64 exec, -1')
    lds_sync(a, 'F1_SB', F1C-SCR, 2)
    a(f"""
    s_lshl_b32 s44, s42, 12
    s_add_u32 s44, s44, s65
    v_add_u32 v3, s44, v14
    """)
    for q in range(4): a(f'ds_read_b128 {vr(16+4*q,4)}, v3 offset:{1024*q}')
    a(f"""
    v_lshlrev_b32 v4, 4, v6
    v_lshl_add_u32 v4, v7, 16, v4
    s_lshl_b32 s44, s43, 9
    s_lshl_b32 s45, s42, 19
    s_add_u32 s44, s44, s45
    s_add_u32 s44, s44, {AEF_OFF}
    """)
    for q in range(4):
        a(f's_waitcnt lgkmcnt({3-q})\nbuffer_store_dwordx4 {vr(16+4*q,4)}, v4, s[28:31], s44 offen{SC1}\ns_add_u32 s44, s44, 0x20000')
    get_nonce(a, 'F1')
    a(f"""
    s_lshl_b32 s44, s43, 6
    s_lshl_b32 s45, s42, 5
    s_add_u32 s44, s44, s45
    s_add_u32 s44, s44, {FLG_F1}
    s_mov_b64 exec, 1
    buffer_store_dword v8, v2, s[28:31], s44 offen sc1
    s_mov_b64 exec, -1
    """)

def background(a):
    ACC, EXT = 128, 144
    a(f"""
    K2_BG:
    s_setprio 2
    s_sub_u32 s33, s26, 8
    v_lshlrev_b32 v14, 4, v0
    v_mov_b32 v1, {SCR}
    v_mov_b32 v2, 0
    s_memrealtime s[60:61]
    v_cmp_gt_u32 vcc, 2, v0
    v_lshrrev_b32 v4, 2, v0
    v_lshl_add_u32 v5, v0, 2, v1
    v_cndmask_b32 v3, 0, 3, vcc
    v_cmp_eq_u32 vcc, 2, v4
    s_lshl_b32 s67, s41, 2
    s_add_u32 s67, s67, s42
    v_cndmask_b32 v3, v3, 2, vcc
    s_mov_b64 exec, 0xffff
    ds_write_b32 v5, v3
    s_mov_b64 exec, -1
    s_lshl_b32 s67, s67, 4
    s_add_u32 s67, s67, s40
    s_lshl_b32 s67, s67, 6
    s_add_u32 s67, s67, {FLG_P1}
    s_and_b32 s66, s40, {DEFER}
    s_cmp_eq_u32 s42, 0
    s_cselect_b32 s66, 0, s66
    s_or_b32 s66, s66, s33
    s_cmp_eq_u32 s42, 3
    s_cbranch_scc1 BG_F1
    """)
    p1_loader(a)
    a('s_branch BG_J1\nBG_F1:')
    fnet1(a)
    a(f"""
    s_mov_b32 s66, s33
    s_lshr_b32 s67, s43, 1
    s_lshl_b32 s67, s67, 6
    s_add_u32 s67, s67, {FLG_CS}
    BG_J1:
    """)
    srd(a, 28, 24, WS_USED)
    get_nonce(a, 'BG')
    a(f"""
    ds_write_b32 v1, v8 offset:16
    s_and_b32 s40, s2, 7
    s_lshr_b32 s41, s2, 3
    s_lshl_b32 s40, s40, 2
    s_lshr_b32 s45, s41, 3
    s_add_u32 s40, s40, s45
    s_and_b32 s41, s41, 7
    s_and_b32 s34, s33, 1
    s_lshr_b32 s50, s33, 1
    v_and_b32 v9, 15, v0
    v_lshlrev_b32 v9, 6, v9
    s_lshl_b32 s45, s34, 10
    s_add_u32 s45, s45, 1024
    v_add_u32 v9, s45, v9
    s_lshl_b32 s45, s41, 1
    s_add_u32 s45, s45, s50
    s_lshl_b32 s45, s45, 6
    v_mov_b32 v10, s45
    v_cmp_eq_u32 vcc, 16, v0
    s_lshr_b32 s45, s40, 3
    s_lshl_b32 s45, s45, 12
    s_add_u32 s45, s45, {FLG_P1}
    v_cndmask_b32 v9, v9, v10, vcc
    s_lshl_b32 s34, s34, 10
    s_lshl_b32 s35, s40, 17
    s_add_u32 s35, s35, s34
    s_add_u32 s35, s35, {KV_OFF}
    v_mul_u32_u24 v11, {TS}, v0
    v_mov_b32 v40, 0x3f803f80
    v_mov_b32 v41, v40
    v_mov_b32 v42, v40
    v_mov_b32 v43, v40
    s_lshr_b32 s48, s34, 8
    v_add_u32 v20, s48, v1
    s_lshl_b32 s36, s40, 6
    s_lshl_b32 s37, s41, 3
    s_add_u32 s36, s36, s37
    s_lshl_b32 s37, s33, 1
    s_add_u32 s36, s36, s37
    s_lshl_b32 s36, s36, 10
    s_lshl_b32 s37, s33, 11
    s_add_u32 s37, s37, {QST}
    s_lshl_b32 s48, s50, {GSH}
    s_lshl_b32 s53, 1, s48
    s_or_b32 s53, s53, 0x10000
    s_waitcnt lgkmcnt(0)
    """)
    a.stamp(1)
    a('s_barrier')
    a.stamp(2)
    a(f"""
    s_cmp_lg_u32 s66, 0
    s_cbranch_scc1 BG_NOFLAG
    s_mov_b64 exec, 1
    buffer_store_dword v8, v2, s[28:31], s67 offen sc1
    s_mov_b64 exec, -1
    BG_NOFLAG:
    ds_write_b128 v11, v[40:43] offset:2048
    s_mov_b32 s68, {SPIN_MAX}
    BG1_SP:
    buffer_load_dword v10, v9, s[28:31], s45 offen sc1
    s_sub_u32 s68, s68, 1
    s_waitcnt vmcnt(0)
    v_cmp_eq_u32 vcc, s27, v10
    s_cbranch_scc1 BG1_OK
    s_and_b32 s46, vcc_lo, s53
    s_cmp_eq_u32 s46, s53
    s_cbranch_scc0 BG1_SP
    BG1_OK:
    s_mov_b32 s46, vcc_lo
    """)
    a.stamp(3)
    def grp_issue():
        a(f"""
        s_mul_i32 s52, s50, {4*TS}
        s_add_u32 m0, s52, s34
        s_lshl_b32 s51, s48, 13
        s_add_u32 s51, s51, s35
        """)
        for t in range(4):
            a(f'buffer_load_dwordx4 v14, s[28:31], s51 offen{SC1} lds')
            if t < 3: a(f's_add_u32 m0, m0, {TS}\ns_add_u32 s51, s51, 2048')
    grp_issue()
    a(f"""
    s_mov_b32 m0, s37
    s_mov_b32 s49, 0
    buffer_load_dwordx4 v14, s[28:31], s36 offen{SC1} lds
    buffer_load_dwordx4 v14, s[28:31], s36 offen offset:1024{SC1} lds
    s_waitcnt vmcnt(0) lgkmcnt(0)
    s_barrier
    """)
    def publish():
        a('v_mov_b32 v21, s49\ns_mov_b64 exec, 1\nds_or_b32 v20, v21\ns_mov_b64 exec, -1')
    a(f"""
    BGL_LOOP:
    s_add_u32 s50, s50, 2
    s_and_b32 s48, s50, {(16 >> GSH) - 1}
    s_lshl_b32 s48, s48, {GSH}
    s_lshr_b32 s47, s50, {4 - GSH}
    s_add_u32 s48, s48, s47
    s_bitcmp1_b32 s46, s48
    s_cbranch_scc1 BGL_RDY
    s_waitcnt vmcnt(0)
    """)
    publish()
    a(f"""
    s_mov_b32 s68, {SPIN_MAX}
    BGL_SP:
    buffer_load_dword v10, v9, s[28:31], s45 offen sc1
    s_sub_u32 s68, s68, 1
    s_waitcnt vmcnt(0)
    v_cmp_eq_u32 vcc, s27, v10
    s_cbranch_scc1 BGL_RDY
    s_mov_b32 s46, vcc_lo
    s_bitcmp1_b32 s46, s48
    s_cbranch_scc0 BGL_SP
    BGL_RDY:
    """)
    grp_issue()
    a('s_waitcnt vmcnt(4)')
    publish()
    a(f"""
    s_lshl_b32 s49, 1, s50
    s_cmp_lt_u32 s50, 14
    s_cbranch_scc1 BGL_LOOP
    s_waitcnt vmcnt(0)
    """)
    publish()
    a(f'''
    s_lshr_b32 s34, s33, 1
    s_and_b32 s35, s33, 1
    s_cmp_eq_u32 s34, 0
    s_mov_b32 s37, {BOF_OFF}
    s_cselect_b32 s36, {AEF_OFF}, s37
    s_cselect_b32 s56, s41, s40
    s_xor_b32 s37, s36, {AEF_OFF ^ BOF_OFF}
    ''')
    srd(a, 52, 20, 0x400000)
    a(f'''
    v_and_b32 v6, 31, v0
    v_lshrrev_b32 v7, 5, v0
    s_lshl_b32 s47, s40, 1
    s_add_u32 s47, s47, s34
    s_lshl_b32 s48, s47, 16
    s_lshl_b32 s44, s35, 15
    s_add_u32 s48, s48, s44
    s_add_u32 s48, s48, {CSF_OFF}
    s_lshl_b32 s47, s47, 6
    s_add_u32 s47, s47, {FLG_CS}
    s_lshl_b32 s44, s41, 16
    s_lshl_b32 s45, s35, 15
    s_add_u32 s44, s44, s45
    v_add_u32 v12, s44, v14
    v_mov_b32 v10, 1
    v_mov_b32 v11, 0
    s_lshl_b32 s45, s35, 12
    s_add_u32 s45, s45, {FLG_F1}
    s_add_u32 s46, s45, 32
    v_lshlrev_b32 v9, 6, v0
    ''')
    for r in range(16): a(f'v_mov_b32 v{EXT+r}, 0')
    a.stamp(4)
    if os.environ.get('NOFNET'): a('s_branch K_END')
    poll(a, 'BG2', 9, 13, 's45')
    poll(a, 'BG3', 9, 13, 's46')
    poll(a, 'BG4', 11, 13, 's47')
    def fl(ks, ext):
        NS = 8 if ext else 12
        b = 16 + (12 if ext else 8)*(ks % NS)
        o = 1024*(ks % 4)
        a(f"""
        buffer_load_dwordx4 {vr(b,4)}, v14, s[28:31], s48 offen offset:{o}{SC1}
        buffer_load_dwordx4 {vr(b+4,4)}, v12, s[28:31], s36 offen offset:{o}{SC1}
        """)
        if ext: a(f'buffer_load_dwordx4 {vr(b+8,4)}, v12, s[28:31], s37 offen offset:{o}{SC1}')
        if ks % 4 == 3: a('s_add_u32 s48, s48, 4096\ns_add_u32 s36, s36, 4096' + ('\ns_add_u32 s37, s37, 4096' if ext else ''))
    def floop(ext):
        per = 3 if ext else 2
        NS = 8 if ext else 12
        for ks in range(NS): fl(ks, ext)
        for ks in range(32):
            b = 16 + (12 if ext else 8)*(ks % NS)
            rem = min(32, ks+NS) - ks - 1
            a(f's_waitcnt vmcnt({per*rem})')
            a(f'v_mfma_f32_32x32x16_bf16 {vr(ACC,16)}, {vr(b,4)}, {vr(b+4,4)}, {"0" if ks == 0 else vr(ACC,16)}')
            if ext: a(f'v_mfma_f32_32x32x16_bf16 {vr(EXT,16)}, {vr(b,4)}, {vr(b+8,4)}, {vr(EXT,16)}')
            if ks+NS < 32: fl(ks+NS, ext)
    a('s_cmp_eq_u32 s56, 0\ns_cbranch_scc1 BG_FEXT')
    floop(False)
    a('s_branch BG_FDONE\nBG_FEXT:')
    floop(True)
    a('BG_FDONE:')
    a.stamp(5)
    a(f'''
    s_lshl_b32 s44, s41, 7
    v_lshl_add_u32 v12, v6, 2, s44
    s_mov_b32 s44, {AE1K_OFF}
    v_mov_b32 v13, 1024
    s_mov_b32 s69, s44
    s_mul_i32 s44, s33, 3072
    s_add_u32 s44, s44, {FX}
    s_lshl_b32 s45, s35, 7
    s_lshl_b32 s46, s34, 8
    s_add_u32 s45, s45, s46
    s_add_u32 s45, s45, {FE}
    v_lshlrev_b32 v3, 6, v7
    v_add_u32 v3, s45, v3
    v_lshl_add_u32 v4, v6, 2, s45
    s_nop 3
    ''')
    for g in range(4):
        a(f'''
        s_sub_u32 s46, {g+3}, s33
        s_and_b32 s46, s46, 3
        s_cmp_eq_u32 s46, 3
        s_cselect_b64 exec, 0, -1
        s_lshl_b32 s46, s46, 10
        s_add_u32 s46, s46, s44
        v_add_u32 v2, s46, v14
        ds_write_b128 v2, {vr(ACC+4*g,4)}
        ''')
    a(f'''
    s_mov_b64 exec, -1
    s_cmp_eq_u32 s34, 0
    s_cbranch_scc0 BG_XQ
    s_mov_b32 exec_lo, 1
    s_mov_b32 exec_hi, 1
    ''')
    for i in range(4): a(f'ds_write_b128 v3, {vr(EXT+4*i,4)} offset:{16*i}')
    a(f'''
    s_branch BG_XD
    BG_XQ:
    s_mov_b32 exec_hi, 0
    ds_write_b32 v4, v{EXT}
    BG_XD:
    s_mov_b64 exec, 1
    s_waitcnt lgkmcnt(0)
    ds_add_u32 v1, v10 offset:12
    s_mov_b64 exec, -1
    s_cmp_lt_u32 s33, 2
    s_cbranch_scc1 BG_M01
    s_cmp_eq_u32 s33, 2
    s_cbranch_scc1 BG_M2
    ''')
    def mv(g):
        for i in range(4): a(f'v_mov_b32 v{20+i}, v{ACC+4*g+i}')
    mv(3); a('s_branch BG_MD\nBG_M2:'); mv(2); a('s_branch BG_MD\nBG_M01:\ns_cmp_eq_u32 s33, 0\ns_cbranch_scc1 BG_M0'); mv(1); a('s_branch BG_MD\nBG_M0:'); mv(0)
    a('BG_MD:')
    for j in range(1, 4):
        a(f'''
        s_add_u32 s46, s33, {j}
        s_and_b32 s46, s46, 3
        s_mul_i32 s46, s46, 3072
        s_add_u32 s46, s46, {FX + (3-j)*1024}
        v_add_u32 v{40+j}, s46, v14
        ''')
    a(f'''
    s_lshl_b32 s46, s33, 4
    s_add_u32 s46, s46, {FE}
    v_lshlrev_b32 v3, 6, v7
    v_add_u32 v3, s46, v3
    v_lshlrev_b32 v4, 2, v6
    v_add_u32 v4, {FE+256}, v4
    BG_FSPIN:
    ds_read_b32 v5, v1 offset:12
    s_waitcnt lgkmcnt(0)
    v_readfirstlane_b32 s46, v5
    s_cmp_ge_u32 s46, 4
    s_cbranch_scc0 BG_FSPIN
    buffer_load_dword v16, v12, s[28:31], s69 offen{SC1}
    buffer_load_dword v17, v13, s[28:31], s69 offen{SC1}
    ds_read_b128 v[24:27], v41
    ds_read_b128 v[28:31], v42
    ds_read_b128 v[32:35], v43
    ds_read_b128 v[44:47], v3
    ds_read_b128 v[48:51], v3 offset:128
    ds_read_b32 v52, v4
    ds_read_b32 v53, v4 offset:128
    s_and_b32 s46, s33, 1
    s_cmp_eq_u32 s46, 0
    s_cselect_b64 s[60:61], -1, 0
    s_cmp_eq_u32 s34, 0
    s_cselect_b64 s[62:63], -1, 0
    s_cmp_eq_u32 s41, 0
    s_cselect_b32 s64, 1, 0
    s_mov_b32 s65, s64
    s_or_b32 s46, s40, s33
    s_cmp_eq_u32 s46, 0
    s_cselect_b32 s66, -1, 0
    s_mov_b32 s67, 0
    s_lshl_b32 s46, s41, 5
    v_add_u32 v2, s46, v6
    v_sub_u32 v3, 512, v2
    v_mov_b32 v4, 256
    v_cndmask_b32 v3, v3, v4, s[64:65]
    v_lshlrev_b32 v2, 1, v2
    v_lshlrev_b32 v3, 1, v3
    v_add_u32 v2, 1024, v2
    v_add_u32 v3, 1024, v3
    s_lshl_b32 s46, s40, 5
    s_lshl_b32 s47, s33, 3
    s_add_u32 s46, s46, s47
    v_lshl_add_u32 v4, v7, 2, s46
    v_sub_u32 v5, {2048-3}, v4
    v_lshl_add_u32 v8, v4, 11, v2
    v_lshl_add_u32 v9, v4, 11, v3
    v_lshl_add_u32 v10, v5, 11, v2
    v_lshl_add_u32 v11, v5, 11, v3
    v_mov_b32 v4, {1024-3}
    v_cndmask_b32 v5, v5, v4, s[66:67]
    v_lshl_add_u32 v12, v5, 11, v2
    v_lshl_add_u32 v13, v5, 11, v3
    s_waitcnt vmcnt(0) lgkmcnt(0)
    ''')
    for i in range(4):
        a(f'''
        v_cndmask_b32 v36, v{32+i}, v{24+i}, s[60:61]
        v_cndmask_b32 v37, v{24+i}, v{32+i}, s[60:61]
        v_add_f32 v36, v36, v{20+i}
        v_add_f32 v37, v37, v{28+i}
        v_cndmask_b32 v{20+i}, v37, v36, s[62:63]
        v_cndmask_b32 v{24+i}, v36, v37, s[62:63]
        v_add_f32 v{44+i}, v{44+i}, v{48+i}
        ''')
        op = 'v_add_f32' if i % 2 == 0 else 'v_sub_f32'
        a(f'{op} v{20+i}, v{20+i}, v16\n{op} v{44+i}, v{44+i}, v17')
    a(f'''
    v_add_f32 v52, v52, v53
    v_add_f32 v52, v52, v16
    v_add_f32 v53, v24, v17
    v_cndmask_b32 v24, v24, 0, s[66:67]
    v_cndmask_b32 v53, v52, v53, s[64:65]
    ''')
    for i in range(4):
        t0 = 56 + 8*i
        a(f'''
        v_cndmask_b32 v{24+i}, v{24+i}, 0, s[64:65]
        v_sub_f32 v{t0}, v{20+i}, v{24+i}
        v_add_f32 v{t0+1}, v{20+i}, v{24+i}
        v_cndmask_b32 v{t0+2}, v{t0+1}, v{44+i}, s[64:65]
        v_cndmask_b32 v{t0+3}, v{t0}, v{44+i}, s[64:65]
        ''')
        if i == 0:
            a(f'''
            v_cndmask_b32 v{t0+1}, v{t0+1}, v52, s[66:67]
            v_cndmask_b32 v{t0+3}, v{t0+3}, v53, s[66:67]
            ''')
        a(f'''
        v_cvt_pk_bf16_f32 v{t0+4}, v{t0}, v{t0+1}
        v_cvt_pk_bf16_f32 v{t0+5}, v{t0+2}, v{t0+3}
        s_mov_b32 s46, {i*2048}
        s_mov_b32 s47, {(3-i)*2048}
        buffer_store_short v{t0+4}, v8, s[52:55], s46 offen{FST}
        buffer_store_short_d16_hi v{t0+4}, v{12 if i == 0 else 10}, s[52:55], s47 offen{FST}
        buffer_store_short v{t0+5}, v9, s[52:55], s46 offen{FST}
        buffer_store_short_d16_hi v{t0+5}, v{13 if i == 0 else 11}, s[52:55], s47 offen{FST}
        ''')

def fused():
    a = Asm()
    a('s_cmp_ge_u32 s2, 256\ns_cbranch_scc1 K_END')
    a.stamp(0)
    a(f'''
    s_load_dwordx8 s[4:11], s[0:1], 0
    s_load_dwordx8 s[12:19], s[0:1], 32
    s_load_dwordx4 s[20:23], s[0:1], 64
    s_load_dwordx2 s[24:25], s[0:1], 80
    v_lshrrev_b32 v1, 6, v0
    v_and_b32 v0, 63, v0
    s_and_b32 s44, s2, 7
    v_readfirstlane_b32 s26, v1
    s_lshr_b32 s45, s2, 3
    s_and_b32 s46, s45, 3
    s_lshl_b32 s40, s44, 1
    s_and_b32 s40, s40, 12
    s_add_u32 s40, s40, s46
    s_lshr_b32 s47, s45, 2
    s_lshr_b32 s42, s47, 1
    s_and_b32 s41, s44, 1
    s_lshl_b32 s41, s41, 1
    s_and_b32 s48, s47, 1
    s_add_u32 s41, s41, s48
    s_lshl_b32 s43, s46, 1
    s_add_u32 s43, s43, s47
    s_and_b32 s43, s43, {ROT}
    s_cmp_ge_u32 s26, 8
    s_cbranch_scc1 K2_BG
    ''')
    phase1(a)
    attention(a)
    oproj(a)
    if PROF: a('s_waitcnt vmcnt(0)')
    a.flush(0, 26)
    a('s_endpgm')
    a('.p2align 8')
    background(a)
    if PROF: a('s_waitcnt vmcnt(0)')
    a.stamp(6); a.flush(0, 26, grp=1)
    a('K_END:')
    a('s_endpgm')
    return header(NAME) + a.text(), kd(NAME, 160, 100)

if __name__ == '__main__':
    import sys
    c, d = fused()
    out = '; @launch grid=(256,1,1) block=(768,1,1) lds=163840\n.amdgcn_target "amdgcn-amd-amdhsa--gfx950"\n.text\n' + c + '.section .rodata,"a"\n' + d
    open(sys.argv[1], 'w').write(out)
```

```python
from common import *
NAME = 'concat_heads__mha_block__spectral_fnet__prompt_kernel'
FLG_P1 = 0x710000
FLG_F1 = 0x720000
FLG_CS = 0x728000
FLG_PZ = 0x738000
FLG_O  = 0x730000
TS = 2064
SCR = 64*TS
MSK, BADF, CNT_F, NONCE, DCNT, QCNT, F1C = SCR, SCR+8, SCR+12, SCR+16, SCR+20, SCR+32, SCR+48
CMB = SCR+256
QST = CMB
FX = CMB+18432
FE = FX+12288
BIAS = float(os.environ.get('BIAS', '88'))
SPIN_MAX = 1 << 16
KA, VA, IDX, VB = 1, 2, 3, 47
KA0, VA0, VB0, QC, ONE = 36, 16, 17, 18, 19
QA, QB = 4, 8
KF = 12
VF = [[20, 24], [28, 32]]
SA, SB, OA, OB, MA, MB = 48, 64, 80, 96, 112, 128
PKD = 144
SC1 = ' sc1'
FST = OST = ''
OFS = 3
ROT = int(os.environ.get('ROT', '6'))
DEFER = int(os.environ.get('DEFER', '3'))
GSH = 1 if DEFER == 1 else 2
P1PROF = int(os.environ.get('P1PROF', '0'))
TPOS = int(os.environ.get('TPOS', '8'))
EARLY = int(os.environ.get('EARLY', '0'))
MAINPRIO = int(os.environ.get('MAINPRIO', '1'))
assert FE + 512 <= 163840

def srd(a, d, lo, size):
    a(f's_mov_b32 s{d}, s{lo}\ns_mov_b32 s{d+1}, s{lo+1}\ns_mov_b32 s{d+2}, {size}\ns_mov_b32 s{d+3}, 0x20000')

def poll(a, tag, vaddr, vt, soff, mask=None):
    if mask: a(f's_mov_b64 exec, {mask}')
    a(f'''
    s_mov_b32 s68, {SPIN_MAX}
    {tag}_SP:
    buffer_load_dword v{vt}, v{vaddr}, s[28:31], {soff} offen sc1
    s_sub_u32 s68, s68, 1
    s_waitcnt vmcnt(0)
    v_cmp_ne_u32 vcc, s27, v{vt}
    s_cbranch_scc1 {tag}_OK
    s_cbranch_vccnz {tag}_SP
    {tag}_OK:
    ''')
    if mask: a('s_mov_b64 exec, -1')


def bg_init(a):
    a(f"""
    v_lshlrev_b32 v14, 4, v0
    v_mov_b32 v1, {SCR}
    v_mov_b32 v2, 0
    v_cmp_gt_u32 vcc, 2, v0
    v_lshrrev_b32 v4, 2, v0
    v_lshl_add_u32 v5, v0, 2, v1
    v_cndmask_b32 v3, 0, 3, vcc
    v_cmp_eq_u32 vcc, 2, v4
    s_lshl_b32 s67, s41, 2
    s_add_u32 s67, s67, s42
    v_cndmask_b32 v3, v3, 2, vcc
    s_mov_b64 exec, 0xffff
    ds_write_b32 v5, v3
    s_mov_b64 exec, -1
    s_lshl_b32 s67, s67, 4
    s_add_u32 s67, s67, s40
    s_lshl_b32 s67, s67, 6
    s_add_u32 s67, s67, {FLG_P1}
    s_and_b32 s66, s40, {DEFER}
    s_cmp_eq_u32 s42, 0
    s_cselect_b32 s66, 0, s66
    s_or_b32 s66, s66, s33
    """)

def p1_loader(a):
    a(f"""
    v_lshrrev_b32 v6, 3, v0
    v_and_b32 v8, 7, v0
    v_lshrrev_b32 v9, 4, v0
    v_xor_b32 v8, v8, v9
    v_lshlrev_b32 v8, 4, v8
    v_lshl_add_u32 v16, v6, 10, v8
    v_xor_b32 v17, 64, v16
    v_add_u32 v17, 0x2000, v17
    v_add_u32 v18, 0x4000, v16
    v_add_u32 v19, 0x4000, v17
    s_lshl_b32 s44, s40, 17
    s_lshl_b32 s45, s33, 15
    s_add_u32 s44, s44, s45
    v_mul_u32_u24 v7, 3072, v9
    v_and_b32 v8, 15, v0
    v_lshlrev_b32 v9, 2, v9
    v_xor_b32 v8, v8, v9
    v_lshl_add_u32 v20, v8, 4, v7
    v_add_u32 v21, {4*3072}, v20
    v_add_u32 v22, {8*3072}, v20
    v_add_u32 v23, {12*3072}, v20
    s_lshl_b32 s47, s42, 10
    s_lshl_b32 s48, s41, 8
    s_add_u32 s47, s47, s48
    s_mul_i32 s48, s33, {16*3072}
    s_add_u32 s47, s47, s48
    s_lshl_b32 s51, s33, 12
    s_waitcnt lgkmcnt(0)
    """)
    srd(a, 56, 4, 0x200000); srd(a, 36, 6, 0x180000)
    def issue(c):
        slot = c % 4
        a(f"""
        s_add_u32 s54, s43, {c}
        s_and_b32 s54, s54, 7
        s_lshl_b32 s55, s54, 7
        s_add_u32 s55, s55, s44
        s_mul_i32 s54, s54, {64*3072}
        s_add_u32 m0, s51, {slot*32768}
        s_add_u32 s54, s54, s47
        """)
        for j in range(4):
            a(f"""
            buffer_load_dwordx4 v{16+j}, s[56:59], s55 offen lds
            s_add_u32 m0, s51, {slot*32768+16384+j*1024}
            s_nop 0
            buffer_load_dwordx4 v{20+j}, s[36:39], s54 offen lds
            """)
            if j < 3: a(f"s_add_u32 m0, s51, {slot*32768+(j+1)*1024}\ns_nop 0")
    a.stamp(7)
    issue(0); issue(1)
    bg_init(a)
    a(f"""
    s_add_u32 s48, s2, s33
    s_cmp_lg_u32 s48, 0
    s_cbranch_scc1 BG_NONONCE
    s_memrealtime s[60:61]
    s_waitcnt lgkmcnt(0)
    s_or_b32 s60, s60, 1
    v_mov_b32 v8, s60
    s_mov_b64 exec, 1
    global_store_dword v2, v8, s[22:23] sc1
    s_mov_b64 exec, -1
    BG_NONONCE:
    """)
    for c in range(8):
        a(f"s_waitcnt vmcnt({8 if c < 7 else 0}){' lgkmcnt(0)' if c == 0 else ''}\ns_barrier")
        if c + 2 < 8: issue(c+2)

def phase1(a):
    a(f"""
    s_mov_b32 s66, 0
    v_mov_b32 v142, 0
    s_cmp_eq_u32 s42, 3
    s_cbranch_scc0 K1_GEMM
    s_waitcnt lgkmcnt(0)
    """)
    srd(a, 28, 24, WS_USED)
    a("s_barrier")
    a("s_branch K1_DONE\nK1_GEMM:")
    a(f'''
    s_and_b32 s57, s26, 1
    s_lshr_b32 s58, s26, 1
    v_and_b32 v6, 31, v0
    v_lshrrev_b32 v7, 5, v0
    s_lshl_b32 s49, s57, 5
    v_add_u32 v8, s49, v6
    v_bfe_u32 v9, v8, 1, 3
    v_xor_b32 v9, v9, v7
    ''')
    for ks in range(4):
        a(f'''
        v_xor_b32 v10, {2*ks}, v9
        v_lshlrev_b32 v10, 4, v10
        v_lshl_add_u32 v{96+ks}, v8, 7, v10
        v_add_u32 v{100+ks}, 0x10000, v{96+ks}
        ''')
    a('''
    v_bfe_u32 v8, v0, 2, 2
    v_lshl_add_u32 v9, v7, 3, v8
    v_bfe_u32 v10, v0, 4, 1
    v_lshlrev_b32 v10, 1, v10
    v_bfe_u32 v11, v0, 1, 1
    v_add_u32 v10, v10, v11
    s_lshl_b32 s49, s58, 2
    v_add_u32 v10, s49, v10
    v_lshlrev_b32 v8, 2, v8
    v_xor_b32 v10, v10, v8
    v_lshlrev_b32 v10, 4, v10
    v_lshl_add_u32 v10, v9, 8, v10
    v_and_b32 v11, 1, v0
    v_lshl_add_u32 v104, v11, 3, v10
    v_add_u32 v105, 0x10000, v104
    s_waitcnt lgkmcnt(0)
    s_mov_b32 s28, s24
    s_mov_b32 s29, s25
    s_mov_b32 s30, 14680064
    s_mov_b32 s31, 0x20000
    ''')
    a(f"""
    s_lshl_b32 s60, s41, 3
    s_lshl_b32 s61, s58, 1
    s_add_u32 s60, s60, s61
    s_lshl_b32 s60, s60, 6
    s_lshl_b32 s61, s40, 2
    s_add_u32 s61, s61, s57
    s_add_u32 s60, s60, s61
    s_lshl_b32 s67, s41, 2
    s_add_u32 s67, s67, s42
    s_lshl_b32 s67, s67, 4
    s_add_u32 s67, s67, s40
    s_lshl_b32 s67, s67, 6
    s_add_u32 s67, s67, {FLG_P1}
    s_and_b32 s66, s40, {DEFER}
    s_cmp_eq_u32 s42, 0
    s_cselect_b32 s66, 0, s66
    """)
    a('''
    s_cmp_ge_u32 s42, 2
    s_cbranch_scc1 K1_LOOP_XW
    ''')
    def reads(slot, ks, fs):
        b = 16 + 12*fs
        hi = slot >= 2
        so = (slot & 1)*32768
        xa = (100 if hi else 96) + ks
        wa = 105 if hi else 104
        a(f'''
        ds_read_b128 {vr(b,4)}, v{xa} offset:{so}
        ds_read_b64_tr_b16 {vr(b+8,2)}, v{wa} offset:{so+16384+ks*4096}
        ds_read_b64_tr_b16 {vr(b+10,2)}, v{wa} offset:{so+16384+ks*4096+1024}
        ds_read_b128 {vr(b+4,4)}, v{xa} offset:{so+8192}
        ''')
    def mfmas(wx, fs, first):
        b = 16 + 12*fs
        for T in range(2):
            d = vr(64+16*T, 16); c = '0' if first else d
            x = vr(b+4*T, 4); w = vr(b+8, 4)
            a(f'v_mfma_f32_32x32x16_bf16 {d}, {w if wx else x}, {x if wx else w}, {c}')
    def loop(wx):
        def enter(c):
            a('s_barrier')
            if c == 0: a.stamp(2)
            if P1PROF and c in (1,2,3,4,6): a.stamp({1:5,2:6,3:7,4:8,6:9}[c])
        enter(0)
        reads(0, 0, 0); reads(0, 1, 1)
        for i in range(32):
            n = i + 2
            if n < 32:
                if n % 4 == 0: enter(n // 4)
                reads((n // 4) % 4, n % 4, n % 4)
            a(f's_waitcnt lgkmcnt({8 if n < 32 else (4 if n == 32 else 0)})')
            mfmas(wx, i % 4, i == 0)
        a.stamp(3)
    def pack():
        for T in range(2):
            for hh in range(2):
                b = 64 + 16*T + 8*hh
                for i in range(4): a(f'v_cvt_pk_bf16_f32 v{PKD+(2*T+hh)*4+i}, v{b+2*i}, v{b+2*i+1}')
    def offs(f):
        for T in range(2):
            for hh in range(2): a(f's_add_u32 s{62+2*T+hh}, s60, {f(T, hh)}')
    loop(True)
    a(f"""
    s_cmp_eq_u32 s42, 0
    s_cbranch_scc0 K1_EPI_K
    s_lshl_b32 s60, s60, 10
    v_lshlrev_b32 v142, 4, v0
    s_mov_b32 s61, {f2u(QSCALE)}
    """)
    offs(lambda T, hh: QF_OFF + hh*65536 + T*2048)
    a('s_nop 2')
    for r in range(32): a(f'v_mul_f32 v{64+r}, s61, v{64+r}')
    a(f"""
    s_branch K1_PACK
    K1_EPI_K:
    s_lshl_b32 s60, s60, 11
    v_and_b32 v1, 0x33, v0
    v_bfe_u32 v2, v0, 2, 1
    v_bfe_u32 v3, v0, 3, 1
    v_lshl_add_u32 v1, v2, 3, v1
    v_lshl_add_u32 v1, v3, 2, v1
    v_lshlrev_b32 v142, 4, v1
    """)
    offs(lambda T, hh: KV_OFF + hh*131072 + T*4096)
    a('s_branch K1_PACK')
    a('K1_LOOP_XW:')
    loop(False)
    a(f"""
    s_lshl_b32 s60, s60, 11
    v_and_b32 v1, 15, v0
    v_lshlrev_b32 v1, 4, v1
    v_bfe_u32 v2, v0, 4, 1
    v_lshl_add_u32 v1, v2, 17, v1
    v_lshl_add_u32 v142, v7, 8, v1
    """)
    offs(lambda T, f: KV_OFF + 1024 + f*512 + T*4096)
    a('s_nop 1\nK1_PACK:')
    pack()
    a('s_cmp_lg_u32 s66, 0\ns_cbranch_scc1 K1_DONE')
    p1_stores(a)
    a('K1_DONE:')

def p1_stores(a):
    for k in range(4): a(f'buffer_store_dwordx4 {vr(PKD+4*k,4)}, v142, s[28:31], s{62+k} offen{SC1}')

def arrive_deferred(a, tag):
    a(f"""
    s_waitcnt vmcnt(0)
    s_mov_b64 exec, 1
    ds_add_rtn_u32 v44, v46, v{ONE} offset:{DCNT-MSK}
    v_mov_b32 v45, s27
    v_mov_b32 v43, 0
    s_waitcnt lgkmcnt(0)
    v_cmp_eq_u32 vcc, 7, v44
    s_mov_b32 s66, 0
    s_cbranch_vccz {tag}
    buffer_store_dword v45, v43, s[28:31], s67 offen sc1
    {tag}:
    s_mov_b64 exec, -1
    """)

def attention(a):
    a(f"""
    s_and_b32 s40, s2, 7
    s_lshr_b32 s41, s2, 3
    s_lshl_b32 s40, s40, 2
    s_lshr_b32 s45, s41, 3
    s_add_u32 s40, s40, s45
    s_and_b32 s41, s41, 7
    s_and_b32 s33, s26, 3
    s_lshr_b32 s34, s26, 2
    s_lshl_b32 s35, s41, 3
    s_lshl_b32 s36, s33, 1
    s_add_u32 s35, s35, s36
    v_lshlrev_b32 v36, 4, v0
    v_and_b32 v39, 15, v0
    v_lshrrev_b32 v38, 5, v0
    v_lshlrev_b32 v39, 4, v39
    v_lshl_add_u32 v39, v38, 8, v39
    v_bfe_u32 v38, v0, 4, 1
    v_lshl_add_u32 v39, v38, 18, v39
    v_and_b32 v41, 27, v0
    v_cmp_eq_u32 vcc, 16, v41
    v_add_u32 v{VA0}, 1024, v39
    v_add_u32 v{VB0}, 1536, v39
    v_mov_b32 v41, 2048
    v_mov_b32 v{IDX}, 0xdddddddd
    v_cndmask_b32 v{VA0}, v{VA0}, v41, vcc
    v_cndmask_b32 v{VB0}, v{VB0}, v41, vcc
    s_mov_b32 s42, 0
    s_mov_b32 s32, 0xffff0003
    s_lshl_b32 s36, s33, 11
    s_add_u32 s36, s36, {QST}
    v_add_u32 v41, s36, v36
    v_mov_b32 v46, {MSK}
    s_lshl_b32 s36, s33, 2
    s_add_u32 s36, s36, {QCNT}
    v_mov_b32 v{QC}, s36
    v_mov_b32 v{ONE}, 1
    """)
    def zero_acc():
        for r in range(0, 32, 2): a(f'v_mov_b64 {vr(OA+r,2)}, 0')
        for r in range(0, 4, 2): a(f'v_mov_b64 {vr(VF[1][1]+r,2)}, 0')
    zero_acc()
    a('s_waitcnt vmcnt(0)')
    a.stamp(4)
    a('s_barrier')
    a('s_barrier')
    if not P1PROF: a.stamp(5)
    a(f"""
    ds_read_b128 {vr(QA,4)}, v41
    ds_read_b128 {vr(QB,4)}, v41 offset:1024
    ds_read_b128 {vr(KF,4)}, v36
    ds_read_b32 v44, v46 offset:16
    s_cmp_eq_u32 s66, 0
    s_cbranch_scc1 K2_NODEF
    """)
    p1_stores(a)
    a(f"""
    K2_NODEF:
    s_waitcnt lgkmcnt(0)
    v_mfma_f32_32x32x16_bf16 {vr(SA,16)}, {vr(KF,4)}, {vr(QA,4)}, 0
    v_mfma_f32_32x32x16_bf16 {vr(SB,16)}, {vr(KF,4)}, {vr(QB,4)}, 0
    v_readfirstlane_b32 s27, v44
    s_cmp_lg_u32 s34, 0
    s_cbranch_scc1 K2_FILL
    s_setprio {MAINPRIO}
    s_nop 6
    s_branch K2_GO
    K2_FILL:
    s_nop 7
    s_cmp_eq_u32 s66, 0
    s_cbranch_scc1 K2_GO
    """)
    arrive_deferred(a, 'K2_AD0')
    a('K2_GO:')
    def rowmax(S, dst, acc=False):
        if not acc:
            a(f'v_max3_f32 v{dst}, v{S}, v{S+1}, v{S+2}')
            for i in range(3, 15, 2): a(f'v_max3_f32 v{dst}, v{dst}, v{S+i}, v{S+i+1}')
            a(f'v_max_f32 v{dst}, v{dst}, v{S+15}')
        else:
            for i in range(0, 16, 2): a(f'v_max3_f32 v{dst}, v{dst}, v{S+i}, v{S+i+1}')
    def xhalf(r, t):
        a(f'''
        v_mov_b32 v{t}, v{r}
        s_nop 1
        v_permlane32_swap_b32 v{r}, v{t}
        s_nop 1
        v_max_f32 v{r}, v{r}, v{t}
        ''')
    rowmax(SA, 41); rowmax(SB, 42); xhalf(41, 43); xhalf(42, 44)
    a(f'''
    v_mov_b32 v43, {f2u(-BIAS)}
    v_sub_f32 v41, v43, v41
    v_sub_f32 v42, v43, v42
    K2_RESTART:
    s_mul_i32 s44, s34, {4*TS}
    v_add_u32 v{KA}, s44, v{KA0}
    v_add_u32 v{VA}, s44, v{VA0}
    v_add_u32 v{VB}, s44, v{VB0}
    ds_read_b128 {vr(KF,4)}, v{KA}
    ds_read_b128 {vr(VF[0][0],4)}, v{VA}
    ds_read_b128 {vr(VF[0][1],4)}, v{VB}
    ''')
    a('v_mov_b32 v40, v41\nv_mov_b32 v43, v42')
    for r in range(0, 16, 2): a(f'v_mov_b64 {vr(MA+r,2)}, v[40:41]')
    for r in range(0, 16, 2): a(f'v_mov_b64 {vr(MB+r,2)}, v[42:43]')
    for r in range(8, 16, 2): a(f'v_mov_b64 {vr(SB+r,2)}, 0')
    a(f'''
    s_waitcnt lgkmcnt(0)
    v_mfma_f32_32x32x16_bf16 {vr(SA,16)}, {vr(KF,4)}, {vr(QA,4)}, {vr(MA,16)}
    s_nop 10
    ''')
    if not P1PROF: a.stamp(6)
    a(f'''
    s_branch K2_LOOP
    K2_SPIN:
    {'s_memrealtime s[96:97]' if PROF else ''}
    K2_SPIN2:
    ds_read_b64 v[44:45], v46
    s_waitcnt lgkmcnt(0)
    v_and_b32 v44, v44, v45
    s_nop 0
    v_readfirstlane_b32 s32, v44
    s_or_b32 s32, s32, 0xffff0000
    s_bitcmp1_b32 s32, s43
    s_cbranch_scc0 K2_SPIN2
    {'s_memrealtime s[98:99]' if PROF else ''}
    {'s_waitcnt lgkmcnt(0)' if PROF else ''}
    {'s_sub_u32 s98, s98, s96' if PROF else ''}
    {'s_add_u32 s76, s76, s98' if PROF else ''}
    s_branch K2_READY
    K2_BACK:
    s_cmp_eq_u32 s66, 0
    s_cbranch_scc1 K2_LOOP
    ''')
    arrive_deferred(a, 'K2_AD1')
    a(f'''
    K2_LOOP:
    ''')
    def ex(S, lo, hi):
        for i in range(lo, hi): a(f'v_exp_f32 v{S+i}, v{S+i}')
    def tile(j):
        vs, vp = VF[j & 1], VF[(j+1) & 1]
        ex(SA, 0, 2)
        a(f'v_smfmac_f32_32x32x32_bf16 {vr(OB,16)}, {vr(vp[1],4)}, {vr(SB+8,8)}, v{IDX}')
        ex(SA, 2, 5)
        a(f'v_mfma_f32_32x32x16_bf16 {vr(SB,16)}, {vr(KF,4)}, {vr(QB,4)}, {vr(MB,16)}')
        o = (j+1)*TS
        if j == 3:
            o = 0
            a(f"""
            s_min_u32 s44, s43, 15
            s_mulk_i32 s44, {4*TS}
            s_bitcmp1_b32 s32, s43
            s_cbranch_scc0 K2_SPIN
            K2_READY:
            v_add_u32 v{KA}, s44, v{KA0}
            v_add_u32 v{VA}, s44, v{VA0}
            v_add_u32 v{VB}, s44, v{VB0}
            """)
        a(f"""
        ds_read_b128 {vr(KF,4)}, v{KA} offset:{o}
        ds_read_b128 {vr(vp[0],4)}, v{VA} offset:{o}
        ds_read_b128 {vr(vp[1],4)}, v{VB} offset:{o}
        """)
        if j == 2: a(f's_mov_b64 exec, 1\nds_add_rtn_u32 v43, v{QC}, v{ONE}\ns_mov_b64 exec, -1')
        ex(SA, 5, 10)
        a(f'v_smfmac_f32_32x32x32_bf16 {vr(OA,16)}, {vr(vs[0],4)}, {vr(SA,8)}, v{IDX}')
        ex(SA, 10, 16)
        ex(SB, 0, 2)
        a(f'v_smfmac_f32_32x32x32_bf16 {vr(OA,16)}, {vr(vs[1],4)}, {vr(SA+8,8)}, v{IDX}')
        ex(SB, 2, 5)
        a('s_waitcnt lgkmcnt(0)')
        a(f'v_mfma_f32_32x32x16_bf16 {vr(SA,16)}, {vr(KF,4)}, {vr(QA,4)}, {vr(MA,16)}')
        ex(SB, 5, 10)
        a(f'v_smfmac_f32_32x32x32_bf16 {vr(OB,16)}, {vr(vs[0],4)}, {vr(SB,8)}, v{IDX}')
        if j == 2: a('v_readfirstlane_b32 s43, v43')
        if j == 3: a('s_cmp_lt_u32 s43, 16')
        ex(SB, 10, 16)
    for j in range(4): tile(j)
    a(f'''
    s_cbranch_scc1 K2_BACK
    s_nop 1
    v_smfmac_f32_32x32x32_bf16 {vr(OB,16)}, {vr(VF[1][1],4)}, {vr(SB+8,8)}, v{IDX}
    ''')
    if not P1PROF: a.stamp(7)
    a(f'''
    s_setprio 0
    s_cmp_eq_u32 s66, 0
    s_cbranch_scc1 K2_NOAD
    ''')
    arrive_deferred(a, 'K2_AD2')
    a(f'''
    K2_NOAD:
    s_nop 1
    s_mul_i32 s44, s26, 2304
    s_add_u32 s44, s44, {CMB}
    v_add_u32 v45, s44, v36
    v_lshlrev_b32 v46, 2, v0
    v_add_u32 v46, s44, v46
    s_mov_b32 s44, {f2u(2.0**100)}
    s_mov_b32 s45, 0x7f800000
    s_mov_b32 s46, {f2u(2.0**-(BIAS+1))}
    s_mov_b32 s47, {f2u(2.0**-105)}
    s_cmp_lg_u32 s42, 0
    s_cbranch_scc1 K2_GOOD
    ''')
    for k, O in enumerate((OA, OB)):
        t = 43+k
        a(f'v_add_f32 v{t}, abs(v{O}), abs(v{O+1})')
        for i in range(2, 8): a(f'v_add_f32 v{t}, v{t}, abs(v{O+i})')
        a(f'''
        v_cmp_ngt_f32 s[48:49], s44, v{O+8}
        v_cmp_ngt_f32 s[50:51], s45, v{t}
        v_cmp_le_f32 s[52:53], s46, v{O+8}
        v_cmp_gt_f32 vcc, s47, v{t}
        s_or_b64 s[48:49], s[48:49], s[50:51]
        s_and_b64 vcc, vcc, s[52:53]
        s_or_b64 s[{54+2*k}:{55+2*k}], s[48:49], vcc
        ''')
    a(f'''
    s_or_b64 s[54:55], s[54:55], s[56:57]
    s_cbranch_scc0 K2_GOOD
    v_mov_b32 v43, {BADF}
    v_mov_b32 v44, 1
    ds_write_b32 v43, v44
    K2_GOOD:
    s_cmp_eq_u32 s34, 0
    s_cbranch_scc1 K2_SENDB
    ds_write_b128 v45, {vr(OA,4)}
    ds_write_b128 v45, {vr(OA+4,4)} offset:1024
    ds_write_b32 v46, v{OA+8} offset:2048
    s_waitcnt lgkmcnt(0)
    ''')
    for r in range(9): a(f'v_mov_b32 v{OA+r}, v{OB+r}')
    a(f'''
    v_subrev_u32 v45, {4*2304}, v45
    v_subrev_u32 v46, {4*2304}, v46
    s_branch K2_SENT
    K2_SENDB:
    ds_write_b128 v45, {vr(OB,4)}
    ds_write_b128 v45, {vr(OB+4,4)} offset:1024
    ds_write_b32 v46, v{OB+8} offset:2048
    v_add_u32 v45, {4*2304}, v45
    v_add_u32 v46, {4*2304}, v46
    K2_SENT:
    v_mov_b32 v43, {BADF}
    s_waitcnt lgkmcnt(0)
    s_barrier
    ds_read_b32 v44, v43
    ds_read_b128 {vr(SA,4)}, v45
    ds_read_b128 {vr(SA+4,4)}, v45 offset:1024
    ds_read_b32 v{SA+8}, v46 offset:2048
    s_add_u32 s36, s35, s34
    s_lshl_b32 s36, s36, 5
    s_add_u32 s36, s36, s40
    s_lshl_b32 s36, s36, 10
    s_add_u32 s36, s36, {OF_OFF}
    s_waitcnt lgkmcnt(3)
    v_readfirstlane_b32 s44, v44
    s_cmp_lt_u32 s42, s44
    s_cbranch_scc0 K2_COMBINE
    ''')
    a(f'''
    s_mov_b32 s42, 1
    v_mov_b32 v41, 0xff800000
    v_mov_b32 v42, 0xff800000
    s_mul_i32 s44, s34, {32*TS}
    v_add_u32 v45, s44, v{KA0}
    v_mov_b32 v43, 2
    ds_write_b32 v{QC}, v43
    s_mov_b32 s43, 32
    K2_MAXLOOP:
    ds_read_b128 {vr(KF,4)}, v45
    v_add_u32 v45, {TS}, v45
    s_waitcnt lgkmcnt(0)
    v_mfma_f32_32x32x16_bf16 {vr(SA,16)}, {vr(KF,4)}, {vr(QA,4)}, 0
    v_mfma_f32_32x32x16_bf16 {vr(SB,16)}, {vr(KF,4)}, {vr(QB,4)}, 0
    s_nop 11
    ''')
    rowmax(SA, 41, True); rowmax(SB, 42, True)
    a(f'''
    s_sub_u32 s43, s43, 1
    s_cmp_lg_u32 s43, 0
    s_cbranch_scc1 K2_MAXLOOP
    ''')
    xhalf(41, 43); xhalf(42, 44)
    a(f'''
    s_lshl_b32 s44, s26, 9
    v_lshlrev_b32 v43, 2, v0
    v_add_u32 v43, s44, v43
    v_xor_b32 v45, 0x800, v43
    v_add_u32 v43, {FX}, v43
    v_add_u32 v45, {FX}, v45
    ds_write_b32 v43, v41
    ds_write_b32 v43, v42 offset:256
    s_waitcnt lgkmcnt(0)
    s_barrier
    ds_read_b32 v44, v45
    ds_read_b32 v45, v45 offset:256
    s_waitcnt lgkmcnt(0)
    v_max_f32 v41, v41, v44
    v_max_f32 v42, v42, v45
    v_sub_f32 v41, 0, v41
    v_sub_f32 v42, 0, v42
    v_mov_b32 v46, {MSK}
    ''')
    zero_acc()
    a(f'''
    s_branch K2_RESTART
    K2_COMBINE:
    ''')
    if not P1PROF: a.stamp(8)
    a(f'''
    s_and_b32 s44, s40, 7
    s_waitcnt lgkmcnt(0)
    v_add_f32 v{OA+8}, v{OA+8}, v{SA+8}
    v_rcp_f32 v{OA+8}, v{OA+8}
    ''')
    for r in range(8): a(f'v_add_f32 v{OA+r}, v{OA+r}, v{SA+r}')
    for r in range(8): a(f'v_mul_f32 v{OA+r}, v{OA+r}, v{OA+8}')
    for i in range(4): a(f'v_cvt_pk_bf16_f32 v{SB+i}, v{OA+2*i}, v{OA+2*i+1}')
    a(f'buffer_store_dwordx4 {vr(SB,4)}, v36, s[28:31], s36 offen{SC1}')
    a(f'''
    s_lshl_b32 s47, s41, 2
    s_add_u32 s47, s47, s33
    s_lshl_b32 s47, s47, 5
    s_add_u32 s47, s47, s40
    s_lshl_b32 s47, s47, 1
    s_add_u32 s47, s47, s34
    s_lshl_b32 s47, s47, {OFS}
    s_add_u32 s47, s47, {FLG_O}
    v_mov_b32 v5, s27
    v_mov_b32 v6, 0
    {'' if EARLY else 's_waitcnt vmcnt(0)'}
    s_mov_b64 exec, 1
    buffer_store_dword v5, v6, s[28:31], s47 offen sc1
    s_mov_b64 exec, -1
    ''')

def oproj(a):
    srd(a, 52, 20, 0x400000)
    a(f'''
    v_lshlrev_b32 v2, 4, v0
    s_and_b32 s56, s26, 1
    s_lshr_b32 s57, s26, 1
    s_lshr_b32 s58, s40, 3
    s_lshl_b32 s59, s41, 2
    s_add_u32 s59, s59, s58
    v_lshrrev_b32 v7, 5, v0
    v_bfe_u32 v8, v0, 2, 2
    v_lshl_add_u32 v9, v7, 2, v8
    v_bfe_u32 v10, v0, 4, 1
    v_lshlrev_b32 v10, 1, v10
    v_bfe_u32 v11, v0, 1, 1
    v_add_u32 v10, v10, v11
    v_and_b32 v8, 2, v8
    v_lshlrev_b32 v8, 1, v8
    v_xor_b32 v10, v10, v8
    v_lshlrev_b32 v10, 4, v10
    v_lshl_add_u32 v10, v9, 7, v10
    v_and_b32 v11, 1, v0
    v_lshl_add_u32 v10, v11, 3, v10
    s_lshl_b32 s60, s57, 14
    v_add_u32 v10, s60, v10
    v_xor_b32 v11, 64, v10
    s_lshl_b32 s61, s59, 16
    s_lshl_b32 s62, s56, 15
    s_add_u32 s61, s61, s62
    s_lshl_b32 s62, s57, 13
    s_add_u32 s61, s61, s62
    s_add_u32 s61, s61, {OF_OFF}
    s_add_u32 s62, s61, 4096
    s_barrier
    ''')
    for hd in range(8):
        for c in range(2):
            b = 64 + (hd*2+c)*4
            ad = 10 + c
            a(f'ds_read_b64_tr_b16 {vr(b,2)}, v{ad} offset:{hd*2048}')
            a(f'ds_read_b64_tr_b16 {vr(b+2,2)}, v{ad} offset:{hd*2048+1024}')
        if hd % 2 == 1 and hd < 7: a('s_waitcnt lgkmcnt(4)')
    a('s_barrier')
    if not P1PROF: a.stamp(9)
    def oloads():
        for hd in range(8):
            a(f'buffer_load_dwordx4 {vr(16+4*hd,4)}, v2, s[28:31], s{61 + hd//4} offen offset:{(hd%4)*1024}{SC1}')
    oloads()
    a(f'''
    s_lshl_b32 s60, s56, 15
    s_add_u32 s60, s60, 65536
    s_lshl_b32 s63, s57, 11
    s_add_u32 s63, s63, s60
    v_add_u32 v13, s63, v2
    s_lshl_b32 s63, s57, 13
    s_add_u32 s63, s63, s60
    v_add_u32 v14, s63, v2
    v_and_b32 v15, 31, v0
    s_lshl_b32 s60, s59, 6
    s_lshl_b32 s63, s56, 5
    s_add_u32 s60, s60, s63
    v_add_u32 v15, s60, v15
    v_lshlrev_b32 v15, 11, v15
    v_lshl_add_u32 v15, v7, 4, v15
    s_lshl_b32 s60, s44, 7
    s_lshl_b32 s63, s57, 5
    s_add_u32 s60, s60, s63
    s_waitcnt lgkmcnt(0)
    ''')
    a(f's_mov_b32 s68, {SPIN_MAX}\nK3_MM:')
    for hd in range(8):
        a(f's_waitcnt vmcnt({7-hd})')
        for c in range(2):
            d = vr(128+16*c, 16)
            a(f'v_mfma_f32_32x32x16_bf16 {d}, {vr(64+(hd*2+c)*4,4)}, {vr(16+4*hd,4)}, {"0" if hd == 0 else d}')
        if EARLY:
            b = 16+4*hd
            a(f'v_max3_u32 v12, v{b}, v{b+1}, {"v"+str(b) if hd == 0 else "v12"}\nv_max3_u32 v12, v{b+2}, v{b+3}, v12')
    if EARLY:
        a('v_cmp_eq_u32 vcc, -1, v12\ns_sub_u32 s68, s68, 1\ns_cbranch_scc1 K3_VOK\ns_cbranch_vccz K3_VOK')
        oloads()
        a('s_branch K3_MM\nK3_VOK:\ns_nop 6')
    else:
        a('s_nop 11')
    for g in range(4):
        a(f'ds_write_b128 v13, {vr(128+8*g,4)} offset:{g*8192}')
        a(f'ds_write_b128 v13, {vr(132+8*g,4)} offset:{g*8192+1024}')
    a('s_waitcnt lgkmcnt(0)\ns_barrier')
    for s in range(4):
        a(f'ds_read_b128 {vr(16+8*s,4)}, v14 offset:{s*2048}')
        a(f'ds_read_b128 {vr(20+8*s,4)}, v14 offset:{s*2048+1024}')
    a('s_waitcnt lgkmcnt(4)')
    for r in range(8): a(f'v_add_f32 v{16+r}, v{16+r}, v{24+r}')
    a('s_waitcnt lgkmcnt(0)')
    for r in range(8): a(f'v_add_f32 v{32+r}, v{32+r}, v{40+r}')
    for r in range(8): a(f'v_add_f32 v{16+r}, v{16+r}, v{32+r}')
    for i in range(4): a(f'v_cvt_pk_bf16_f32 v{48+i}, v{16+2*i}, v{17+2*i}')
    a(f'''
    s_nop 1
    v_permlane32_swap_b32 v48, v50
    v_permlane32_swap_b32 v49, v51
    s_nop 1
    buffer_store_dwordx4 v[48:51], v15, s[52:55], s60 offen{OST}
    ''')

def lds_sync(a, tag, off, n):
    a(f"""
    v_mov_b32 v137, 1
    s_mov_b64 exec, 1
    s_waitcnt lgkmcnt(0)
    ds_add_u32 v159, v137 offset:{off}
    s_mov_b64 exec, -1
    {tag}:
    ds_read_b32 v137, v159 offset:{off}
    s_waitcnt lgkmcnt(0)
    v_readfirstlane_b32 s44, v137
    s_cmp_ge_u32 s44, {n}
    s_cbranch_scc0 {tag}
    """)

def get_nonce(a, tag):
    a(f"""
    s_mov_b32 s68, {SPIN_MAX}
    {tag}_NSP:
    global_load_dword v8, v2, s[22:23] sc1
    s_sub_u32 s68, s68, 1
    s_waitcnt vmcnt(0)
    v_readfirstlane_b32 s27, v8
    s_cbranch_scc1 {tag}_NOK
    s_cmp_eq_u32 s27, 0
    s_cbranch_scc1 {tag}_NSP
    {tag}_NOK:
    """)

def fnet1(a):
    RE = [3, 4, 5, 8, 9, 10, 11, 12, 13]
    PK = 140
    a(f"""
    s_and_b32 s42, s33, 1
    s_lshr_b32 s64, s33, 1
    s_and_b32 s43, s2, 7
    s_lshl_b32 s43, s43, 3
    s_lshr_b32 s44, s2, 3
    s_add_u32 s43, s43, s44
    s_sub_u32 s43, s43, 24
    s_lshl_b32 s43, s43, 1
    s_add_u32 s43, s43, s64
    v_and_b32 v6, 31, v0
    v_lshrrev_b32 v7, 5, v0
    v_and_b32 v8, 15, v0
    s_lshl_b32 s45, s43, 3
    s_lshl_b32 s46, s42, 2
    s_add_u32 s45, s45, s46
    s_lshl_b32 s46, s33, 13
    s_lshl_b32 s65, s64, 13
    s_add_u32 s65, s65, 32768
    s_lshl_b32 s64, s64, 2
    v_add_u32 v159, s64, v1
    s_waitcnt lgkmcnt(0)
    """)
    srd(a, 56, 10, 0x200000)
    for p in range(4):
        base = p*2048
        a(f"""
        s_add_u32 m0, s46, {base}
        s_add_u32 s47, s45, {p}
        s_lshl_b32 s44, s47, 10
        buffer_load_dwordx4 v14, s[56:59], s44 offen lds
        s_sub_u32 s44, 2048, s47
        s_cmp_eq_u32 s47, 0
        s_cselect_b32 s44, 1024, s44
        s_add_u32 m0, s46, {base+1024}
        s_lshl_b32 s44, s44, 10
        buffer_load_dwordx4 v14, s[56:59], s44 offen lds
        """)
    a('s_barrier')
    srd(a, 28, 24, WS_USED)
    a(f"""
    s_mov_b32 s60, 0xffff0000
    s_mov_b32 s61, 0xffff0000
    s_mov_b32 s62, 0x80008000
    v_mov_b32 v138, s62
    v_cndmask_b32 v138, 0, v138, s[60:61]
    v_bfe_u32 v3, v0, 2, 2
    v_lshl_add_u32 v3, v7, 3, v3
    v_lshlrev_b32 v3, 6, v3
    v_bfe_u32 v4, v0, 4, 1
    v_lshl_add_u32 v3, v4, 5, v3
    v_and_b32 v5, 3, v0
    v_lshl_add_u32 v3, v5, 3, v3
    v_add_u32 v15, s46, v3
    v_lshlrev_b32 v136, 12, v4
    v_lshl_add_u32 v136, v8, 4, v136
    v_lshl_add_u32 v136, v7, 10, v136
    s_lshl_b32 s44, s42, 3
    s_add_u32 s44, s44, s65
    v_add_u32 v136, s44, v136
    v_lshlrev_b32 v158, 2, v8
    v_lshl_add_u32 v158, v7, 8, v158
    s_or_b32 s63, s43, s42
    v_cvt_f32_u32 v9, v8
    v_cvt_f32_u32 v10, v7
    v_cvt_f32_u32 v11, v6
    v_cvt_f32_u32 v12, v4
    v_mul_f32 v13, {f2u(1/16)}, v9
    v_mul_f32 v3, v9, v10
    v_mul_f32 v3, 0.5, v3
    """)
    for j_ in range(8):
        a(f"v_cos_f32 v{88+j_}, v3\nv_sin_f32 v{96+j_}, -v3\nv_add_f32 v3, v3, v13")
    for q in range(4):
        a(f"v_cvt_pk_bf16_f32 v{16+q}, v{88+2*q}, v{89+2*q}\nv_cvt_pk_bf16_f32 v{20+q}, v{96+2*q}, v{97+2*q}")
    a(f"""
    v_mul_f32 v13, {f2u(1/512)}, v9
    v_mul_f32 v5, 4.0, v13
    v_mul_f32 v3, v10, v5
    v_mul_f32 v12, {f2u(0.25)}, v12
    v_add_f32 v3, v3, v12
    """)
    for r in range(16):
        a(f"v_cos_f32 v{48+r}, v3\nv_sin_f32 v{64+r}, -v3\nv_add_f32 v3, v3, v13")
        if r % 4 == 3: a("v_add_f32 v3, v3, v5")
    a(f"""
    v_mul_f32 v13, {f2u(1/32)}, v11
    v_mul_f32 v5, 4.0, v13
    v_mul_f32 v3, v10, v5
    """)
    for r in range(16):
        a(f"v_cos_f32 v{88+r}, v3\nv_sin_f32 v{104+r}, v3\nv_add_f32 v3, v3, v13")
        if r % 4 == 3: a("v_add_f32 v3, v3, v5")
    for q in range(8):
        a(f"v_cvt_pk_bf16_f32 v{32+q}, v{88+2*q}, v{89+2*q}\nv_cvt_pk_bf16_f32 v{40+q}, v{104+2*q}, v{105+2*q}\nv_xor_b32 v{24+q}, v138, v{16+q}")
    a("s_waitcnt vmcnt(0)")
    for p in range(4):
        ad = 15
        o = p*2048
        a(f"""
        ds_read_b64_tr_b16 v[80:81], v{ad} offset:{o}
        ds_read_b64_tr_b16 v[82:83], v{ad} offset:{o+256}
        ds_read_b64_tr_b16 v[84:85], v{ad} offset:{o+1024}
        ds_read_b64_tr_b16 v[86:87], v{ad} offset:{o+1280}
        """)
        if p == 0:
            a('s_cmp_lg_u32 s63, 0\ns_cbranch_scc1 F1_G0')
            for r in range(8):
                a(f'v_cndmask_b32 v{24+r}, 0, v{16+r}, s[60:61]\nv_cndmask_b32 v{16+r}, v{16+r}, 0, s[60:61]')
            a('F1_G0:')
        a(f"""
        s_waitcnt lgkmcnt(0)
        v_mfma_f32_32x32x16_bf16 v[88:103], v[80:83], v[16:19], 0
        v_mfma_f32_32x32x16_bf16 v[104:119], v[80:83], v[20:23], 0
        v_mfma_f32_32x32x16_bf16 v[88:103], v[84:87], v[24:27], v[88:103]
        v_mfma_f32_32x32x16_bf16 v[104:119], v[84:87], v[28:31], v[104:119]
        s_nop 11
        """)
        for r in range(16):
            a(f"""
            v_mul_f32 v137, v{88+r}, v{64+r}
            v_mul_f32 v{88+r}, v{88+r}, v{48+r}
            v_fma_f32 v{88+r}, -v{104+r}, v{64+r}, v{88+r}
            v_fma_f32 v{104+r}, v{104+r}, v{48+r}, v137
            """)
        for r in range(8):
            a(f'v_cvt_pk_bf16_f32 v{120+r}, v{88+2*r}, v{89+2*r}\nv_cvt_pk_bf16_f32 v{128+r}, v{104+2*r}, v{105+2*r}')
        if p == 0:
            a('s_cmp_lg_u32 s63, 0\ns_cbranch_scc1 F1_G1')
            for r in range(8):
                a(f"""
                v_xor_b32 v137, s62, v{128+r}
                v_cndmask_b32 v{128+r}, v{128+r}, v{120+r}, s[60:61]
                v_cndmask_b32 v{120+r}, v{120+r}, v137, s[60:61]
                v_or_b32 v{16+r}, v{16+r}, v{24+r}
                v_xor_b32 v{24+r}, v138, v{16+r}
                """)
            a('F1_G1:')
        a(f"""
        s_nop 1
        v_mfma_f32_32x32x16_bf16 v[88:103], v[32:35], v[120:123], 0
        v_mfma_f32_32x32x16_bf16 v[88:103], v[36:39], v[124:127], v[88:103]
        v_mfma_f32_32x32x16_bf16 v[88:103], v[40:43], v[128:131], v[88:103]
        v_mfma_f32_32x32x16_bf16 v[88:103], v[44:47], v[132:135], v[88:103]
        s_nop 11
        """)
        if p == 0:
            a(f's_cmp_lg_u32 s63, 0\ns_cbranch_scc1 F1_G2\ns_mov_b32 s44, {AE1K_OFF}\ns_mov_b64 exec, s[60:61]')
            for r in range(8): a(f'buffer_store_dword v{88+r}, v158, s[28:31], s44 offen offset:{(r&3)*64+(r>>2)*512}{SC1}')
            a(f's_mov_b64 exec, 0x10000\nbuffer_store_dword v96, v158, s[28:31], s44 offen offset:1024{SC1}\ns_mov_b64 exec, -1\nF1_G2:')
        for r in range(9):
            if p % 2 == 0: a(f'v_mov_b32 v{RE[r]}, v{88+r}')
            else: a(f'v_cvt_pk_bf16_f32 v{PK+2*r+p//2}, v{RE[r]}, v{88+r}')
    for r in range(8): a(f'ds_write_b64 v136, {vr(PK+2*r,2)} offset:{((r&3)+8*(r>>2))*256}')
    a(f's_mov_b64 exec, 1\nds_write_b64 v136, {vr(PK+16,2)} offset:4096\ns_mov_b64 exec, -1')
    lds_sync(a, 'F1_SB', F1C-SCR, 2)
    a(f"""
    s_lshl_b32 s44, s42, 12
    s_add_u32 s44, s44, s65
    v_add_u32 v3, s44, v14
    """)
    for q in range(4): a(f'ds_read_b128 {vr(16+4*q,4)}, v3 offset:{1024*q}')
    a(f"""
    v_lshlrev_b32 v4, 4, v6
    v_lshl_add_u32 v4, v7, 16, v4
    s_lshl_b32 s44, s43, 9
    s_lshl_b32 s45, s42, 19
    s_add_u32 s44, s44, s45
    s_add_u32 s44, s44, {AEF_OFF}
    """)
    for q in range(4):
        a(f's_waitcnt lgkmcnt({3-q})\nbuffer_store_dwordx4 {vr(16+4*q,4)}, v4, s[28:31], s44 offen{SC1}\ns_add_u32 s44, s44, 0x20000')
    get_nonce(a, 'F1')
    a(f"""
    s_lshl_b32 s44, s43, 6
    s_lshl_b32 s45, s42, 5
    s_add_u32 s44, s44, s45
    s_add_u32 s44, s44, {FLG_F1}
    s_mov_b64 exec, 1
    buffer_store_dword v8, v2, s[28:31], s44 offen sc1
    s_mov_b64 exec, -1
    """)

def background(a):
    ACC, EXT = 128, 144
    a(f"""
    s_setprio 2
    s_sub_u32 s33, s26, 8
    s_cmp_eq_u32 s42, 3
    s_cbranch_scc1 BG_F1
    """)
    p1_loader(a)
    a('s_mov_b32 s65, 0\ns_branch BG_J1\nBG_F1:')
    bg_init(a)
    fnet1(a)
    a(f"""
    s_lshr_b32 s44, s43, 1
    s_lshr_b32 s45, s44, 1
    s_lshl_b32 s45, s45, 5
    v_add_u32 v6, s45, v6
    s_and_b32 s45, s44, 1
    s_mul_i32 s46, s45, {f2u(0.25)}
    v_mov_b32 v8, s46
    v_cmp_gt_u32 vcc, s45, v6
    v_mov_b32 v9, 1024
    s_lshl_b32 s46, s33, 5
    v_cndmask_b32 v6, v6, v9, vcc
    v_cndmask_b32 v8, v8, 0, vcc
    v_cvt_f32_u32 v6, v6
    v_mul_f32 v6, {f2u(1/2048)}, v6
    v_add_u32 v7, s46, v7
    v_lshlrev_b32 v7, 3, v7
    v_cvt_f32_u32 v7, v7
    v_fma_f32 v8, v6, v7, v8
    v_mul_f32 v7, {f2u(16.0)}, v6
    s_lshl_b32 s64, s44, 16
    s_lshl_b32 s46, s33, 14
    s_add_u32 s64, s64, s46
    s_add_u32 s64, s64, {CSF_OFF}
    s_lshl_b32 s65, s44, 6
    s_lshl_b32 s46, s33, 4
    s_add_u32 s65, s65, s46
    s_add_u32 s65, s65, {FLG_CS}
    s_mov_b32 s66, 1
    """)
    for ks in range(16):
        b = 64 + 4*ks
        a("v_fract_f32 v9, v8\nv_add_f32 v8, v8, v7")
        for j in range(8):
            a(f"v_cos_f32 v{16+j}, v9")
            if j < 7: a("v_add_f32 v9, v9, v6")
        a("s_nop 0")
        for q in range(4): a(f"v_cvt_pk_bf16_f32 v{b+q}, v{16+2*q}, v{17+2*q}")
    a('BG_J1:')
    srd(a, 28, 24, WS_USED)
    get_nonce(a, 'BG')
    a(f"""
    ds_write_b32 v1, v8 offset:16
    s_and_b32 s40, s2, 7
    s_lshr_b32 s41, s2, 3
    s_lshl_b32 s40, s40, 2
    s_lshr_b32 s45, s41, 3
    s_add_u32 s40, s40, s45
    s_and_b32 s41, s41, 7
    s_and_b32 s34, s33, 1
    s_lshr_b32 s50, s33, 1
    v_and_b32 v9, 15, v0
    v_lshlrev_b32 v9, 6, v9
    s_lshl_b32 s45, s34, 10
    s_add_u32 s45, s45, 1024
    v_add_u32 v9, s45, v9
    s_lshl_b32 s45, s41, 1
    s_add_u32 s45, s45, s50
    s_lshl_b32 s45, s45, 6
    v_mov_b32 v10, s45
    v_cmp_eq_u32 vcc, 16, v0
    s_lshr_b32 s45, s40, 3
    s_lshl_b32 s45, s45, 12
    s_add_u32 s45, s45, {FLG_P1}
    v_cndmask_b32 v9, v9, v10, vcc
    s_lshl_b32 s34, s34, 10
    s_lshl_b32 s35, s40, 17
    s_add_u32 s35, s35, s34
    s_add_u32 s35, s35, {KV_OFF}
    v_mul_u32_u24 v11, {TS}, v0
    v_mov_b32 v40, 0x3f803f80
    v_mov_b32 v41, v40
    v_mov_b32 v42, v40
    v_mov_b32 v43, v40
    s_lshr_b32 s48, s34, 8
    v_add_u32 v20, s48, v1
    s_lshl_b32 s36, s40, 6
    s_lshl_b32 s37, s41, 3
    s_add_u32 s36, s36, s37
    s_lshl_b32 s37, s33, 1
    s_add_u32 s36, s36, s37
    s_lshl_b32 s36, s36, 10
    s_lshl_b32 s37, s33, 11
    s_add_u32 s37, s37, {QST}
    s_lshl_b32 s48, s50, {GSH}
    s_lshl_b32 s53, 1, s48
    s_or_b32 s53, s53, 0x10000
    s_waitcnt lgkmcnt(0)
    """)
    a.stamp(1)
    a('s_barrier')
    a.stamp(2)
    a(f"""
    s_cmp_lg_u32 s66, 0
    s_cbranch_scc1 BG_NOFLAG
    s_mov_b64 exec, 1
    buffer_store_dword v8, v2, s[28:31], s67 offen sc1
    s_mov_b64 exec, -1
    BG_NOFLAG:
    ds_write_b128 v11, v[40:43] offset:2048
    s_mov_b32 s68, {SPIN_MAX}
    BG1_SP:
    buffer_load_dword v10, v9, s[28:31], s45 offen sc1
    s_sub_u32 s68, s68, 1
    s_waitcnt vmcnt(0)
    v_cmp_eq_u32 vcc, s27, v10
    s_cbranch_scc1 BG1_OK
    s_and_b32 s46, vcc_lo, s53
    s_cmp_eq_u32 s46, s53
    s_cbranch_scc0 BG1_SP
    BG1_OK:
    s_mov_b32 s46, vcc_lo
    """)
    a.stamp(3)
    def grp_issue():
        a(f"""
        s_mul_i32 s52, s50, {4*TS}
        s_add_u32 m0, s52, s34
        s_lshl_b32 s51, s48, 13
        s_add_u32 s51, s51, s35
        """)
        for t in range(4):
            a(f'buffer_load_dwordx4 v14, s[28:31], s51 offen{SC1} lds')
            if t < 3: a(f's_add_u32 m0, m0, {TS}\ns_add_u32 s51, s51, 2048')
    grp_issue()
    a(f"""
    s_mov_b32 m0, s37
    s_mov_b32 s49, 0
    buffer_load_dwordx4 v14, s[28:31], s36 offen{SC1} lds
    buffer_load_dwordx4 v14, s[28:31], s36 offen offset:1024{SC1} lds
    s_waitcnt vmcnt(0) lgkmcnt(0)
    s_barrier
    """)
    def publish():
        a('v_mov_b32 v21, s49\ns_mov_b64 exec, 1\nds_or_b32 v20, v21\ns_mov_b64 exec, -1')
    a(f"""
    BGL_LOOP:
    s_add_u32 s50, s50, 2
    s_and_b32 s48, s50, {(16 >> GSH) - 1}
    s_lshl_b32 s48, s48, {GSH}
    s_lshr_b32 s47, s50, {4 - GSH}
    s_add_u32 s48, s48, s47
    s_bitcmp1_b32 s46, s48
    s_cbranch_scc1 BGL_RDY
    s_waitcnt vmcnt(0)
    """)
    publish()
    a(f"""
    s_mov_b32 s68, {SPIN_MAX}
    BGL_SP:
    buffer_load_dword v10, v9, s[28:31], s45 offen sc1
    s_sub_u32 s68, s68, 1
    s_waitcnt vmcnt(0)
    v_cmp_eq_u32 vcc, s27, v10
    s_cbranch_scc1 BGL_RDY
    s_mov_b32 s46, vcc_lo
    s_bitcmp1_b32 s46, s48
    s_cbranch_scc0 BGL_SP
    BGL_RDY:
    """)
    grp_issue()
    a('s_waitcnt vmcnt(4)')
    publish()
    a(f"""
    s_cmp_eq_u32 s65, 0
    s_cbranch_scc1 BGL_NOTAB
    s_lshr_b32 s47, s50, 1
    s_cmp_lg_u32 s47, {TPOS // 2}
    s_cbranch_scc1 BGL_NOTAB
    """)
    for ks in range(16):
        a(f"buffer_store_dwordx4 {vr(64+4*ks,4)}, v14, s[28:31], s64 offen offset:{1024*(ks%4)}{SC1}")
        if ks % 4 == 3 and ks < 15: a("s_add_u32 s64, s64, 4096")
    a('BGL_NOTAB:')
    a(f"""
    s_lshl_b32 s49, 1, s50
    s_cmp_lt_u32 s50, 14
    s_cbranch_scc1 BGL_LOOP
    s_waitcnt vmcnt(0)
    """)
    publish()
    a(f"""
    s_cmp_eq_u32 s65, 0
    s_cbranch_scc1 BGL_NOFLG
    s_mov_b64 exec, 1
    buffer_store_dword v8, v2, s[28:31], s65 offen sc1
    s_mov_b64 exec, -1
    BGL_NOFLG:
    """)
    a(f'''
    s_lshr_b32 s34, s33, 1
    s_and_b32 s35, s33, 1
    s_cmp_eq_u32 s34, 0
    s_mov_b32 s37, {BOF_OFF}
    s_cselect_b32 s36, {AEF_OFF}, s37
    s_cselect_b32 s56, s41, s40
    s_xor_b32 s37, s36, {AEF_OFF ^ BOF_OFF}
    ''')
    srd(a, 52, 20, 0x400000)
    a(f'''
    v_and_b32 v6, 31, v0
    v_lshrrev_b32 v7, 5, v0
    s_lshl_b32 s47, s40, 1
    s_add_u32 s47, s47, s34
    s_lshl_b32 s48, s47, 16
    s_lshl_b32 s44, s35, 15
    s_add_u32 s48, s48, s44
    s_add_u32 s48, s48, {CSF_OFF}
    s_lshl_b32 s47, s47, 6
    s_lshl_b32 s49, s35, 5
    s_add_u32 s47, s47, s49
    s_add_u32 s47, s47, {FLG_CS}
    v_and_b32 v15, 1, v0
    v_lshlrev_b32 v15, 4, v15
    s_lshl_b32 s44, s41, 16
    s_lshl_b32 s45, s35, 15
    s_add_u32 s44, s44, s45
    v_add_u32 v12, s44, v14
    v_mov_b32 v10, 1
    v_mov_b32 v11, 0
    s_lshl_b32 s45, s35, 12
    s_add_u32 s45, s45, {FLG_F1}
    s_add_u32 s46, s45, 32
    v_lshlrev_b32 v9, 6, v0
    ''')
    for r in range(0, 16, 2): a(f'v_mov_b64 {vr(EXT+r,2)}, 0')
    a.stamp(4)
    if os.environ.get('NOFNET'): a('s_branch K_END')
    if EARLY:
        a(f"""
        s_lshl_b32 s57, s41, 2
        s_add_u32 s57, s57, s33
        s_lshl_b32 s58, s57, 16
        s_lshl_b32 s59, s40, 10
        s_add_u32 s58, s58, s59
        s_add_u32 s58, s58, {OF_OFF}
        s_add_u32 s59, s58, 0x8000
        v_mov_b32 v16, -1
        v_mov_b32 v17, -1
        v_mov_b32 v18, -1
        v_mov_b32 v19, -1
        buffer_store_dwordx4 v[16:19], v14, s[28:31], s58 offen sc1
        buffer_store_dwordx4 v[16:19], v14, s[28:31], s59 offen sc1
        s_lshl_b32 s57, s57, 5
        s_add_u32 s57, s57, s40
        s_lshl_b32 s57, s57, 4
        s_add_u32 s57, s57, {FLG_PZ}
        """)
    poll(a, 'BG2', 9, 13, 's45')
    if EARLY:
        a('v_mov_b32 v13, s27\ns_mov_b64 exec, 1\nbuffer_store_dword v13, v11, s[28:31], s57 offen sc1\ns_mov_b64 exec, -1')
    poll(a, 'BG3', 9, 13, 's46')
    poll(a, 'BG4', 15, 13, 's47')
    def fl(ks, ext):
        NS = 8 if ext else 12
        b = 16 + (12 if ext else 8)*(ks % NS)
        o = 1024*(ks % 4)
        a(f"""
        buffer_load_dwordx4 {vr(b,4)}, v14, s[28:31], s48 offen offset:{o}{SC1}
        buffer_load_dwordx4 {vr(b+4,4)}, v12, s[28:31], s36 offen offset:{o}{SC1}
        """)
        if ext: a(f'buffer_load_dwordx4 {vr(b+8,4)}, v12, s[28:31], s37 offen offset:{o}{SC1}')
        if ks % 4 == 3: a('s_add_u32 s48, s48, 4096\ns_add_u32 s36, s36, 4096' + ('\ns_add_u32 s37, s37, 4096' if ext else ''))
    def floop(ext):
        per = 3 if ext else 2
        NS = 8 if ext else 12
        for ks in range(NS): fl(ks, ext)
        for ks in range(32):
            b = 16 + (12 if ext else 8)*(ks % NS)
            rem = min(32, ks+NS) - ks - 1
            a(f's_waitcnt vmcnt({per*rem})')
            a(f'v_mfma_f32_32x32x16_bf16 {vr(ACC,16)}, {vr(b,4)}, {vr(b+4,4)}, {"0" if ks == 0 else vr(ACC,16)}')
            if ext: a(f'v_mfma_f32_32x32x16_bf16 {vr(EXT,16)}, {vr(b,4)}, {vr(b+8,4)}, {vr(EXT,16)}')
            if ks+NS < 32: fl(ks+NS, ext)
    a('s_cmp_eq_u32 s56, 0\ns_cbranch_scc1 BG_FEXT')
    floop(False)
    a('s_branch BG_FDONE\nBG_FEXT:')
    floop(True)
    a('BG_FDONE:')
    a.stamp(5)
    a(f'''
    s_lshl_b32 s44, s41, 7
    v_lshl_add_u32 v12, v6, 2, s44
    s_mov_b32 s44, {AE1K_OFF}
    v_mov_b32 v13, 1024
    s_mov_b32 s69, s44
    s_mul_i32 s44, s33, 3072
    s_add_u32 s44, s44, {FX}
    s_lshl_b32 s45, s35, 7
    s_lshl_b32 s46, s34, 8
    s_add_u32 s45, s45, s46
    s_add_u32 s45, s45, {FE}
    v_lshlrev_b32 v3, 6, v7
    v_add_u32 v3, s45, v3
    v_lshl_add_u32 v4, v6, 2, s45
    s_nop 3
    ''')
    for g in range(4):
        a(f'''
        s_sub_u32 s46, {g+3}, s33
        s_and_b32 s46, s46, 3
        s_cmp_eq_u32 s46, 3
        s_cselect_b64 exec, 0, -1
        s_lshl_b32 s46, s46, 10
        s_add_u32 s46, s46, s44
        v_add_u32 v2, s46, v14
        ds_write_b128 v2, {vr(ACC+4*g,4)}
        ''')
    a(f'''
    s_mov_b64 exec, -1
    s_cmp_eq_u32 s34, 0
    s_cbranch_scc0 BG_XQ
    s_mov_b32 exec_lo, 1
    s_mov_b32 exec_hi, 1
    ''')
    for i in range(4): a(f'ds_write_b128 v3, {vr(EXT+4*i,4)} offset:{16*i}')
    a(f'''
    s_branch BG_XD
    BG_XQ:
    s_mov_b32 exec_hi, 0
    ds_write_b32 v4, v{EXT}
    BG_XD:
    s_mov_b64 exec, 1
    s_waitcnt lgkmcnt(0)
    ds_add_u32 v1, v10 offset:12
    s_mov_b64 exec, -1
    s_cmp_lt_u32 s33, 2
    s_cbranch_scc1 BG_M01
    s_cmp_eq_u32 s33, 2
    s_cbranch_scc1 BG_M2
    ''')
    def mv(g):
        for i in range(4): a(f'v_mov_b32 v{20+i}, v{ACC+4*g+i}')
    mv(3); a('s_branch BG_MD\nBG_M2:'); mv(2); a('s_branch BG_MD\nBG_M01:\ns_cmp_eq_u32 s33, 0\ns_cbranch_scc1 BG_M0'); mv(1); a('s_branch BG_MD\nBG_M0:'); mv(0)
    a('BG_MD:')
    for j in range(1, 4):
        a(f'''
        s_add_u32 s46, s33, {j}
        s_and_b32 s46, s46, 3
        s_mul_i32 s46, s46, 3072
        s_add_u32 s46, s46, {FX + (3-j)*1024}
        v_add_u32 v{40+j}, s46, v14
        ''')
    a(f'''
    s_lshl_b32 s46, s33, 4
    s_add_u32 s46, s46, {FE}
    v_lshlrev_b32 v3, 6, v7
    v_add_u32 v3, s46, v3
    v_lshlrev_b32 v4, 2, v6
    v_add_u32 v4, {FE+256}, v4
    BG_FSPIN:
    ds_read_b32 v5, v1 offset:12
    s_waitcnt lgkmcnt(0)
    v_readfirstlane_b32 s46, v5
    s_cmp_ge_u32 s46, 4
    s_cbranch_scc0 BG_FSPIN
    buffer_load_dword v16, v12, s[28:31], s69 offen{SC1}
    buffer_load_dword v17, v13, s[28:31], s69 offen{SC1}
    ds_read_b128 v[24:27], v41
    ds_read_b128 v[28:31], v42
    ds_read_b128 v[32:35], v43
    ds_read_b128 v[44:47], v3
    ds_read_b128 v[48:51], v3 offset:128
    ds_read_b32 v52, v4
    ds_read_b32 v53, v4 offset:128
    ''')
    if EARLY:
        a(f"""
        s_lshr_b32 s46, s40, 3
        s_lshl_b32 s47, s41, 2
        s_add_u32 s46, s46, s47
        s_lshl_b32 s46, s46, 9
        s_add_u32 s46, s46, {FLG_PZ}
        v_lshlrev_b32 v2, 4, v6
        """)
        poll(a, 'BG5', 2, 3, 's46')
    a(f'''
    s_and_b32 s46, s33, 1
    s_cmp_eq_u32 s46, 0
    s_cselect_b64 s[60:61], -1, 0
    s_cmp_eq_u32 s34, 0
    s_cselect_b64 s[62:63], -1, 0
    s_cmp_eq_u32 s41, 0
    s_cselect_b32 s64, 1, 0
    s_mov_b32 s65, s64
    s_or_b32 s46, s40, s33
    s_cmp_eq_u32 s46, 0
    s_cselect_b32 s66, -1, 0
    s_mov_b32 s67, 0
    s_lshl_b32 s46, s41, 5
    v_add_u32 v2, s46, v6
    v_sub_u32 v3, 512, v2
    v_mov_b32 v4, 256
    v_cndmask_b32 v3, v3, v4, s[64:65]
    v_lshlrev_b32 v2, 1, v2
    v_lshlrev_b32 v3, 1, v3
    v_add_u32 v2, 1024, v2
    v_add_u32 v3, 1024, v3
    s_lshl_b32 s46, s40, 5
    s_lshl_b32 s47, s33, 3
    s_add_u32 s46, s46, s47
    v_lshl_add_u32 v4, v7, 2, s46
    v_sub_u32 v5, {2048-3}, v4
    v_lshl_add_u32 v8, v4, 11, v2
    v_lshl_add_u32 v9, v4, 11, v3
    v_lshl_add_u32 v10, v5, 11, v2
    v_lshl_add_u32 v11, v5, 11, v3
    v_mov_b32 v4, {1024-3}
    v_cndmask_b32 v5, v5, v4, s[66:67]
    v_lshl_add_u32 v12, v5, 11, v2
    v_lshl_add_u32 v13, v5, 11, v3
    s_waitcnt vmcnt(0) lgkmcnt(0)
    ''')
    for i in range(4):
        a(f'''
        v_cndmask_b32 v36, v{32+i}, v{24+i}, s[60:61]
        v_cndmask_b32 v37, v{24+i}, v{32+i}, s[60:61]
        v_add_f32 v36, v36, v{20+i}
        v_add_f32 v37, v37, v{28+i}
        v_cndmask_b32 v{20+i}, v37, v36, s[62:63]
        v_cndmask_b32 v{24+i}, v36, v37, s[62:63]
        v_add_f32 v{44+i}, v{44+i}, v{48+i}
        ''')
        op = 'v_add_f32' if i % 2 == 0 else 'v_sub_f32'
        a(f'{op} v{20+i}, v{20+i}, v16\n{op} v{44+i}, v{44+i}, v17')
    a(f'''
    v_add_f32 v52, v52, v53
    v_add_f32 v52, v52, v16
    v_add_f32 v53, v24, v17
    v_cndmask_b32 v24, v24, 0, s[66:67]
    v_cndmask_b32 v53, v52, v53, s[64:65]
    ''')
    for i in range(4):
        t0 = 56 + 8*i
        a(f'''
        v_cndmask_b32 v{24+i}, v{24+i}, 0, s[64:65]
        v_sub_f32 v{t0}, v{20+i}, v{24+i}
        v_add_f32 v{t0+1}, v{20+i}, v{24+i}
        v_cndmask_b32 v{t0+2}, v{t0+1}, v{44+i}, s[64:65]
        v_cndmask_b32 v{t0+3}, v{t0}, v{44+i}, s[64:65]
        ''')
        if i == 0:
            a(f'''
            v_cndmask_b32 v{t0+1}, v{t0+1}, v52, s[66:67]
            v_cndmask_b32 v{t0+3}, v{t0+3}, v53, s[66:67]
            ''')
        a(f'''
        v_cvt_pk_bf16_f32 v{t0+4}, v{t0}, v{t0+1}
        v_cvt_pk_bf16_f32 v{t0+5}, v{t0+2}, v{t0+3}
        s_mov_b32 s46, {i*2048}
        s_mov_b32 s47, {(3-i)*2048}
        buffer_store_short v{t0+4}, v8, s[52:55], s46 offen{FST}
        buffer_store_short_d16_hi v{t0+4}, v{12 if i == 0 else 10}, s[52:55], s47 offen{FST}
        buffer_store_short v{t0+5}, v9, s[52:55], s46 offen{FST}
        buffer_store_short_d16_hi v{t0+5}, v{13 if i == 0 else 11}, s[52:55], s47 offen{FST}
        ''')

def bg_tail(a):
    srd(a, 48, 8, 0x80000)
    a(f"""
    v_lshrrev_b32 v3, 3, v0
    v_and_b32 v4, 7, v0
    v_and_b32 v5, 2, v3
    v_lshlrev_b32 v5, 1, v5
    v_xor_b32 v4, v4, v5
    v_lshlrev_b32 v4, 4, v4
    v_lshl_add_u32 v3, v3, 10, v4
    s_and_b32 s44, s40, 7
    s_lshl_b32 s45, s44, 7
    s_lshl_b32 s46, s33, 17
    s_add_u32 s45, s45, s46
    """)
    for i in range(16):
        a(f'buffer_load_dwordx4 {vr(96+4*i,4)}, v3, s[48:51], s45 offen\ns_add_u32 s45, s45, 8192')
    a(f"""
    s_lshl_b32 s46, s33, 14
    v_add_u32 v4, s46, v14
    s_lshr_b32 s46, s40, 3
    s_lshl_b32 s47, s41, 2
    s_add_u32 s46, s46, s47
    s_lshl_b32 s46, s46, {OFS+6}
    s_add_u32 s46, s46, {FLG_O}
    v_lshlrev_b32 v5, {OFS}, v0
    s_waitcnt vmcnt(0)
    s_barrier
    ds_read_b32 v2, v1 offset:{BADF-SCR}
    s_waitcnt lgkmcnt(0)
    v_readfirstlane_b32 s47, v2
    s_cmp_eq_u32 s47, 0
    s_cbranch_scc1 BG_T1
    s_barrier
    s_barrier
    BG_T1:
    """)
    for i in range(16): a(f'ds_write_b128 v4, {vr(96+4*i,4)} offset:{1024*i}')
    a('s_waitcnt lgkmcnt(0)\ns_barrier\ns_cmp_lg_u32 s33, 0\ns_cbranch_scc1 K3_OK')
    poll(a, 'K3', 5, 6, 's46')
    a('s_barrier')

def fused():
    a = Asm()
    a('s_cmp_ge_u32 s2, 256\ns_cbranch_scc1 K_END')
    a.stamp(0)
    a(f'''
    s_load_dwordx8 s[4:11], s[0:1], 0
    s_load_dwordx4 s[20:23], s[0:1], 64
    s_load_dwordx2 s[24:25], s[0:1], 80
    v_lshrrev_b32 v1, 6, v0
    v_and_b32 v0, 63, v0
    s_and_b32 s44, s2, 7
    v_readfirstlane_b32 s26, v1
    s_lshr_b32 s45, s2, 3
    s_and_b32 s46, s45, 3
    s_lshl_b32 s40, s44, 1
    s_and_b32 s40, s40, 12
    s_add_u32 s40, s40, s46
    s_lshr_b32 s47, s45, 2
    s_lshr_b32 s42, s47, 1
    s_and_b32 s41, s44, 1
    s_lshl_b32 s41, s41, 1
    s_and_b32 s48, s47, 1
    s_add_u32 s41, s41, s48
    s_lshl_b32 s43, s46, 1
    s_add_u32 s43, s43, s47
    s_and_b32 s43, s43, {ROT}
    s_cmp_lt_u32 s26, 8
    s_cbranch_scc0 K_BG
    s_getpc_b64 s[44:45]
    PC_HERE:
    s_sub_u32 s44, s44, PC_HERE-{NAME}
    s_subb_u32 s45, s45, 0
    v_lshlrev_b32 v6, 7, v0
    s_lshl_b32 s47, s26, 13
    v_add_u32 v6, s47, v6
    v_min_u32 v6, K_END-{NAME}, v6
    global_load_dword v143, v6, s[44:45]
    s_branch K_MAIN
    K_BG:
    ''')
    background(a)
    if PROF: a('s_waitcnt vmcnt(0)')
    a.stamp(6)
    bg_tail(a)
    a.flush(0, 26, grp=1)
    a('s_endpgm')
    a('.p2align 6')
    a('K_MAIN:')
    phase1(a)
    attention(a)
    oproj(a)
    if PROF: a('s_waitcnt vmcnt(0)')
    a.flush(0, 26)
    a('K_END:')
    a('s_endpgm')
    return header(NAME) + a.text(), kd(NAME, 160, 100)

if __name__ == '__main__':
    import sys
    c, d = fused()
    out = '; @launch grid=(256,1,1) block=(768,1,1) lds=163840\n.amdgcn_target "amdgcn-amd-amdhsa--gfx950"\n.text\n' + c + '.section .rodata,"a"\n' + d
    open(sys.argv[1], 'w').write(out)
```

```python
from common import *
NAME = 'concat_heads__mha_block__spectral_fnet__prompt_kernel'
FLG_P1 = 0x710000
FLG_F1 = 0x720000
FLG_CS = 0x728000
FLG_O  = 0x730000
TS = 2064
SCR = 64*TS
MSK, BADF, CNT_F, NONCE, DCNT, QCNT, F1C = SCR, SCR+8, SCR+12, SCR+16, SCR+20, SCR+32, SCR+48
CMB = SCR+256
QST = CMB
FX = CMB+18432
FE = FX+12288
BIAS = float(os.environ.get('BIAS', '88'))
SPIN_MAX = 1 << 16
KA, VA, IDX, VB = 1, 2, 3, 47
KA0, VA0, VB0, QC, ONE = 36, 16, 17, 18, 19
QA, QB = 4, 8
KF = 12
VF = [[20, 24], [28, 32]]
SA, SB, OA, OB, MA, MB = 48, 64, 80, 96, 112, 128
PKD = 144
SC1 = ' sc1'
FST = OST = ''
OFS = 3
ROT = int(os.environ.get('ROT', '6'))
DEFER = int(os.environ.get('DEFER', '3'))
GSH = 1 if DEFER == 1 else 2
P1PROF = int(os.environ.get('P1PROF', '0'))
TPOS = int(os.environ.get('TPOS', '12'))
LATEF = int(os.environ.get('LATEF', '1'))
TAILPROF = int(os.environ.get('TAILPROF', '0'))
BGFIRST = int(os.environ.get('BGFIRST', '0'))
MAINPRIO = int(os.environ.get('MAINPRIO', '1'))
assert FE + 512 <= 163840

def srd(a, d, lo, size):
    a(f's_mov_b32 s{d}, s{lo}\ns_mov_b32 s{d+1}, s{lo+1}\ns_mov_b32 s{d+2}, {size}\ns_mov_b32 s{d+3}, 0x20000')

def poll(a, tag, vaddr, vt, soff, mask=None):
    if mask: a(f's_mov_b64 exec, {mask}')
    a(f'''
    s_mov_b32 s68, {SPIN_MAX}
    {tag}_SP:
    buffer_load_dword v{vt}, v{vaddr}, s[28:31], {soff} offen sc1
    s_sub_u32 s68, s68, 1
    s_waitcnt vmcnt(0)
    v_cmp_ne_u32 vcc, s27, v{vt}
    s_cbranch_scc1 {tag}_OK
    s_cbranch_vccnz {tag}_SP
    {tag}_OK:
    ''')
    if mask: a('s_mov_b64 exec, -1')


def bg_init(a):
    a(f"""
    v_lshlrev_b32 v14, 4, v0
    v_mov_b32 v1, {SCR}
    v_mov_b32 v2, 0
    v_cmp_gt_u32 vcc, 2, v0
    v_lshrrev_b32 v4, 2, v0
    v_lshl_add_u32 v5, v0, 2, v1
    v_cndmask_b32 v3, 0, 3, vcc
    v_cmp_eq_u32 vcc, 2, v4
    s_lshl_b32 s67, s41, 2
    s_add_u32 s67, s67, s42
    v_cndmask_b32 v3, v3, 2, vcc
    s_mov_b64 exec, 0xffff
    ds_write_b32 v5, v3
    s_mov_b64 exec, -1
    s_lshl_b32 s67, s67, 4
    s_add_u32 s67, s67, s40
    s_lshl_b32 s67, s67, 6
    s_add_u32 s67, s67, {FLG_P1}
    s_and_b32 s66, s40, {DEFER}
    s_cmp_eq_u32 s42, 0
    s_cselect_b32 s66, 0, s66
    s_or_b32 s66, s66, s33
    """)

def p1_loader(a):
    a(f"""
    v_lshrrev_b32 v6, 3, v0
    v_and_b32 v8, 7, v0
    v_lshrrev_b32 v9, 4, v0
    v_xor_b32 v8, v8, v9
    v_lshlrev_b32 v8, 4, v8
    v_lshl_add_u32 v16, v6, 10, v8
    v_xor_b32 v17, 64, v16
    v_add_u32 v17, 0x2000, v17
    v_add_u32 v18, 0x4000, v16
    v_add_u32 v19, 0x4000, v17
    s_lshl_b32 s44, s40, 17
    s_lshl_b32 s45, s33, 15
    s_add_u32 s44, s44, s45
    v_mul_u32_u24 v7, 3072, v9
    v_and_b32 v8, 15, v0
    v_lshlrev_b32 v9, 2, v9
    v_xor_b32 v8, v8, v9
    v_lshl_add_u32 v20, v8, 4, v7
    v_add_u32 v21, {4*3072}, v20
    v_add_u32 v22, {8*3072}, v20
    v_add_u32 v23, {12*3072}, v20
    s_lshl_b32 s47, s42, 10
    s_lshl_b32 s48, s41, 8
    s_add_u32 s47, s47, s48
    s_mul_i32 s48, s33, {16*3072}
    s_add_u32 s47, s47, s48
    s_lshl_b32 s51, s33, 12
    s_waitcnt lgkmcnt(0)
    """)
    srd(a, 56, 4, 0x200000); srd(a, 36, 6, 0x180000)
    def issue(c):
        slot = c % 4
        a(f"""
        s_add_u32 s54, s43, {c}
        s_and_b32 s54, s54, 7
        s_lshl_b32 s55, s54, 7
        s_add_u32 s55, s55, s44
        s_mul_i32 s54, s54, {64*3072}
        s_add_u32 m0, s51, {slot*32768}
        s_add_u32 s54, s54, s47
        """)
        for j in range(4):
            a(f"""
            buffer_load_dwordx4 v{16+j}, s[56:59], s55 offen lds
            s_add_u32 m0, s51, {slot*32768+16384+j*1024}
            s_nop 0
            buffer_load_dwordx4 v{20+j}, s[36:39], s54 offen lds
            """)
            if j < 3: a(f"s_add_u32 m0, s51, {slot*32768+(j+1)*1024}\ns_nop 0")
    a.stamp(7)
    issue(0); issue(1)
    bg_init(a)
    a(f"""
    s_add_u32 s48, s2, s33
    s_cmp_lg_u32 s48, 0
    s_cbranch_scc1 BG_NONONCE
    s_memrealtime s[60:61]
    s_waitcnt lgkmcnt(0)
    s_or_b32 s60, s60, 1
    v_mov_b32 v8, s60
    s_mov_b64 exec, 1
    global_store_dword v2, v8, s[22:23] sc1
    s_mov_b64 exec, -1
    BG_NONONCE:
    """)
    for c in range(8):
        a(f"s_waitcnt vmcnt({8 if c < 7 else 0}){' lgkmcnt(0)' if c == 0 else ''}\ns_barrier")
        if c + 2 < 8: issue(c+2)

def phase1(a):
    a(f"""
    s_mov_b32 s66, 0
    v_mov_b32 v142, 0
    s_cmp_eq_u32 s42, 3
    s_cbranch_scc0 K1_GEMM
    s_waitcnt lgkmcnt(0)
    """)
    srd(a, 28, 24, WS_USED)
    a("s_barrier")
    a("s_branch K1_DONE\nK1_GEMM:")
    a(f'''
    s_and_b32 s57, s26, 1
    s_lshr_b32 s58, s26, 1
    v_and_b32 v6, 31, v0
    v_lshrrev_b32 v7, 5, v0
    s_lshl_b32 s49, s57, 5
    v_add_u32 v8, s49, v6
    v_bfe_u32 v9, v8, 1, 3
    v_xor_b32 v9, v9, v7
    ''')
    for ks in range(4):
        a(f'''
        v_xor_b32 v10, {2*ks}, v9
        v_lshlrev_b32 v10, 4, v10
        v_lshl_add_u32 v{96+ks}, v8, 7, v10
        v_add_u32 v{100+ks}, 0x10000, v{96+ks}
        ''')
    a('''
    v_bfe_u32 v8, v0, 2, 2
    v_lshl_add_u32 v9, v7, 3, v8
    v_bfe_u32 v10, v0, 4, 1
    v_lshlrev_b32 v10, 1, v10
    v_bfe_u32 v11, v0, 1, 1
    v_add_u32 v10, v10, v11
    s_lshl_b32 s49, s58, 2
    v_add_u32 v10, s49, v10
    v_lshlrev_b32 v8, 2, v8
    v_xor_b32 v10, v10, v8
    v_lshlrev_b32 v10, 4, v10
    v_lshl_add_u32 v10, v9, 8, v10
    v_and_b32 v11, 1, v0
    v_lshl_add_u32 v104, v11, 3, v10
    v_add_u32 v105, 0x10000, v104
    s_waitcnt lgkmcnt(0)
    s_mov_b32 s28, s24
    s_mov_b32 s29, s25
    s_mov_b32 s30, 14680064
    s_mov_b32 s31, 0x20000
    ''')
    a(f"""
    s_lshl_b32 s60, s41, 3
    s_lshl_b32 s61, s58, 1
    s_add_u32 s60, s60, s61
    s_lshl_b32 s60, s60, 6
    s_lshl_b32 s61, s40, 2
    s_add_u32 s61, s61, s57
    s_add_u32 s60, s60, s61
    s_lshl_b32 s67, s41, 2
    s_add_u32 s67, s67, s42
    s_lshl_b32 s67, s67, 4
    s_add_u32 s67, s67, s40
    s_lshl_b32 s67, s67, 6
    s_add_u32 s67, s67, {FLG_P1}
    s_and_b32 s66, s40, {DEFER}
    s_cmp_eq_u32 s42, 0
    s_cselect_b32 s66, 0, s66
    """)
    a('''
    s_cmp_ge_u32 s42, 2
    s_cbranch_scc1 K1_LOOP_XW
    ''')
    def reads(slot, ks, fs):
        b = 16 + 12*fs
        hi = slot >= 2
        so = (slot & 1)*32768
        xa = (100 if hi else 96) + ks
        wa = 105 if hi else 104
        a(f'''
        ds_read_b128 {vr(b,4)}, v{xa} offset:{so}
        ds_read_b64_tr_b16 {vr(b+8,2)}, v{wa} offset:{so+16384+ks*4096}
        ds_read_b64_tr_b16 {vr(b+10,2)}, v{wa} offset:{so+16384+ks*4096+1024}
        ds_read_b128 {vr(b+4,4)}, v{xa} offset:{so+8192}
        ''')
    def mfmas(wx, fs, first):
        b = 16 + 12*fs
        for T in range(2):
            d = vr(64+16*T, 16); c = '0' if first else d
            x = vr(b+4*T, 4); w = vr(b+8, 4)
            a(f'v_mfma_f32_32x32x16_bf16 {d}, {w if wx else x}, {x if wx else w}, {c}')
    def loop(wx):
        def enter(c):
            a('s_barrier')
            if c == 0: a.stamp(2)
            if P1PROF and c in (1,2,3,4,6): a.stamp({1:5,2:6,3:7,4:8,6:9}[c])
        enter(0)
        reads(0, 0, 0); reads(0, 1, 1)
        for i in range(32):
            n = i + 2
            if n < 32:
                if n % 4 == 0: enter(n // 4)
                reads((n // 4) % 4, n % 4, n % 4)
            a(f's_waitcnt lgkmcnt({8 if n < 32 else (4 if n == 32 else 0)})')
            mfmas(wx, i % 4, i == 0)
        a.stamp(3)
    def pack():
        for T in range(2):
            for hh in range(2):
                b = 64 + 16*T + 8*hh
                for i in range(4): a(f'v_cvt_pk_bf16_f32 v{PKD+(2*T+hh)*4+i}, v{b+2*i}, v{b+2*i+1}')
    def offs(f):
        for T in range(2):
            for hh in range(2): a(f's_add_u32 s{62+2*T+hh}, s60, {f(T, hh)}')
    loop(True)
    a(f"""
    s_cmp_eq_u32 s42, 0
    s_cbranch_scc0 K1_EPI_K
    s_lshl_b32 s60, s60, 10
    v_lshlrev_b32 v142, 4, v0
    s_mov_b32 s61, {f2u(QSCALE)}
    """)
    offs(lambda T, hh: QF_OFF + hh*65536 + T*2048)
    a('s_nop 2')
    a('s_mov_b32 s60, s61')
    for r in range(0, 32, 2): a(f'v_pk_mul_f32 {vr(64+r,2)}, {vr(64+r,2)}, s[60:61]')
    a(f"""
    s_branch K1_PACK
    K1_EPI_K:
    s_lshl_b32 s60, s60, 11
    v_and_b32 v1, 0x33, v0
    v_bfe_u32 v2, v0, 2, 1
    v_bfe_u32 v3, v0, 3, 1
    v_lshl_add_u32 v1, v2, 3, v1
    v_lshl_add_u32 v1, v3, 2, v1
    v_lshlrev_b32 v142, 4, v1
    """)
    offs(lambda T, hh: KV_OFF + hh*131072 + T*4096)
    a('s_branch K1_PACK')
    a('K1_LOOP_XW:')
    loop(False)
    a(f"""
    s_lshl_b32 s60, s60, 11
    v_and_b32 v1, 15, v0
    v_lshlrev_b32 v1, 4, v1
    v_bfe_u32 v2, v0, 4, 1
    v_lshl_add_u32 v1, v2, 17, v1
    v_lshl_add_u32 v142, v7, 8, v1
    """)
    offs(lambda T, f: KV_OFF + 1024 + f*512 + T*4096)
    a('s_nop 1\nK1_PACK:')
    pack()
    a('s_cmp_lg_u32 s66, 0\ns_cbranch_scc1 K1_DONE')
    p1_stores(a)
    a('K1_DONE:')

def p1_stores(a):
    for k in range(4): a(f'buffer_store_dwordx4 {vr(PKD+4*k,4)}, v142, s[28:31], s{62+k} offen{SC1}')

def arrive_deferred(a, tag):
    a(f"""
    s_waitcnt vmcnt(0)
    s_mov_b64 exec, 1
    ds_add_rtn_u32 v44, v46, v{ONE} offset:{DCNT-MSK}
    v_mov_b32 v45, s27
    v_mov_b32 v43, 0
    s_waitcnt lgkmcnt(0)
    v_cmp_eq_u32 vcc, 7, v44
    s_mov_b32 s66, 0
    s_cbranch_vccz {tag}
    buffer_store_dword v45, v43, s[28:31], s67 offen sc1
    {tag}:
    s_mov_b64 exec, -1
    """)

def attention(a):
    a(f"""
    s_and_b32 s40, s2, 7
    s_lshr_b32 s41, s2, 3
    s_lshl_b32 s40, s40, 2
    s_lshr_b32 s45, s41, 3
    s_add_u32 s40, s40, s45
    s_and_b32 s41, s41, 7
    s_and_b32 s33, s26, 3
    s_lshr_b32 s34, s26, 2
    s_lshl_b32 s35, s41, 3
    s_lshl_b32 s36, s33, 1
    s_add_u32 s35, s35, s36
    v_lshlrev_b32 v36, 4, v0
    v_and_b32 v39, 15, v0
    v_lshrrev_b32 v38, 5, v0
    v_lshlrev_b32 v39, 4, v39
    v_lshl_add_u32 v39, v38, 8, v39
    v_bfe_u32 v38, v0, 4, 1
    v_lshl_add_u32 v39, v38, 18, v39
    v_and_b32 v41, 27, v0
    v_cmp_eq_u32 vcc, 16, v41
    v_add_u32 v{VA0}, 1024, v39
    v_add_u32 v{VB0}, 1536, v39
    v_mov_b32 v41, 2048
    v_mov_b32 v{IDX}, 0xdddddddd
    v_cndmask_b32 v{VA0}, v{VA0}, v41, vcc
    v_cndmask_b32 v{VB0}, v{VB0}, v41, vcc
    s_mov_b32 s42, 0
    s_mov_b32 s32, 0xffff0003
    s_lshl_b32 s36, s33, 11
    s_add_u32 s36, s36, {QST}
    v_add_u32 v41, s36, v36
    v_mov_b32 v46, {MSK}
    s_lshl_b32 s36, s33, 2
    s_add_u32 s36, s36, {QCNT}
    v_mov_b32 v{QC}, s36
    v_mov_b32 v{ONE}, 1
    """)
    def zero_acc():
        for r in range(0, 32, 2): a(f'v_mov_b64 {vr(OA+r,2)}, 0')
        for r in range(0, 4, 2): a(f'v_mov_b64 {vr(VF[1][1]+r,2)}, 0')
    zero_acc()
    a('s_waitcnt vmcnt(0)')
    a.stamp(4)
    a('s_barrier')
    a('s_barrier')
    if not P1PROF: a.stamp(5)
    a(f"""
    ds_read_b128 {vr(QA,4)}, v41
    ds_read_b128 {vr(QB,4)}, v41 offset:1024
    ds_read_b128 {vr(KF,4)}, v36
    ds_read_b32 v44, v46 offset:16
    s_cmp_eq_u32 s66, 0
    s_cbranch_scc1 K2_NODEF
    """)
    p1_stores(a)
    a(f"""
    K2_NODEF:
    s_waitcnt lgkmcnt(0)
    v_mfma_f32_32x32x16_bf16 {vr(SA,16)}, {vr(KF,4)}, {vr(QA,4)}, 0
    v_mfma_f32_32x32x16_bf16 {vr(SB,16)}, {vr(KF,4)}, {vr(QB,4)}, 0
    v_readfirstlane_b32 s27, v44
    s_cmp_lg_u32 s34, 0
    s_cbranch_scc1 K2_FILL
    s_setprio {MAINPRIO}
    s_nop 6
    s_branch K2_GO
    K2_FILL:
    s_nop 7
    s_cmp_eq_u32 s66, 0
    s_cbranch_scc1 K2_GO
    """)
    arrive_deferred(a, 'K2_AD0')
    a('K2_GO:')
    def rowmax(S, dst, acc=False):
        if not acc:
            a(f'v_max3_f32 v{dst}, v{S}, v{S+1}, v{S+2}')
            for i in range(3, 15, 2): a(f'v_max3_f32 v{dst}, v{dst}, v{S+i}, v{S+i+1}')
            a(f'v_max_f32 v{dst}, v{dst}, v{S+15}')
        else:
            for i in range(0, 16, 2): a(f'v_max3_f32 v{dst}, v{dst}, v{S+i}, v{S+i+1}')
    def xhalf(r, t):
        a(f'''
        v_mov_b32 v{t}, v{r}
        s_nop 1
        v_permlane32_swap_b32 v{r}, v{t}
        s_nop 1
        v_max_f32 v{r}, v{r}, v{t}
        ''')
    rowmax(SA, 41); rowmax(SB, 42); xhalf(41, 43); xhalf(42, 44)
    a(f'''
    v_mov_b32 v43, {f2u(-BIAS)}
    v_sub_f32 v41, v43, v41
    v_sub_f32 v42, v43, v42
    K2_RESTART:
    s_mul_i32 s44, s34, {4*TS}
    v_add_u32 v{KA}, s44, v{KA0}
    v_add_u32 v{VA}, s44, v{VA0}
    v_add_u32 v{VB}, s44, v{VB0}
    ds_read_b128 {vr(KF,4)}, v{KA}
    ds_read_b128 {vr(VF[0][0],4)}, v{VA}
    ds_read_b128 {vr(VF[0][1],4)}, v{VB}
    ''')
    a('v_mov_b32 v40, v41\nv_mov_b32 v43, v42')
    for r in range(0, 16, 2): a(f'v_mov_b64 {vr(MA+r,2)}, v[40:41]')
    for r in range(0, 16, 2): a(f'v_mov_b64 {vr(MB+r,2)}, v[42:43]')
    for r in range(8, 16, 2): a(f'v_mov_b64 {vr(SB+r,2)}, 0')
    a(f'''
    s_waitcnt lgkmcnt(0)
    v_mfma_f32_32x32x16_bf16 {vr(SA,16)}, {vr(KF,4)}, {vr(QA,4)}, {vr(MA,16)}
    s_nop 10
    ''')
    if not P1PROF: a.stamp(6)
    a(f'''
    s_branch K2_LOOP
    K2_SPIN:
    {'s_memrealtime s[96:97]' if PROF else ''}
    K2_SPIN2:
    ds_read_b64 v[44:45], v46
    s_waitcnt lgkmcnt(0)
    v_and_b32 v44, v44, v45
    s_nop 0
    v_readfirstlane_b32 s32, v44
    s_or_b32 s32, s32, 0xffff0000
    s_bitcmp1_b32 s32, s43
    s_cbranch_scc0 K2_SPIN2
    {'s_memrealtime s[98:99]' if PROF else ''}
    {'s_waitcnt lgkmcnt(0)' if PROF else ''}
    {'s_sub_u32 s98, s98, s96' if PROF else ''}
    {'s_add_u32 s76, s76, s98' if PROF else ''}
    s_branch K2_READY
    K2_BACK:
    s_cmp_eq_u32 s66, 0
    s_cbranch_scc1 K2_LOOP
    ''')
    arrive_deferred(a, 'K2_AD1')
    a(f'''
    K2_LOOP:
    ''')
    def ex(S, lo, hi):
        for i in range(lo, hi): a(f'v_exp_f32 v{S+i}, v{S+i}')
    def tile(j):
        vs, vp = VF[j & 1], VF[(j+1) & 1]
        ex(SA, 0, 2)
        a(f'v_smfmac_f32_32x32x32_bf16 {vr(OB,16)}, {vr(vp[1],4)}, {vr(SB+8,8)}, v{IDX}')
        ex(SA, 2, 5)
        a(f'v_mfma_f32_32x32x16_bf16 {vr(SB,16)}, {vr(KF,4)}, {vr(QB,4)}, {vr(MB,16)}')
        o = (j+1)*TS
        if j == 3:
            o = 0
            a(f"""
            s_min_u32 s44, s43, 15
            s_mulk_i32 s44, {4*TS}
            s_bitcmp1_b32 s32, s43
            s_cbranch_scc0 K2_SPIN
            K2_READY:
            v_add_u32 v{KA}, s44, v{KA0}
            v_add_u32 v{VA}, s44, v{VA0}
            v_add_u32 v{VB}, s44, v{VB0}
            """)
        a(f"""
        ds_read_b128 {vr(KF,4)}, v{KA} offset:{o}
        ds_read_b128 {vr(vp[0],4)}, v{VA} offset:{o}
        ds_read_b128 {vr(vp[1],4)}, v{VB} offset:{o}
        """)
        if j == 2: a(f's_mov_b64 exec, 1\nds_add_rtn_u32 v43, v{QC}, v{ONE}\ns_mov_b64 exec, -1')
        ex(SA, 5, 10)
        a(f'v_smfmac_f32_32x32x32_bf16 {vr(OA,16)}, {vr(vs[0],4)}, {vr(SA,8)}, v{IDX}')
        ex(SA, 10, 16)
        ex(SB, 0, 2)
        a(f'v_smfmac_f32_32x32x32_bf16 {vr(OA,16)}, {vr(vs[1],4)}, {vr(SA+8,8)}, v{IDX}')
        ex(SB, 2, 5)
        a('s_waitcnt lgkmcnt(0)')
        a(f'v_mfma_f32_32x32x16_bf16 {vr(SA,16)}, {vr(KF,4)}, {vr(QA,4)}, {vr(MA,16)}')
        ex(SB, 5, 10)
        a(f'v_smfmac_f32_32x32x32_bf16 {vr(OB,16)}, {vr(vs[0],4)}, {vr(SB,8)}, v{IDX}')
        if j == 2: a('v_readfirstlane_b32 s43, v43')
        if j == 3: a('s_cmp_lt_u32 s43, 16')
        ex(SB, 10, 16)
    for j in range(4): tile(j)
    a(f'''
    s_cbranch_scc1 K2_BACK
    s_nop 1
    v_smfmac_f32_32x32x32_bf16 {vr(OB,16)}, {vr(VF[1][1],4)}, {vr(SB+8,8)}, v{IDX}
    ''')
    if not P1PROF: a.stamp(7)
    a(f'''
    s_setprio 0
    s_cmp_eq_u32 s66, 0
    s_cbranch_scc1 K2_NOAD
    ''')
    arrive_deferred(a, 'K2_AD2')
    a(f'''
    K2_NOAD:
    s_nop 1
    s_mul_i32 s44, s26, 2304
    s_add_u32 s44, s44, {CMB}
    v_add_u32 v45, s44, v36
    v_lshlrev_b32 v46, 2, v0
    v_add_u32 v46, s44, v46
    s_mov_b32 s44, {f2u(2.0**100)}
    s_mov_b32 s45, 0x7f800000
    s_mov_b32 s46, {f2u(2.0**-(BIAS+1))}
    s_mov_b32 s47, {f2u(2.0**-105)}
    s_cmp_lg_u32 s42, 0
    s_cbranch_scc1 K2_GOOD
    ''')
    for k, O in enumerate((OA, OB)):
        t = 43+k
        a(f'v_add_f32 v{t}, abs(v{O}), abs(v{O+1})')
        for i in range(2, 8): a(f'v_add_f32 v{t}, v{t}, abs(v{O+i})')
        a(f'''
        v_cmp_ngt_f32 s[48:49], s44, v{O+8}
        v_cmp_ngt_f32 s[50:51], s45, v{t}
        v_cmp_le_f32 s[52:53], s46, v{O+8}
        v_cmp_gt_f32 vcc, s47, v{t}
        s_or_b64 s[48:49], s[48:49], s[50:51]
        s_and_b64 vcc, vcc, s[52:53]
        s_or_b64 s[{54+2*k}:{55+2*k}], s[48:49], vcc
        ''')
    a(f'''
    s_or_b64 s[54:55], s[54:55], s[56:57]
    s_cbranch_scc0 K2_GOOD
    v_mov_b32 v43, {BADF}
    v_mov_b32 v44, 1
    ds_write_b32 v43, v44
    K2_GOOD:
    s_cmp_eq_u32 s34, 0
    s_cbranch_scc1 K2_SENDB
    ds_write_b128 v45, {vr(OA,4)}
    ds_write_b128 v45, {vr(OA+4,4)} offset:1024
    ds_write_b32 v46, v{OA+8} offset:2048
    s_waitcnt lgkmcnt(0)
    ''')
    for r in range(9): a(f'v_mov_b32 v{OA+r}, v{OB+r}')
    a(f'''
    v_subrev_u32 v45, {4*2304}, v45
    v_subrev_u32 v46, {4*2304}, v46
    s_branch K2_SENT
    K2_SENDB:
    ds_write_b128 v45, {vr(OB,4)}
    ds_write_b128 v45, {vr(OB+4,4)} offset:1024
    ds_write_b32 v46, v{OB+8} offset:2048
    v_add_u32 v45, {4*2304}, v45
    v_add_u32 v46, {4*2304}, v46
    K2_SENT:
    v_mov_b32 v43, {BADF}
    s_waitcnt lgkmcnt(0)
    s_barrier
    ds_read_b32 v44, v43
    ds_read_b128 {vr(SA,4)}, v45
    ds_read_b128 {vr(SA+4,4)}, v45 offset:1024
    ds_read_b32 v{SA+8}, v46 offset:2048
    s_add_u32 s36, s35, s34
    s_lshl_b32 s36, s36, 5
    s_add_u32 s36, s36, s40
    s_lshl_b32 s36, s36, 10
    s_add_u32 s36, s36, {OF_OFF}
    s_waitcnt lgkmcnt(3)
    v_readfirstlane_b32 s44, v44
    s_cmp_lt_u32 s42, s44
    s_cbranch_scc0 K2_COMBINE
    ''')
    a(f'''
    s_mov_b32 s42, 1
    v_mov_b32 v41, 0xff800000
    v_mov_b32 v42, 0xff800000
    s_mul_i32 s44, s34, {32*TS}
    v_add_u32 v45, s44, v{KA0}
    v_mov_b32 v43, 2
    ds_write_b32 v{QC}, v43
    s_mov_b32 s43, 32
    K2_MAXLOOP:
    ds_read_b128 {vr(KF,4)}, v45
    v_add_u32 v45, {TS}, v45
    s_waitcnt lgkmcnt(0)
    v_mfma_f32_32x32x16_bf16 {vr(SA,16)}, {vr(KF,4)}, {vr(QA,4)}, 0
    v_mfma_f32_32x32x16_bf16 {vr(SB,16)}, {vr(KF,4)}, {vr(QB,4)}, 0
    s_nop 11
    ''')
    rowmax(SA, 41, True); rowmax(SB, 42, True)
    a(f'''
    s_sub_u32 s43, s43, 1
    s_cmp_lg_u32 s43, 0
    s_cbranch_scc1 K2_MAXLOOP
    ''')
    xhalf(41, 43); xhalf(42, 44)
    a(f'''
    s_lshl_b32 s44, s26, 9
    v_lshlrev_b32 v43, 2, v0
    v_add_u32 v43, s44, v43
    v_xor_b32 v45, 0x800, v43
    v_add_u32 v43, {FX}, v43
    v_add_u32 v45, {FX}, v45
    ds_write_b32 v43, v41
    ds_write_b32 v43, v42 offset:256
    s_waitcnt lgkmcnt(0)
    s_barrier
    ds_read_b32 v44, v45
    ds_read_b32 v45, v45 offset:256
    s_waitcnt lgkmcnt(0)
    v_max_f32 v41, v41, v44
    v_max_f32 v42, v42, v45
    v_sub_f32 v41, 0, v41
    v_sub_f32 v42, 0, v42
    v_mov_b32 v46, {MSK}
    ''')
    zero_acc()
    a(f'''
    s_branch K2_RESTART
    K2_COMBINE:
    ''')
    if not P1PROF: a.stamp(8)
    a(f'''
    s_and_b32 s44, s40, 7
    s_waitcnt lgkmcnt(0)
    v_add_f32 v{OA+8}, v{OA+8}, v{SA+8}
    v_rcp_f32 v{OA+8}, v{OA+8}
    ''')
    for r in range(8): a(f'v_add_f32 v{OA+r}, v{OA+r}, v{SA+r}')
    for r in range(8): a(f'v_mul_f32 v{OA+r}, v{OA+r}, v{OA+8}')
    for i in range(4): a(f'v_cvt_pk_bf16_f32 v{SB+i}, v{OA+2*i}, v{OA+2*i+1}')
    a(f'buffer_store_dwordx4 {vr(SB,4)}, v36, s[28:31], s36 offen{SC1}')
    a(f'''
    s_lshl_b32 s47, s41, 2
    s_add_u32 s47, s47, s33
    s_lshl_b32 s47, s47, 5
    s_add_u32 s47, s47, s40
    s_lshl_b32 s47, s47, 1
    s_add_u32 s47, s47, s34
    s_lshl_b32 s47, s47, {OFS}
    s_add_u32 s47, s47, {FLG_O}
    v_mov_b32 v5, s27
    v_mov_b32 v6, 0
    s_waitcnt vmcnt(0)
    s_mov_b64 exec, 1
    buffer_store_dword v5, v6, s[28:31], s47 offen sc1
    s_mov_b64 exec, -1
    ''')

def oproj(a):
    srd(a, 52, 20, 0x400000)
    a(f'''
    v_lshlrev_b32 v2, 4, v0
    s_and_b32 s56, s26, 1
    s_lshr_b32 s57, s26, 1
    s_lshr_b32 s58, s40, 3
    s_lshl_b32 s59, s41, 2
    s_add_u32 s59, s59, s58
    v_lshrrev_b32 v7, 5, v0
    v_bfe_u32 v8, v0, 2, 2
    v_lshl_add_u32 v9, v7, 2, v8
    v_bfe_u32 v10, v0, 4, 1
    v_lshlrev_b32 v10, 1, v10
    v_bfe_u32 v11, v0, 1, 1
    v_add_u32 v10, v10, v11
    v_and_b32 v8, 2, v8
    v_lshlrev_b32 v8, 1, v8
    v_xor_b32 v10, v10, v8
    v_lshlrev_b32 v10, 4, v10
    v_lshl_add_u32 v10, v9, 7, v10
    v_and_b32 v11, 1, v0
    v_lshl_add_u32 v10, v11, 3, v10
    s_lshl_b32 s60, s57, 14
    v_add_u32 v10, s60, v10
    v_xor_b32 v11, 64, v10
    s_lshl_b32 s61, s59, 16
    s_lshl_b32 s62, s56, 15
    s_add_u32 s61, s61, s62
    s_lshl_b32 s62, s57, 13
    s_add_u32 s61, s61, s62
    s_add_u32 s61, s61, {OF_OFF}
    s_add_u32 s62, s61, 4096
    s_barrier
    ''')
    if TAILPROF: a.stamp(5)
    for hd in range(8):
        for c in range(2):
            b = 64 + (hd*2+c)*4
            ad = 10 + c
            a(f'ds_read_b64_tr_b16 {vr(b,2)}, v{ad} offset:{hd*2048}')
            a(f'ds_read_b64_tr_b16 {vr(b+2,2)}, v{ad} offset:{hd*2048+1024}')
        if hd % 2 == 1 and hd < 7: a('s_waitcnt lgkmcnt(4)')
    a('s_barrier')
    if not P1PROF: a.stamp(9)
    def oloads():
        for hd in range(8):
            a(f'buffer_load_dwordx4 {vr(16+4*hd,4)}, v2, s[28:31], s{61 + hd//4} offen offset:{(hd%4)*1024}{SC1}')
    oloads()
    a(f'''
    s_lshl_b32 s60, s56, 15
    s_add_u32 s60, s60, 65536
    s_lshl_b32 s63, s57, 11
    s_add_u32 s63, s63, s60
    v_add_u32 v13, s63, v2
    s_lshl_b32 s63, s57, 13
    s_add_u32 s63, s63, s60
    v_add_u32 v14, s63, v2
    v_and_b32 v15, 31, v0
    s_lshl_b32 s60, s59, 6
    s_lshl_b32 s63, s56, 5
    s_add_u32 s60, s60, s63
    v_add_u32 v15, s60, v15
    v_lshlrev_b32 v15, 11, v15
    v_lshl_add_u32 v15, v7, 4, v15
    s_lshl_b32 s60, s44, 7
    s_lshl_b32 s63, s57, 5
    s_add_u32 s60, s60, s63
    s_waitcnt lgkmcnt(0)
    ''')
    for hd in range(8):
        a(f's_waitcnt vmcnt({7-hd})')
        for c in range(2):
            d = vr(128+16*c, 16)
            a(f'v_mfma_f32_32x32x16_bf16 {d}, {vr(64+(hd*2+c)*4,4)}, {vr(16+4*hd,4)}, {"0" if hd == 0 else d}')
    if TAILPROF: a.stamp(2)
    a('s_nop 11')
    for g in range(4):
        a(f'ds_write_b128 v13, {vr(128+8*g,4)} offset:{g*8192}')
        a(f'ds_write_b128 v13, {vr(132+8*g,4)} offset:{g*8192+1024}')
    a('s_waitcnt lgkmcnt(0)\ns_barrier')
    if TAILPROF: a.stamp(3)
    for s in range(4):
        a(f'ds_read_b128 {vr(16+8*s,4)}, v14 offset:{s*2048}')
        a(f'ds_read_b128 {vr(20+8*s,4)}, v14 offset:{s*2048+1024}')
    a('s_waitcnt lgkmcnt(4)')
    for r in range(8): a(f'v_add_f32 v{16+r}, v{16+r}, v{24+r}')
    a('s_waitcnt lgkmcnt(0)')
    for r in range(8): a(f'v_add_f32 v{32+r}, v{32+r}, v{40+r}')
    for r in range(8): a(f'v_add_f32 v{16+r}, v{16+r}, v{32+r}')
    for i in range(4): a(f'v_cvt_pk_bf16_f32 v{48+i}, v{16+2*i}, v{17+2*i}')
    a(f'''
    s_nop 1
    v_permlane32_swap_b32 v48, v50
    v_permlane32_swap_b32 v49, v51
    s_nop 1
    buffer_store_dwordx4 v[48:51], v15, s[52:55], s60 offen{OST}
    ''')

def lds_sync(a, tag, off, n):
    a(f"""
    v_mov_b32 v137, 1
    s_mov_b64 exec, 1
    s_waitcnt lgkmcnt(0)
    ds_add_u32 v159, v137 offset:{off}
    s_mov_b64 exec, -1
    {tag}:
    ds_read_b32 v137, v159 offset:{off}
    s_waitcnt lgkmcnt(0)
    v_readfirstlane_b32 s44, v137
    s_cmp_ge_u32 s44, {n}
    s_cbranch_scc0 {tag}
    """)

def get_nonce(a, tag):
    a(f"""
    s_mov_b32 s68, {SPIN_MAX}
    {tag}_NSP:
    global_load_dword v8, v2, s[22:23] sc1
    s_sub_u32 s68, s68, 1
    s_waitcnt vmcnt(0)
    v_readfirstlane_b32 s27, v8
    s_cbranch_scc1 {tag}_NOK
    s_cmp_eq_u32 s27, 0
    s_cbranch_scc1 {tag}_NSP
    {tag}_NOK:
    """)

def fnet1(a):
    RE = [3, 4, 5, 8, 9, 10, 11, 12, 13]
    PK = 140
    a(f"""
    s_and_b32 s42, s33, 1
    s_lshr_b32 s64, s33, 1
    s_and_b32 s43, s2, 7
    s_lshl_b32 s43, s43, 3
    s_lshr_b32 s44, s2, 3
    s_add_u32 s43, s43, s44
    s_sub_u32 s43, s43, 24
    s_lshl_b32 s43, s43, 1
    s_add_u32 s43, s43, s64
    v_and_b32 v6, 31, v0
    v_lshrrev_b32 v7, 5, v0
    v_and_b32 v8, 15, v0
    s_lshl_b32 s45, s43, 3
    s_lshl_b32 s46, s42, 2
    s_add_u32 s45, s45, s46
    s_lshl_b32 s46, s33, 13
    s_lshl_b32 s65, s64, 13
    s_add_u32 s65, s65, 32768
    s_lshl_b32 s64, s64, 2
    v_add_u32 v159, s64, v1
    s_waitcnt lgkmcnt(0)
    """)
    srd(a, 56, 10, 0x200000)
    for p in range(4):
        base = p*2048
        a(f"""
        s_add_u32 m0, s46, {base}
        s_add_u32 s47, s45, {p}
        s_lshl_b32 s44, s47, 10
        buffer_load_dwordx4 v14, s[56:59], s44 offen lds
        s_sub_u32 s44, 2048, s47
        s_cmp_eq_u32 s47, 0
        s_cselect_b32 s44, 1024, s44
        s_add_u32 m0, s46, {base+1024}
        s_lshl_b32 s44, s44, 10
        buffer_load_dwordx4 v14, s[56:59], s44 offen lds
        """)
    a('s_barrier')
    srd(a, 28, 24, WS_USED)
    a(f"""
    s_mov_b32 s60, 0xffff0000
    s_mov_b32 s61, 0xffff0000
    s_mov_b32 s62, 0x80008000
    v_mov_b32 v138, s62
    v_cndmask_b32 v138, 0, v138, s[60:61]
    v_bfe_u32 v3, v0, 2, 2
    v_lshl_add_u32 v3, v7, 3, v3
    v_lshlrev_b32 v3, 6, v3
    v_bfe_u32 v4, v0, 4, 1
    v_lshl_add_u32 v3, v4, 5, v3
    v_and_b32 v5, 3, v0
    v_lshl_add_u32 v3, v5, 3, v3
    v_add_u32 v15, s46, v3
    v_lshlrev_b32 v136, 12, v4
    v_lshl_add_u32 v136, v8, 4, v136
    v_lshl_add_u32 v136, v7, 10, v136
    s_lshl_b32 s44, s42, 3
    s_add_u32 s44, s44, s65
    v_add_u32 v136, s44, v136
    v_lshlrev_b32 v158, 2, v8
    v_lshl_add_u32 v158, v7, 8, v158
    s_or_b32 s63, s43, s42
    v_cvt_f32_u32 v9, v8
    v_cvt_f32_u32 v10, v7
    v_cvt_f32_u32 v11, v6
    v_cvt_f32_u32 v12, v4
    v_mul_f32 v13, {f2u(1/16)}, v9
    v_mul_f32 v3, v9, v10
    v_mul_f32 v3, 0.5, v3
    """)
    for j_ in range(8):
        a(f"v_cos_f32 v{88+j_}, v3\nv_sin_f32 v{96+j_}, -v3\nv_add_f32 v3, v3, v13")
    for q in range(4):
        a(f"v_cvt_pk_bf16_f32 v{16+q}, v{88+2*q}, v{89+2*q}\nv_cvt_pk_bf16_f32 v{20+q}, v{96+2*q}, v{97+2*q}")
    a(f"""
    v_mul_f32 v13, {f2u(1/512)}, v9
    v_mul_f32 v5, 4.0, v13
    v_mul_f32 v3, v10, v5
    v_mul_f32 v12, {f2u(0.25)}, v12
    v_add_f32 v3, v3, v12
    """)
    for r in range(16):
        a(f"v_cos_f32 v{48+r}, v3\nv_sin_f32 v{64+r}, -v3\nv_add_f32 v3, v3, v13")
        if r % 4 == 3: a("v_add_f32 v3, v3, v5")
    a(f"""
    v_mul_f32 v13, {f2u(1/32)}, v11
    v_mul_f32 v5, 4.0, v13
    v_mul_f32 v3, v10, v5
    """)
    for r in range(16):
        a(f"v_cos_f32 v{88+r}, v3\nv_sin_f32 v{104+r}, v3\nv_add_f32 v3, v3, v13")
        if r % 4 == 3: a("v_add_f32 v3, v3, v5")
    for q in range(8):
        a(f"v_cvt_pk_bf16_f32 v{32+q}, v{88+2*q}, v{89+2*q}\nv_cvt_pk_bf16_f32 v{40+q}, v{104+2*q}, v{105+2*q}\nv_xor_b32 v{24+q}, v138, v{16+q}")
    a("s_waitcnt vmcnt(0)")
    for p in range(4):
        ad = 15
        o = p*2048
        a(f"""
        ds_read_b64_tr_b16 v[80:81], v{ad} offset:{o}
        ds_read_b64_tr_b16 v[82:83], v{ad} offset:{o+256}
        ds_read_b64_tr_b16 v[84:85], v{ad} offset:{o+1024}
        ds_read_b64_tr_b16 v[86:87], v{ad} offset:{o+1280}
        """)
        if p == 0:
            a('s_cmp_lg_u32 s63, 0\ns_cbranch_scc1 F1_G0')
            for r in range(8):
                a(f'v_cndmask_b32 v{24+r}, 0, v{16+r}, s[60:61]\nv_cndmask_b32 v{16+r}, v{16+r}, 0, s[60:61]')
            a('F1_G0:')
        a(f"""
        s_waitcnt lgkmcnt(0)
        v_mfma_f32_32x32x16_bf16 v[88:103], v[80:83], v[16:19], 0
        v_mfma_f32_32x32x16_bf16 v[104:119], v[80:83], v[20:23], 0
        v_mfma_f32_32x32x16_bf16 v[88:103], v[84:87], v[24:27], v[88:103]
        v_mfma_f32_32x32x16_bf16 v[104:119], v[84:87], v[28:31], v[104:119]
        s_nop 11
        """)
        for r in range(16):
            a(f"""
            v_mul_f32 v137, v{88+r}, v{64+r}
            v_mul_f32 v{88+r}, v{88+r}, v{48+r}
            v_fma_f32 v{88+r}, -v{104+r}, v{64+r}, v{88+r}
            v_fma_f32 v{104+r}, v{104+r}, v{48+r}, v137
            """)
        for r in range(8):
            a(f'v_cvt_pk_bf16_f32 v{120+r}, v{88+2*r}, v{89+2*r}\nv_cvt_pk_bf16_f32 v{128+r}, v{104+2*r}, v{105+2*r}')
        if p == 0:
            a('s_cmp_lg_u32 s63, 0\ns_cbranch_scc1 F1_G1')
            for r in range(8):
                a(f"""
                v_xor_b32 v137, s62, v{128+r}
                v_cndmask_b32 v{128+r}, v{128+r}, v{120+r}, s[60:61]
                v_cndmask_b32 v{120+r}, v{120+r}, v137, s[60:61]
                v_or_b32 v{16+r}, v{16+r}, v{24+r}
                v_xor_b32 v{24+r}, v138, v{16+r}
                """)
            a('F1_G1:')
        a(f"""
        s_nop 1
        v_mfma_f32_32x32x16_bf16 v[88:103], v[32:35], v[120:123], 0
        v_mfma_f32_32x32x16_bf16 v[88:103], v[36:39], v[124:127], v[88:103]
        v_mfma_f32_32x32x16_bf16 v[88:103], v[40:43], v[128:131], v[88:103]
        v_mfma_f32_32x32x16_bf16 v[88:103], v[44:47], v[132:135], v[88:103]
        s_nop 11
        """)
        if p == 0:
            a(f's_cmp_lg_u32 s63, 0\ns_cbranch_scc1 F1_G2\ns_mov_b32 s44, {AE1K_OFF}\ns_mov_b64 exec, s[60:61]')
            for r in range(8): a(f'buffer_store_dword v{88+r}, v158, s[28:31], s44 offen offset:{(r&3)*64+(r>>2)*512}{SC1}')
            a(f's_mov_b64 exec, 0x10000\nbuffer_store_dword v96, v158, s[28:31], s44 offen offset:1024{SC1}\ns_mov_b64 exec, -1\nF1_G2:')
        for r in range(9):
            if p % 2 == 0: a(f'v_mov_b32 v{RE[r]}, v{88+r}')
            else: a(f'v_cvt_pk_bf16_f32 v{PK+2*r+p//2}, v{RE[r]}, v{88+r}')
    for r in range(8): a(f'ds_write_b64 v136, {vr(PK+2*r,2)} offset:{((r&3)+8*(r>>2))*256}')
    a(f's_mov_b64 exec, 1\nds_write_b64 v136, {vr(PK+16,2)} offset:4096\ns_mov_b64 exec, -1')
    lds_sync(a, 'F1_SB', F1C-SCR, 2)
    a(f"""
    s_lshl_b32 s44, s42, 12
    s_add_u32 s44, s44, s65
    v_add_u32 v3, s44, v14
    """)
    for q in range(4): a(f'ds_read_b128 {vr(16+4*q,4)}, v3 offset:{1024*q}')
    a(f"""
    v_lshlrev_b32 v4, 4, v6
    v_lshl_add_u32 v4, v7, 16, v4
    s_lshl_b32 s44, s43, 9
    s_lshl_b32 s45, s42, 19
    s_add_u32 s44, s44, s45
    s_add_u32 s44, s44, {AEF_OFF}
    """)
    for q in range(4):
        a(f's_waitcnt lgkmcnt({3-q})\nbuffer_store_dwordx4 {vr(16+4*q,4)}, v4, s[28:31], s44 offen{SC1}\ns_add_u32 s44, s44, 0x20000')
    get_nonce(a, 'F1')
    a(f"""
    s_lshl_b32 s44, s43, 6
    s_lshl_b32 s45, s42, 5
    s_add_u32 s44, s44, s45
    s_add_u32 s44, s44, {FLG_F1}
    s_mov_b64 exec, 1
    buffer_store_dword v8, v2, s[28:31], s44 offen sc1
    s_mov_b64 exec, -1
    """)

def background(a):
    ACC, EXT = 128, 144
    a(f"""
    s_setprio 2
    {'s_add_u32 s26, s26, 12' if BGFIRST else ''}
    s_sub_u32 s33, s26, 8
    s_cmp_eq_u32 s42, 3
    s_cbranch_scc1 BG_F1
    """)
    p1_loader(a)
    a('s_mov_b32 s65, 0\ns_branch BG_J1\nBG_F1:')
    bg_init(a)
    fnet1(a)
    a(f"""
    s_lshr_b32 s44, s43, 1
    s_lshr_b32 s45, s44, 1
    s_lshl_b32 s45, s45, 5
    v_add_u32 v6, s45, v6
    s_and_b32 s45, s44, 1
    s_mul_i32 s46, s45, {f2u(0.25)}
    v_mov_b32 v8, s46
    v_cmp_gt_u32 vcc, s45, v6
    v_mov_b32 v9, 1024
    s_lshl_b32 s46, s33, 5
    v_cndmask_b32 v6, v6, v9, vcc
    v_cndmask_b32 v8, v8, 0, vcc
    v_cvt_f32_u32 v6, v6
    v_mul_f32 v6, {f2u(1/2048)}, v6
    v_add_u32 v7, s46, v7
    v_lshlrev_b32 v7, 3, v7
    v_cvt_f32_u32 v7, v7
    v_fma_f32 v8, v6, v7, v8
    v_mul_f32 v7, {f2u(16.0)}, v6
    s_lshl_b32 s64, s44, 16
    s_lshl_b32 s46, s33, 14
    s_add_u32 s64, s64, s46
    s_add_u32 s64, s64, {CSF_OFF}
    s_lshl_b32 s65, s44, 6
    s_lshl_b32 s46, s33, 4
    s_add_u32 s65, s65, s46
    s_add_u32 s65, s65, {FLG_CS}
    s_mov_b32 s66, 1
    """)
    for ks in range(16):
        b = 64 + 4*ks
        a("v_fract_f32 v9, v8\nv_add_f32 v8, v8, v7")
        for j in range(8):
            a(f"v_cos_f32 v{16+j}, v9")
            if j < 7: a("v_add_f32 v9, v9, v6")
        a("s_nop 0")
        for q in range(4): a(f"v_cvt_pk_bf16_f32 v{b+q}, v{16+2*q}, v{17+2*q}")
    a('BG_J1:')
    srd(a, 28, 24, WS_USED)
    get_nonce(a, 'BG')
    a(f"""
    ds_write_b32 v1, v8 offset:16
    s_and_b32 s40, s2, 7
    s_lshr_b32 s41, s2, 3
    s_lshl_b32 s40, s40, 2
    s_lshr_b32 s45, s41, 3
    s_add_u32 s40, s40, s45
    s_and_b32 s41, s41, 7
    s_and_b32 s34, s33, 1
    s_lshr_b32 s50, s33, 1
    v_and_b32 v9, 15, v0
    v_lshlrev_b32 v9, 6, v9
    s_lshl_b32 s45, s34, 10
    s_add_u32 s45, s45, 1024
    v_add_u32 v9, s45, v9
    s_lshl_b32 s45, s41, 1
    s_add_u32 s45, s45, s50
    s_lshl_b32 s45, s45, 6
    v_mov_b32 v10, s45
    v_cmp_eq_u32 vcc, 16, v0
    s_lshr_b32 s45, s40, 3
    s_lshl_b32 s45, s45, 12
    s_add_u32 s45, s45, {FLG_P1}
    v_cndmask_b32 v9, v9, v10, vcc
    s_lshl_b32 s34, s34, 10
    s_lshl_b32 s35, s40, 17
    s_add_u32 s35, s35, s34
    s_add_u32 s35, s35, {KV_OFF}
    v_mul_u32_u24 v11, {TS}, v0
    v_mov_b32 v40, 0x3f803f80
    v_mov_b32 v41, v40
    v_mov_b32 v42, v40
    v_mov_b32 v43, v40
    s_lshr_b32 s48, s34, 8
    v_add_u32 v20, s48, v1
    s_lshl_b32 s36, s40, 6
    s_lshl_b32 s37, s41, 3
    s_add_u32 s36, s36, s37
    s_lshl_b32 s37, s33, 1
    s_add_u32 s36, s36, s37
    s_lshl_b32 s36, s36, 10
    s_lshl_b32 s37, s33, 11
    s_add_u32 s37, s37, {QST}
    s_lshl_b32 s48, s50, {GSH}
    s_lshl_b32 s53, 1, s48
    s_or_b32 s53, s53, 0x10000
    s_waitcnt lgkmcnt(0)
    """)
    a.stamp(1)
    a('s_barrier')
    a.stamp(2)
    a(f"""
    s_cmp_lg_u32 s66, 0
    s_cbranch_scc1 BG_NOFLAG
    s_mov_b64 exec, 1
    buffer_store_dword v8, v2, s[28:31], s67 offen sc1
    s_mov_b64 exec, -1
    BG_NOFLAG:
    ds_write_b128 v11, v[40:43] offset:2048
    s_mov_b32 s68, {SPIN_MAX}
    BG1_SP:
    buffer_load_dword v10, v9, s[28:31], s45 offen sc1
    s_sub_u32 s68, s68, 1
    s_waitcnt vmcnt(0)
    v_cmp_eq_u32 vcc, s27, v10
    s_cbranch_scc1 BG1_OK
    s_and_b32 s46, vcc_lo, s53
    s_cmp_eq_u32 s46, s53
    s_cbranch_scc0 BG1_SP
    BG1_OK:
    s_mov_b32 s46, vcc_lo
    """)
    a.stamp(3)
    def grp_issue():
        a(f"""
        s_mul_i32 s52, s50, {4*TS}
        s_add_u32 m0, s52, s34
        s_lshl_b32 s51, s48, 13
        s_add_u32 s51, s51, s35
        """)
        for t in range(4):
            a(f'buffer_load_dwordx4 v14, s[28:31], s51 offen{SC1} lds')
            if t < 3: a(f's_add_u32 m0, m0, {TS}\ns_add_u32 s51, s51, 2048')
    grp_issue()
    a(f"""
    s_mov_b32 m0, s37
    s_mov_b32 s49, 0
    buffer_load_dwordx4 v14, s[28:31], s36 offen{SC1} lds
    buffer_load_dwordx4 v14, s[28:31], s36 offen offset:1024{SC1} lds
    s_waitcnt vmcnt(0) lgkmcnt(0)
    s_barrier
    """)
    def publish():
        a('v_mov_b32 v21, s49\ns_mov_b64 exec, 1\nds_or_b32 v20, v21\ns_mov_b64 exec, -1')
    a(f"""
    BGL_LOOP:
    s_add_u32 s50, s50, 2
    s_and_b32 s48, s50, {(16 >> GSH) - 1}
    s_lshl_b32 s48, s48, {GSH}
    s_lshr_b32 s47, s50, {4 - GSH}
    s_add_u32 s48, s48, s47
    s_bitcmp1_b32 s46, s48
    s_cbranch_scc1 BGL_RDY
    s_waitcnt vmcnt(0)
    """)
    publish()
    a(f"""
    s_mov_b32 s68, {SPIN_MAX}
    BGL_SP:
    buffer_load_dword v10, v9, s[28:31], s45 offen sc1
    s_sub_u32 s68, s68, 1
    s_waitcnt vmcnt(0)
    v_cmp_eq_u32 vcc, s27, v10
    s_cbranch_scc1 BGL_RDY
    s_mov_b32 s46, vcc_lo
    s_bitcmp1_b32 s46, s48
    s_cbranch_scc0 BGL_SP
    BGL_RDY:
    """)
    grp_issue()
    a('s_waitcnt vmcnt(4)')
    publish()
    a(f"""
    s_cmp_eq_u32 s65, 0
    s_cbranch_scc1 BGL_NOTAB
    s_lshr_b32 s47, s50, 1
    s_cmp_lg_u32 s47, {TPOS // 2}
    s_cbranch_scc1 BGL_NOTAB
    """)
    for ks in range(16):
        a(f"buffer_store_dwordx4 {vr(64+4*ks,4)}, v14, s[28:31], s64 offen offset:{1024*(ks%4)}{SC1}")
        if ks % 4 == 3 and ks < 15: a("s_add_u32 s64, s64, 4096")
    a('BGL_NOTAB:')
    a(f"""
    s_lshl_b32 s49, 1, s50
    s_cmp_lt_u32 s50, 14
    s_cbranch_scc1 BGL_LOOP
    s_waitcnt vmcnt(0)
    """)
    publish()
    a(f"""
    s_cmp_eq_u32 s65, 0
    s_cbranch_scc1 BGL_NOFLG
    s_mov_b64 exec, 1
    buffer_store_dword v8, v2, s[28:31], s65 offen sc1
    s_mov_b64 exec, -1
    BGL_NOFLG:
    """)
    a(f'''
    s_lshr_b32 s34, s33, 1
    s_and_b32 s35, s33, 1
    s_cmp_eq_u32 s34, 0
    s_mov_b32 s37, {BOF_OFF}
    s_cselect_b32 s36, {AEF_OFF}, s37
    s_cselect_b32 s56, s41, s40
    s_xor_b32 s37, s36, {AEF_OFF ^ BOF_OFF}
    ''')
    srd(a, 52, 20, 0x400000)
    a(f'''
    v_and_b32 v6, 31, v0
    v_lshrrev_b32 v7, 5, v0
    s_lshl_b32 s47, s40, 1
    s_add_u32 s47, s47, s34
    s_lshl_b32 s48, s47, 16
    s_lshl_b32 s44, s35, 15
    s_add_u32 s48, s48, s44
    s_add_u32 s48, s48, {CSF_OFF}
    s_lshl_b32 s47, s47, 6
    s_lshl_b32 s49, s35, 5
    s_add_u32 s47, s47, s49
    s_add_u32 s47, s47, {FLG_CS}
    v_and_b32 v15, 1, v0
    v_lshlrev_b32 v15, 4, v15
    s_lshl_b32 s44, s41, 16
    s_lshl_b32 s45, s35, 15
    s_add_u32 s44, s44, s45
    v_add_u32 v12, s44, v14
    v_mov_b32 v10, 1
    v_mov_b32 v11, 0
    s_lshl_b32 s45, s35, 12
    s_add_u32 s45, s45, {FLG_F1}
    s_add_u32 s46, s45, 32
    v_lshlrev_b32 v9, 6, v0
    ''')
    for r in range(0, 16, 2): a(f'v_mov_b64 {vr(EXT+r,2)}, 0')
    a.stamp(4)
    if os.environ.get('NOFNET'): a('s_branch K_END')
    poll(a, 'BG2', 9, 13, 's45')
    poll(a, 'BG3', 9, 13, 's46')
    poll(a, 'BG4', 15, 13, 's47')
    def fl(ks, ext):
        NS = 8 if ext else 12
        b = 16 + (12 if ext else 8)*(ks % NS)
        o = 1024*(ks % 4)
        a(f"""
        buffer_load_dwordx4 {vr(b,4)}, v14, s[28:31], s48 offen offset:{o}{SC1}
        buffer_load_dwordx4 {vr(b+4,4)}, v12, s[28:31], s36 offen offset:{o}{SC1}
        """)
        if ext: a(f'buffer_load_dwordx4 {vr(b+8,4)}, v12, s[28:31], s37 offen offset:{o}{SC1}')
        if ks % 4 == 3: a('s_add_u32 s48, s48, 4096\ns_add_u32 s36, s36, 4096' + ('\ns_add_u32 s37, s37, 4096' if ext else ''))
    def floop(ext):
        per = 3 if ext else 2
        NS = 8 if ext else 12
        for ks in range(NS): fl(ks, ext)
        for ks in range(32):
            b = 16 + (12 if ext else 8)*(ks % NS)
            rem = min(32, ks+NS) - ks - 1
            a(f's_waitcnt vmcnt({per*rem})')
            a(f'v_mfma_f32_32x32x16_bf16 {vr(ACC,16)}, {vr(b,4)}, {vr(b+4,4)}, {"0" if ks == 0 else vr(ACC,16)}')
            if ext: a(f'v_mfma_f32_32x32x16_bf16 {vr(EXT,16)}, {vr(b,4)}, {vr(b+8,4)}, {vr(EXT,16)}')
            if ks+NS < 32: fl(ks+NS, ext)
    a('s_cmp_eq_u32 s56, 0\ns_cbranch_scc1 BG_FEXT')
    floop(False)
    a('s_branch BG_FDONE\nBG_FEXT:')
    floop(True)
    a('BG_FDONE:')
    a.stamp(5)
    a(f'''
    s_lshl_b32 s44, s41, 7
    v_lshl_add_u32 v12, v6, 2, s44
    s_mov_b32 s44, {AE1K_OFF}
    v_mov_b32 v13, 1024
    s_mov_b32 s69, s44
    s_mul_i32 s44, s33, 3072
    s_add_u32 s44, s44, {FX}
    s_lshl_b32 s45, s35, 7
    s_lshl_b32 s46, s34, 8
    s_add_u32 s45, s45, s46
    s_add_u32 s45, s45, {FE}
    v_lshlrev_b32 v3, 6, v7
    v_add_u32 v3, s45, v3
    v_lshl_add_u32 v4, v6, 2, s45
    s_nop 3
    ''')
    for g in range(4):
        a(f'''
        s_sub_u32 s46, {g+3}, s33
        s_and_b32 s46, s46, 3
        s_cmp_eq_u32 s46, 3
        s_cselect_b64 exec, 0, -1
        s_lshl_b32 s46, s46, 10
        s_add_u32 s46, s46, s44
        v_add_u32 v2, s46, v14
        ds_write_b128 v2, {vr(ACC+4*g,4)}
        ''')
    a(f'''
    s_mov_b64 exec, -1
    s_cmp_eq_u32 s34, 0
    s_cbranch_scc0 BG_XQ
    s_mov_b32 exec_lo, 1
    s_mov_b32 exec_hi, 1
    ''')
    for i in range(4): a(f'ds_write_b128 v3, {vr(EXT+4*i,4)} offset:{16*i}')
    a(f'''
    s_branch BG_XD
    BG_XQ:
    s_mov_b32 exec_hi, 0
    ds_write_b32 v4, v{EXT}
    BG_XD:
    s_mov_b64 exec, 1
    s_waitcnt lgkmcnt(0)
    ds_add_u32 v1, v10 offset:12
    s_mov_b64 exec, -1
    s_cmp_lt_u32 s33, 2
    s_cbranch_scc1 BG_M01
    s_cmp_eq_u32 s33, 2
    s_cbranch_scc1 BG_M2
    ''')
    def mv(g):
        for i in range(4): a(f'v_mov_b32 v{20+i}, v{ACC+4*g+i}')
    mv(3); a('s_branch BG_MD\nBG_M2:'); mv(2); a('s_branch BG_MD\nBG_M01:\ns_cmp_eq_u32 s33, 0\ns_cbranch_scc1 BG_M0'); mv(1); a('s_branch BG_MD\nBG_M0:'); mv(0)
    a('BG_MD:')
    for j in range(1, 4):
        a(f'''
        s_add_u32 s46, s33, {j}
        s_and_b32 s46, s46, 3
        s_mul_i32 s46, s46, 3072
        s_add_u32 s46, s46, {FX + (3-j)*1024}
        v_add_u32 v{40+j}, s46, v14
        ''')
    a(f'''
    s_lshl_b32 s46, s33, 4
    s_add_u32 s46, s46, {FE}
    v_lshlrev_b32 v3, 6, v7
    v_add_u32 v3, s46, v3
    v_lshlrev_b32 v4, 2, v6
    v_add_u32 v4, {FE+256}, v4
    BG_FSPIN:
    ds_read_b32 v5, v1 offset:12
    s_waitcnt lgkmcnt(0)
    v_readfirstlane_b32 s46, v5
    s_cmp_ge_u32 s46, 4
    s_cbranch_scc0 BG_FSPIN
    buffer_load_dword v16, v12, s[28:31], s69 offen{SC1}
    buffer_load_dword v17, v13, s[28:31], s69 offen{SC1}
    ds_read_b128 v[24:27], v41
    ds_read_b128 v[28:31], v42
    ds_read_b128 v[32:35], v43
    ds_read_b128 v[44:47], v3
    ds_read_b128 v[48:51], v3 offset:128
    ds_read_b32 v52, v4
    ds_read_b32 v53, v4 offset:128
    ''')
    bg_tail_a(a)
    a(f'''
    s_and_b32 s46, s33, 1
    s_cmp_eq_u32 s46, 0
    s_cselect_b64 s[60:61], -1, 0
    s_cmp_eq_u32 s34, 0
    s_cselect_b64 s[62:63], -1, 0
    s_cmp_eq_u32 s41, 0
    s_cselect_b32 s64, 1, 0
    s_mov_b32 s65, s64
    s_or_b32 s46, s40, s33
    s_cmp_eq_u32 s46, 0
    s_cselect_b32 s66, -1, 0
    s_mov_b32 s67, 0
    s_lshl_b32 s46, s41, 5
    v_add_u32 v2, s46, v6
    v_sub_u32 v3, 512, v2
    v_mov_b32 v4, 256
    v_cndmask_b32 v3, v3, v4, s[64:65]
    v_lshlrev_b32 v2, 1, v2
    v_lshlrev_b32 v3, 1, v3
    v_add_u32 v2, 1024, v2
    v_add_u32 v3, 1024, v3
    s_lshl_b32 s46, s40, 5
    s_lshl_b32 s47, s33, 3
    s_add_u32 s46, s46, s47
    v_lshl_add_u32 v4, v7, 2, s46
    v_sub_u32 v5, {2048-3}, v4
    v_lshl_add_u32 v8, v4, 11, v2
    v_lshl_add_u32 v9, v4, 11, v3
    v_lshl_add_u32 v10, v5, 11, v2
    v_lshl_add_u32 v11, v5, 11, v3
    v_mov_b32 v4, {1024-3}
    v_cndmask_b32 v5, v5, v4, s[66:67]
    v_lshl_add_u32 v12, v5, 11, v2
    v_lshl_add_u32 v13, v5, 11, v3
    s_waitcnt vmcnt(0) lgkmcnt(0)
    ''')
    for i in range(4):
        a(f'''
        v_cndmask_b32 v36, v{32+i}, v{24+i}, s[60:61]
        v_cndmask_b32 v37, v{24+i}, v{32+i}, s[60:61]
        v_add_f32 v36, v36, v{20+i}
        v_add_f32 v37, v37, v{28+i}
        v_cndmask_b32 v{20+i}, v37, v36, s[62:63]
        v_cndmask_b32 v{24+i}, v36, v37, s[62:63]
        v_add_f32 v{44+i}, v{44+i}, v{48+i}
        ''')
        op = 'v_add_f32' if i % 2 == 0 else 'v_sub_f32'
        a(f'{op} v{20+i}, v{20+i}, v16\n{op} v{44+i}, v{44+i}, v17')
    a(f'''
    v_add_f32 v52, v52, v53
    v_add_f32 v52, v52, v16
    v_add_f32 v53, v24, v17
    v_cndmask_b32 v24, v24, 0, s[66:67]
    v_cndmask_b32 v53, v52, v53, s[64:65]
    ''')
    for i in range(4):
        t0 = 56 + 8*i
        a(f'''
        v_cndmask_b32 v{24+i}, v{24+i}, 0, s[64:65]
        v_sub_f32 v{t0}, v{20+i}, v{24+i}
        v_add_f32 v{t0+1}, v{20+i}, v{24+i}
        v_cndmask_b32 v{t0+2}, v{t0+1}, v{44+i}, s[64:65]
        v_cndmask_b32 v{t0+3}, v{t0}, v{44+i}, s[64:65]
        ''')
        if i == 0:
            a(f'''
            v_cndmask_b32 v{t0+1}, v{t0+1}, v52, s[66:67]
            v_cndmask_b32 v{t0+3}, v{t0+3}, v53, s[66:67]
            ''')
        a(f'''
        v_cvt_pk_bf16_f32 v{t0+4}, v{t0}, v{t0+1}
        v_cvt_pk_bf16_f32 v{t0+5}, v{t0+2}, v{t0+3}
        s_mov_b32 s46, {i*2048}
        s_mov_b32 s47, {(3-i)*2048}
        buffer_store_short v{t0+4}, v8, s[52:55], s46 offen{FST}
        buffer_store_short_d16_hi v{t0+4}, v{12 if i == 0 else 10}, s[52:55], s47 offen{FST}
        buffer_store_short v{t0+5}, v9, s[52:55], s46 offen{FST}
        buffer_store_short_d16_hi v{t0+5}, v{13 if i == 0 else 11}, s[52:55], s47 offen{FST}
        ''')

def wo_stage(a):
    srd(a, 48, 8, 0x80000)
    a(f"""
    v_lshrrev_b32 v90, 3, v0
    v_and_b32 v91, 7, v0
    v_and_b32 v92, 2, v90
    v_lshlrev_b32 v92, 1, v92
    v_xor_b32 v91, v91, v92
    v_lshlrev_b32 v91, 4, v91
    v_lshl_add_u32 v90, v90, 10, v91
    s_and_b32 s44, s40, 7
    s_lshl_b32 s45, s44, 7
    s_lshl_b32 s69, s33, 17
    s_add_u32 s45, s45, s69
    """)
    for i in range(16):
        a(f'buffer_load_dwordx4 {vr(96+4*i,4)}, v90, s[48:51], s45 offen\ns_add_u32 s45, s45, 8192')
    a(f"""
    s_lshl_b32 s69, s33, 14
    v_add_u32 v91, s69, v14
    s_lshr_b32 s69, s40, 3
    s_lshl_b32 s47, s41, 2
    s_add_u32 s69, s69, s47
    s_lshl_b32 s69, s69, {OFS+6}
    s_add_u32 s69, s69, {FLG_O}
    v_lshlrev_b32 v92, {OFS}, v0
    s_waitcnt vmcnt(0) lgkmcnt(0)
    s_barrier
    ds_read_b32 v93, v1 offset:{BADF-SCR}
    s_waitcnt lgkmcnt(0)
    v_readfirstlane_b32 s47, v93
    s_cmp_eq_u32 s47, 0
    s_cbranch_scc1 BG_T1
    s_barrier
    s_barrier
    BG_T1:
    """)
    for i in range(16): a(f'ds_write_b128 v91, {vr(96+4*i,4)} offset:{1024*i}')
    a('s_waitcnt lgkmcnt(0)\ns_barrier')

def o_poll(a):
    a('s_cmp_lg_u32 s33, 0\ns_cbranch_scc1 K3_OK')
    poll(a, 'K3', 92, 93, 's69')
    a('s_barrier')

def bg_tail_a(a):
    if LATEF: wo_stage(a)

def bg_tail(a):
    if not LATEF: wo_stage(a)
    o_poll(a)

def fused():
    a = Asm()
    a('s_cmp_ge_u32 s2, 256\ns_cbranch_scc1 K_END')
    a.stamp(0)
    a(f'''
    s_load_dwordx8 s[4:11], s[0:1], 0
    s_load_dwordx4 s[20:23], s[0:1], 64
    s_load_dwordx2 s[24:25], s[0:1], 80
    v_lshrrev_b32 v1, 6, v0
    v_and_b32 v0, 63, v0
    s_and_b32 s44, s2, 7
    v_readfirstlane_b32 s26, v1
    s_lshr_b32 s45, s2, 3
    s_and_b32 s46, s45, 3
    s_lshl_b32 s40, s44, 1
    s_and_b32 s40, s40, 12
    s_add_u32 s40, s40, s46
    s_lshr_b32 s47, s45, 2
    s_lshr_b32 s42, s47, 1
    s_and_b32 s41, s44, 1
    s_lshl_b32 s41, s41, 1
    s_and_b32 s48, s47, 1
    s_add_u32 s41, s41, s48
    s_lshl_b32 s43, s46, 1
    s_add_u32 s43, s43, s47
    s_and_b32 s43, s43, {ROT}
    {'s_sub_u32 s26, s26, 4' if BGFIRST else 's_cmp_ge_u32 s26, 8'}
    s_cbranch_scc1 K_BG
    s_getpc_b64 s[44:45]
    PC_HERE:
    s_sub_u32 s44, s44, PC_HERE-{NAME}
    s_subb_u32 s45, s45, 0
    v_lshlrev_b32 v6, 7, v0
    s_lshl_b32 s47, s26, 13
    v_add_u32 v6, s47, v6
    v_min_u32 v6, K_END-{NAME}, v6
    global_load_dword v143, v6, s[44:45]
    s_branch K_MAIN
    K_BG:
    ''')
    background(a)
    a.stamp(6)
    bg_tail(a)
    a.flush(0, 26, grp=1)
    a('s_endpgm')
    a('.p2align 6')
    a('K_MAIN:')
    phase1(a)
    attention(a)
    oproj(a)
    if TAILPROF: a.stamp(4)
    if PROF: a('s_waitcnt vmcnt(0)')
    a.flush(0, 26)
    a('K_END:')
    a('s_endpgm')
    return header(NAME) + a.text(), kd(NAME, 160, 100)

if __name__ == '__main__':
    import sys
    c, d = fused()
    out = '; @launch grid=(256,1,1) block=(768,1,1) lds=163840\n.amdgcn_target "amdgcn-amd-amdhsa--gfx950"\n.text\n' + c + '.section .rodata,"a"\n' + d
    open(sys.argv[1], 'w').write(out)
```

```python
from common import *
NAME = 'concat_heads__mha_block__spectral_fnet__prompt_kernel'
FLG_P1 = 0x710000
FLG_F1 = 0x720000
FLG_CS = 0x728000
FLG_O  = 0x730000
TS = 2064
SCR = 64*TS
MSK, BADF, CNT_F, NONCE, DCNT, QCNT, F1C = SCR, SCR+8, SCR+12, SCR+16, SCR+20, SCR+32, SCR+48
CMB = SCR+256
QST = CMB
FX = CMB+18432
FE = FX+12288
BIAS = float(os.environ.get('BIAS', '100'))
SPIN_MAX = 1 << 16
KA, VA, IDX, VB = 1, 2, 3, 47
KA0, VA0, VB0, QC, ONE = 36, 16, 17, 18, 19
QA, QB = 4, 8
KF = 12
VF = [[20, 24], [28, 32]]
SA, SB, OA, OB, MA, MB = 48, 64, 80, 96, 112, 128
PKD = 144
SC1 = ' sc1'
FST = OST = ''
OFS = 3
ROT = int(os.environ.get('ROT', '6'))
DEFER = int(os.environ.get('DEFER', '3'))
GSH = 1 if DEFER == 1 else 2
P1PROF = int(os.environ.get('P1PROF', '0'))
TPOS = int(os.environ.get('TPOS', '12'))
LATEF = int(os.environ.get('LATEF', '1'))
TAILPROF = int(os.environ.get('TAILPROF', '0'))
BGFIRST = int(os.environ.get('BGFIRST', '0'))
LALIGN = int(os.environ.get('LALIGN', '-1'))
FLAGLATE = int(os.environ.get('FLAGLATE', '0'))
MAINPRIO = int(os.environ.get('MAINPRIO', '1'))
assert FE + 512 <= 163840

def srd(a, d, lo, size):
    a(f's_mov_b32 s{d}, s{lo}\ns_mov_b32 s{d+1}, s{lo+1}\ns_mov_b32 s{d+2}, {size}\ns_mov_b32 s{d+3}, 0x20000')

def poll(a, tag, vaddr, vt, soff, mask=None):
    if mask: a(f's_mov_b64 exec, {mask}')
    a(f'''
    s_mov_b32 s68, {SPIN_MAX}
    {tag}_SP:
    buffer_load_dword v{vt}, v{vaddr}, s[28:31], {soff} offen sc1
    s_sub_u32 s68, s68, 1
    s_waitcnt vmcnt(0)
    v_cmp_ne_u32 vcc, s27, v{vt}
    s_cbranch_scc1 {tag}_OK
    s_cbranch_vccnz {tag}_SP
    {tag}_OK:
    ''')
    if mask: a('s_mov_b64 exec, -1')


def bg_init(a):
    a(f"""
    v_lshlrev_b32 v14, 4, v0
    v_mov_b32 v1, {SCR}
    v_mov_b32 v2, 0
    v_cmp_gt_u32 vcc, 2, v0
    v_lshrrev_b32 v4, 2, v0
    v_lshl_add_u32 v5, v0, 2, v1
    v_cndmask_b32 v3, 0, 3, vcc
    v_cmp_eq_u32 vcc, 2, v4
    s_lshl_b32 s67, s41, 2
    s_add_u32 s67, s67, s42
    v_cndmask_b32 v3, v3, 2, vcc
    s_mov_b64 exec, 0xffff
    ds_write_b32 v5, v3
    s_mov_b64 exec, -1
    s_lshl_b32 s67, s67, 4
    s_add_u32 s67, s67, s40
    s_lshl_b32 s67, s67, 6
    s_add_u32 s67, s67, {FLG_P1}
    s_and_b32 s66, s40, {DEFER}
    s_cmp_eq_u32 s42, 0
    s_cselect_b32 s66, 0, s66
    s_or_b32 s66, s66, s33
    """)

def p1_loader(a):
    a(f"""
    v_lshrrev_b32 v6, 3, v0
    v_and_b32 v8, 7, v0
    v_lshrrev_b32 v9, 4, v0
    v_xor_b32 v8, v8, v9
    v_lshlrev_b32 v8, 4, v8
    v_lshl_add_u32 v16, v6, 10, v8
    v_xor_b32 v17, 64, v16
    v_add_u32 v17, 0x2000, v17
    v_add_u32 v18, 0x4000, v16
    v_add_u32 v19, 0x4000, v17
    s_lshl_b32 s44, s40, 17
    s_lshl_b32 s45, s33, 15
    s_add_u32 s44, s44, s45
    v_mul_u32_u24 v7, 3072, v9
    v_and_b32 v8, 15, v0
    v_lshlrev_b32 v9, 2, v9
    v_xor_b32 v8, v8, v9
    v_lshl_add_u32 v20, v8, 4, v7
    v_add_u32 v21, {4*3072}, v20
    v_add_u32 v22, {8*3072}, v20
    v_add_u32 v23, {12*3072}, v20
    s_lshl_b32 s47, s42, 10
    s_lshl_b32 s48, s41, 8
    s_add_u32 s47, s47, s48
    s_mul_i32 s48, s33, {16*3072}
    s_add_u32 s47, s47, s48
    s_lshl_b32 s51, s33, 12
    s_waitcnt lgkmcnt(0)
    """)
    srd(a, 56, 4, 0x200000); srd(a, 36, 6, 0x180000)
    def issue(c):
        slot = c % 4
        a(f"""
        s_add_u32 s54, s43, {c}
        s_and_b32 s54, s54, 7
        s_lshl_b32 s55, s54, 7
        s_add_u32 s55, s55, s44
        s_mul_i32 s54, s54, {64*3072}
        s_add_u32 m0, s51, {slot*32768}
        s_add_u32 s54, s54, s47
        """)
        for j in range(4):
            a(f"""
            buffer_load_dwordx4 v{16+j}, s[56:59], s55 offen lds
            s_add_u32 m0, s51, {slot*32768+16384+j*1024}
            s_nop 0
            buffer_load_dwordx4 v{20+j}, s[36:39], s54 offen lds
            """)
            if j < 3: a(f"s_add_u32 m0, s51, {slot*32768+(j+1)*1024}\ns_nop 0")
    a.stamp(7)
    issue(0); issue(1)
    bg_init(a)
    a(f"""
    s_add_u32 s48, s2, s33
    s_cmp_lg_u32 s48, 0
    s_cbranch_scc1 BG_NONONCE
    s_memrealtime s[60:61]
    s_waitcnt lgkmcnt(0)
    s_or_b32 s60, s60, 1
    v_mov_b32 v8, s60
    s_mov_b64 exec, 1
    global_store_dword v2, v8, s[22:23] sc1
    s_mov_b64 exec, -1
    BG_NONONCE:
    """)
    for c in range(8):
        a(f"s_waitcnt vmcnt({8 if c < 7 else 0}){' lgkmcnt(0)' if c == 0 else ''}\ns_barrier")
        if c + 2 < 8: issue(c+2)

def phase1(a):
    a(f"""
    s_mov_b32 s66, 0
    v_mov_b32 v142, 0
    s_cmp_eq_u32 s42, 3
    s_cbranch_scc0 K1_GEMM
    s_waitcnt lgkmcnt(0)
    """)
    srd(a, 28, 24, WS_USED)
    a("s_barrier")
    a("s_branch K1_DONE\nK1_GEMM:")
    a(f'''
    s_and_b32 s57, s26, 1
    s_lshr_b32 s58, s26, 1
    v_and_b32 v6, 31, v0
    v_lshrrev_b32 v7, 5, v0
    s_lshl_b32 s49, s57, 5
    v_add_u32 v8, s49, v6
    v_bfe_u32 v9, v8, 1, 3
    v_xor_b32 v9, v9, v7
    ''')
    for ks in range(4):
        a(f'''
        v_xor_b32 v10, {2*ks}, v9
        v_lshlrev_b32 v10, 4, v10
        v_lshl_add_u32 v{96+ks}, v8, 7, v10
        v_add_u32 v{100+ks}, 0x10000, v{96+ks}
        ''')
    a('''
    v_bfe_u32 v8, v0, 2, 2
    v_lshl_add_u32 v9, v7, 3, v8
    v_bfe_u32 v10, v0, 4, 1
    v_lshlrev_b32 v10, 1, v10
    v_bfe_u32 v11, v0, 1, 1
    v_add_u32 v10, v10, v11
    s_lshl_b32 s49, s58, 2
    v_add_u32 v10, s49, v10
    v_lshlrev_b32 v8, 2, v8
    v_xor_b32 v10, v10, v8
    v_lshlrev_b32 v10, 4, v10
    v_lshl_add_u32 v10, v9, 8, v10
    v_and_b32 v11, 1, v0
    v_lshl_add_u32 v104, v11, 3, v10
    v_add_u32 v105, 0x10000, v104
    s_waitcnt lgkmcnt(0)
    s_mov_b32 s28, s24
    s_mov_b32 s29, s25
    s_mov_b32 s30, 14680064
    s_mov_b32 s31, 0x20000
    ''')
    a(f"""
    s_lshl_b32 s60, s41, 3
    s_lshl_b32 s61, s58, 1
    s_add_u32 s60, s60, s61
    s_lshl_b32 s60, s60, 6
    s_lshl_b32 s61, s40, 2
    s_add_u32 s61, s61, s57
    s_add_u32 s60, s60, s61
    s_lshl_b32 s67, s41, 2
    s_add_u32 s67, s67, s42
    s_lshl_b32 s67, s67, 4
    s_add_u32 s67, s67, s40
    s_lshl_b32 s67, s67, 6
    s_add_u32 s67, s67, {FLG_P1}
    s_and_b32 s66, s40, {DEFER}
    s_cmp_eq_u32 s42, 0
    s_cselect_b32 s66, 0, s66
    """)
    a('''
    s_cmp_ge_u32 s42, 2
    s_cbranch_scc1 K1_LOOP_XW
    ''')
    def reads(slot, ks, fs):
        b = 16 + 12*fs
        hi = slot >= 2
        so = (slot & 1)*32768
        xa = (100 if hi else 96) + ks
        wa = 105 if hi else 104
        a(f'''
        ds_read_b128 {vr(b,4)}, v{xa} offset:{so}
        ds_read_b64_tr_b16 {vr(b+8,2)}, v{wa} offset:{so+16384+ks*4096}
        ds_read_b64_tr_b16 {vr(b+10,2)}, v{wa} offset:{so+16384+ks*4096+1024}
        ds_read_b128 {vr(b+4,4)}, v{xa} offset:{so+8192}
        ''')
    def mfmas(wx, fs, first):
        b = 16 + 12*fs
        for T in range(2):
            d = vr(64+16*T, 16); c = '0' if first else d
            x = vr(b+4*T, 4); w = vr(b+8, 4)
            a(f'v_mfma_f32_32x32x16_bf16 {d}, {w if wx else x}, {x if wx else w}, {c}')
    def loop(wx):
        def enter(c):
            a('s_barrier')
            if c == 0: a.stamp(2)
            if P1PROF and c in (1,2,3,4,6): a.stamp({1:5,2:6,3:7,4:8,6:9}[c])
        enter(0)
        reads(0, 0, 0); reads(0, 1, 1)
        for i in range(32):
            n = i + 2
            if n < 32:
                if n % 4 == 0: enter(n // 4)
                reads((n // 4) % 4, n % 4, n % 4)
            a(f's_waitcnt lgkmcnt({8 if n < 32 else (4 if n == 32 else 0)})')
            mfmas(wx, i % 4, i == 0)
        a.stamp(3)
    def pack():
        for T in range(2):
            for hh in range(2):
                b = 64 + 16*T + 8*hh
                for i in range(4): a(f'v_cvt_pk_bf16_f32 v{PKD+(2*T+hh)*4+i}, v{b+2*i}, v{b+2*i+1}')
    def offs(f):
        for T in range(2):
            for hh in range(2): a(f's_add_u32 s{62+2*T+hh}, s60, {f(T, hh)}')
    loop(True)
    a(f"""
    s_cmp_eq_u32 s42, 0
    s_cbranch_scc0 K1_EPI_K
    s_lshl_b32 s60, s60, 10
    v_lshlrev_b32 v142, 4, v0
    s_mov_b32 s61, {f2u(QSCALE)}
    """)
    offs(lambda T, hh: QF_OFF + hh*65536 + T*2048)
    a('s_nop 2')
    a('s_mov_b32 s60, s61')
    for r in range(0, 32, 2): a(f'v_pk_mul_f32 {vr(64+r,2)}, {vr(64+r,2)}, s[60:61]')
    a(f"""
    s_branch K1_PACK
    K1_EPI_K:
    s_lshl_b32 s60, s60, 11
    v_and_b32 v1, 0x33, v0
    v_bfe_u32 v2, v0, 2, 1
    v_bfe_u32 v3, v0, 3, 1
    v_lshl_add_u32 v1, v2, 3, v1
    v_lshl_add_u32 v1, v3, 2, v1
    v_lshlrev_b32 v142, 4, v1
    """)
    offs(lambda T, hh: KV_OFF + hh*131072 + T*4096)
    a('s_branch K1_PACK')
    a('K1_LOOP_XW:')
    loop(False)
    a(f"""
    s_lshl_b32 s60, s60, 11
    v_and_b32 v1, 15, v0
    v_lshlrev_b32 v1, 4, v1
    v_bfe_u32 v2, v0, 4, 1
    v_lshl_add_u32 v1, v2, 17, v1
    v_lshl_add_u32 v142, v7, 8, v1
    """)
    offs(lambda T, f: KV_OFF + 1024 + f*512 + T*4096)
    a('s_nop 1\nK1_PACK:')
    pack()
    a('s_cmp_lg_u32 s66, 0\ns_cbranch_scc1 K1_DONE')
    p1_stores(a)
    a('K1_DONE:')

def p1_stores(a):
    for k in range(4): a(f'buffer_store_dwordx4 {vr(PKD+4*k,4)}, v142, s[28:31], s{62+k} offen{SC1}')

def arrive_deferred(a, tag):
    a(f"""
    s_waitcnt vmcnt(0)
    s_mov_b64 exec, 1
    ds_add_rtn_u32 v44, v46, v{ONE} offset:{DCNT-MSK}
    v_mov_b32 v45, s27
    v_mov_b32 v43, 0
    s_waitcnt lgkmcnt(0)
    v_cmp_eq_u32 vcc, 7, v44
    s_mov_b32 s66, 0
    s_cbranch_vccz {tag}
    buffer_store_dword v45, v43, s[28:31], s67 offen sc1
    {tag}:
    s_mov_b64 exec, -1
    """)

def attention(a):
    a(f"""
    s_and_b32 s40, s2, 7
    s_lshr_b32 s41, s2, 3
    s_lshl_b32 s40, s40, 2
    s_lshr_b32 s45, s41, 3
    s_add_u32 s40, s40, s45
    s_and_b32 s41, s41, 7
    s_and_b32 s33, s26, 3
    s_lshr_b32 s34, s26, 2
    s_lshl_b32 s35, s41, 3
    s_lshl_b32 s36, s33, 1
    s_add_u32 s35, s35, s36
    v_lshlrev_b32 v36, 4, v0
    v_and_b32 v39, 15, v0
    v_lshrrev_b32 v38, 5, v0
    v_lshlrev_b32 v39, 4, v39
    v_lshl_add_u32 v39, v38, 8, v39
    v_bfe_u32 v38, v0, 4, 1
    v_lshl_add_u32 v39, v38, 18, v39
    v_and_b32 v41, 27, v0
    v_cmp_eq_u32 vcc, 16, v41
    v_add_u32 v{VA0}, 1024, v39
    v_add_u32 v{VB0}, 1536, v39
    v_mov_b32 v41, 2048
    v_mov_b32 v{IDX}, 0xdddddddd
    v_cndmask_b32 v{VA0}, v{VA0}, v41, vcc
    v_cndmask_b32 v{VB0}, v{VB0}, v41, vcc
    s_mov_b32 s42, 0
    s_mov_b32 s32, 0xffff0003
    s_lshl_b32 s36, s33, 11
    s_add_u32 s36, s36, {QST}
    v_add_u32 v41, s36, v36
    v_mov_b32 v46, {MSK}
    s_lshl_b32 s36, s33, 2
    s_add_u32 s36, s36, {QCNT}
    v_mov_b32 v{QC}, s36
    v_mov_b32 v{ONE}, 1
    """)
    def zero_acc():
        for r in range(0, 32, 2): a(f'v_mov_b64 {vr(OA+r,2)}, 0')
        for r in range(0, 4, 2): a(f'v_mov_b64 {vr(VF[1][1]+r,2)}, 0')
    zero_acc()
    a('s_waitcnt vmcnt(0)')
    a.stamp(4)
    a('s_barrier')
    a('s_barrier')
    if not P1PROF: a.stamp(5)
    a(f"""
    ds_read_b128 {vr(QA,4)}, v41
    ds_read_b128 {vr(QB,4)}, v41 offset:1024
    ds_read_b128 {vr(KF,4)}, v36
    ds_read_b32 v44, v46 offset:16
    s_cmp_eq_u32 s66, 0
    s_cbranch_scc1 K2_NODEF
    """)
    p1_stores(a)
    a(f"""
    K2_NODEF:
    s_waitcnt lgkmcnt(0)
    v_mfma_f32_32x32x16_bf16 {vr(SA,16)}, {vr(KF,4)}, {vr(QA,4)}, 0
    v_mfma_f32_32x32x16_bf16 {vr(SB,16)}, {vr(KF,4)}, {vr(QB,4)}, 0
    v_readfirstlane_b32 s27, v44
    s_cmp_lg_u32 s34, 0
    s_cbranch_scc1 K2_FILL
    s_setprio {MAINPRIO}
    s_nop 6
    s_branch K2_GO
    K2_FILL:
    s_nop 7
    s_cmp_eq_u32 s66, 0
    s_cbranch_scc1 K2_GO
    """)
    arrive_deferred(a, 'K2_AD0')
    a('K2_GO:')
    def rowmax(S, dst, acc=False):
        if not acc:
            a(f'v_max3_f32 v{dst}, v{S}, v{S+1}, v{S+2}')
            for i in range(3, 15, 2): a(f'v_max3_f32 v{dst}, v{dst}, v{S+i}, v{S+i+1}')
            a(f'v_max_f32 v{dst}, v{dst}, v{S+15}')
        else:
            for i in range(0, 16, 2): a(f'v_max3_f32 v{dst}, v{dst}, v{S+i}, v{S+i+1}')
    def xhalf(r, t):
        a(f'''
        v_mov_b32 v{t}, v{r}
        s_nop 1
        v_permlane32_swap_b32 v{r}, v{t}
        s_nop 1
        v_max_f32 v{r}, v{r}, v{t}
        ''')
    rowmax(SA, 41); rowmax(SB, 42); xhalf(41, 43); xhalf(42, 44)
    a(f'''
    v_mov_b32 v43, {f2u(-BIAS)}
    v_sub_f32 v41, v43, v41
    v_sub_f32 v42, v43, v42
    K2_RESTART:
    s_mul_i32 s44, s34, {4*TS}
    v_add_u32 v{KA}, s44, v{KA0}
    v_add_u32 v{VA}, s44, v{VA0}
    v_add_u32 v{VB}, s44, v{VB0}
    ds_read_b128 {vr(KF,4)}, v{KA}
    ds_read_b128 {vr(VF[0][0],4)}, v{VA}
    ds_read_b128 {vr(VF[0][1],4)}, v{VB}
    ''')
    a('v_mov_b32 v40, v41\nv_mov_b32 v43, v42')
    for r in range(0, 16, 2): a(f'v_mov_b64 {vr(MA+r,2)}, v[40:41]')
    for r in range(0, 16, 2): a(f'v_mov_b64 {vr(MB+r,2)}, v[42:43]')
    for r in range(8, 16, 2): a(f'v_mov_b64 {vr(SB+r,2)}, 0')
    a(f'''
    s_waitcnt lgkmcnt(0)
    v_mfma_f32_32x32x16_bf16 {vr(SA,16)}, {vr(KF,4)}, {vr(QA,4)}, {vr(MA,16)}
    s_nop 10
    ''')
    if not P1PROF: a.stamp(6)
    a(f'''
    s_branch K2_LOOP
    K2_SPIN:
    {'s_memrealtime s[96:97]' if PROF else ''}
    K2_SPIN2:
    ds_read_b64 v[44:45], v46
    s_waitcnt lgkmcnt(0)
    v_and_b32 v44, v44, v45
    s_nop 0
    v_readfirstlane_b32 s32, v44
    s_or_b32 s32, s32, 0xffff0000
    s_bitcmp1_b32 s32, s43
    s_cbranch_scc0 K2_SPIN2
    {'s_memrealtime s[98:99]' if PROF else ''}
    {'s_waitcnt lgkmcnt(0)' if PROF else ''}
    {'s_sub_u32 s98, s98, s96' if PROF else ''}
    {'s_add_u32 s76, s76, s98' if PROF else ''}
    s_branch K2_READY
    K2_BACK:
    s_cmp_eq_u32 s66, 0
    s_cbranch_scc1 K2_LOOP
    ''')
    arrive_deferred(a, 'K2_AD1')
    if LALIGN >= 0:
        a('s_branch K2_LOOP')
        a('.p2align 6')
        for _ in range(LALIGN): a('s_nop 0')
    a(f'''
    K2_LOOP:
    ''')
    def ex(S, lo, hi):
        for i in range(lo, hi): a(f'v_exp_f32 v{S+i}, v{S+i}')
    def tile(j):
        vs, vp = VF[j & 1], VF[(j+1) & 1]
        ex(SA, 0, 2)
        a(f'v_smfmac_f32_32x32x32_bf16 {vr(OB,16)}, {vr(vp[1],4)}, {vr(SB+8,8)}, v{IDX}')
        ex(SA, 2, 5)
        a(f'v_mfma_f32_32x32x16_bf16 {vr(SB,16)}, {vr(KF,4)}, {vr(QB,4)}, {vr(MB,16)}')
        o = (j+1)*TS
        if j == 3:
            o = 0
            a(f"""
            s_min_u32 s44, s43, 15
            s_mulk_i32 s44, {4*TS}
            s_bitcmp1_b32 s32, s43
            s_cbranch_scc0 K2_SPIN
            K2_READY:
            v_add_u32 v{KA}, s44, v{KA0}
            v_add_u32 v{VA}, s44, v{VA0}
            v_add_u32 v{VB}, s44, v{VB0}
            """)
        a(f"""
        ds_read_b128 {vr(KF,4)}, v{KA} offset:{o}
        ds_read_b128 {vr(vp[0],4)}, v{VA} offset:{o}
        ds_read_b128 {vr(vp[1],4)}, v{VB} offset:{o}
        """)
        if j == 2: a(f's_mov_b64 exec, 1\nds_add_rtn_u32 v43, v{QC}, v{ONE}\ns_mov_b64 exec, -1')
        ex(SA, 5, 10)
        a(f'v_smfmac_f32_32x32x32_bf16 {vr(OA,16)}, {vr(vs[0],4)}, {vr(SA,8)}, v{IDX}')
        ex(SA, 10, 16)
        ex(SB, 0, 2)
        a(f'v_smfmac_f32_32x32x32_bf16 {vr(OA,16)}, {vr(vs[1],4)}, {vr(SA+8,8)}, v{IDX}')
        ex(SB, 2, 5)
        a('s_waitcnt lgkmcnt(0)')
        a(f'v_mfma_f32_32x32x16_bf16 {vr(SA,16)}, {vr(KF,4)}, {vr(QA,4)}, {vr(MA,16)}')
        ex(SB, 5, 10)
        a(f'v_smfmac_f32_32x32x32_bf16 {vr(OB,16)}, {vr(vs[0],4)}, {vr(SB,8)}, v{IDX}')
        if j == 2: a('v_readfirstlane_b32 s43, v43')
        if j == 3: a('s_cmp_lt_u32 s43, 16')
        ex(SB, 10, 16)
    for j in range(4): tile(j)
    a(f'''
    s_cbranch_scc1 K2_BACK
    s_nop 1
    v_smfmac_f32_32x32x32_bf16 {vr(OB,16)}, {vr(VF[1][1],4)}, {vr(SB+8,8)}, v{IDX}
    ''')
    if not P1PROF: a.stamp(7)
    a(f'''
    s_setprio 0
    s_cmp_eq_u32 s66, 0
    s_cbranch_scc1 K2_NOAD
    ''')
    arrive_deferred(a, 'K2_AD2')
    a(f'''
    K2_NOAD:
    s_nop 1
    s_mul_i32 s44, s26, 2304
    s_add_u32 s44, s44, {CMB}
    v_add_u32 v45, s44, v36
    v_lshlrev_b32 v46, 2, v0
    v_add_u32 v46, s44, v46
    s_mov_b32 s44, {f2u(2.0**100)}
    s_mov_b32 s45, 0x7f800000
    s_mov_b32 s46, {f2u(2.0**-(BIAS+1))}
    s_mov_b32 s47, {f2u(2.0**-105)}
    s_cmp_lg_u32 s42, 0
    s_cbranch_scc1 K2_GOOD
    ''')
    for k, O in enumerate((OA, OB)):
        t = 43+k
        a(f'v_add_f32 v{t}, abs(v{O}), abs(v{O+1})')
        for i in range(2, 8): a(f'v_add_f32 v{t}, v{t}, abs(v{O+i})')
        a(f'''
        v_cmp_ngt_f32 s[48:49], s44, v{O+8}
        v_cmp_ngt_f32 s[50:51], s45, v{t}
        v_cmp_le_f32 s[52:53], s46, v{O+8}
        v_cmp_gt_f32 vcc, s47, v{t}
        s_or_b64 s[48:49], s[48:49], s[50:51]
        s_and_b64 vcc, vcc, s[52:53]
        s_or_b64 s[{54+2*k}:{55+2*k}], s[48:49], vcc
        ''')
    a(f'''
    s_or_b64 s[54:55], s[54:55], s[56:57]
    s_cbranch_scc0 K2_GOOD
    v_mov_b32 v43, {BADF}
    v_mov_b32 v44, 1
    ds_write_b32 v43, v44
    K2_GOOD:
    s_cmp_eq_u32 s34, 0
    s_cbranch_scc1 K2_SENDB
    ds_write_b128 v45, {vr(OA,4)}
    ds_write_b128 v45, {vr(OA+4,4)} offset:1024
    ds_write_b32 v46, v{OA+8} offset:2048
    s_waitcnt lgkmcnt(0)
    ''')
    for r in range(9): a(f'v_mov_b32 v{OA+r}, v{OB+r}')
    a(f'''
    v_subrev_u32 v45, {4*2304}, v45
    v_subrev_u32 v46, {4*2304}, v46
    s_branch K2_SENT
    K2_SENDB:
    ds_write_b128 v45, {vr(OB,4)}
    ds_write_b128 v45, {vr(OB+4,4)} offset:1024
    ds_write_b32 v46, v{OB+8} offset:2048
    v_add_u32 v45, {4*2304}, v45
    v_add_u32 v46, {4*2304}, v46
    K2_SENT:
    v_mov_b32 v43, {BADF}
    s_waitcnt lgkmcnt(0)
    s_barrier
    ds_read_b32 v44, v43
    ds_read_b128 {vr(SA,4)}, v45
    ds_read_b128 {vr(SA+4,4)}, v45 offset:1024
    ds_read_b32 v{SA+8}, v46 offset:2048
    s_add_u32 s36, s35, s34
    s_lshl_b32 s36, s36, 5
    s_add_u32 s36, s36, s40
    s_lshl_b32 s36, s36, 10
    s_add_u32 s36, s36, {OF_OFF}
    s_waitcnt lgkmcnt(3)
    v_readfirstlane_b32 s44, v44
    s_cmp_lt_u32 s42, s44
    s_cbranch_scc0 K2_COMBINE
    ''')
    a(f'''
    s_mov_b32 s42, 1
    v_mov_b32 v41, 0xff800000
    v_mov_b32 v42, 0xff800000
    s_mul_i32 s44, s34, {32*TS}
    v_add_u32 v45, s44, v{KA0}
    v_mov_b32 v43, 2
    ds_write_b32 v{QC}, v43
    s_mov_b32 s43, 32
    K2_MAXLOOP:
    ds_read_b128 {vr(KF,4)}, v45
    v_add_u32 v45, {TS}, v45
    s_waitcnt lgkmcnt(0)
    v_mfma_f32_32x32x16_bf16 {vr(SA,16)}, {vr(KF,4)}, {vr(QA,4)}, 0
    v_mfma_f32_32x32x16_bf16 {vr(SB,16)}, {vr(KF,4)}, {vr(QB,4)}, 0
    s_nop 11
    ''')
    rowmax(SA, 41, True); rowmax(SB, 42, True)
    a(f'''
    s_sub_u32 s43, s43, 1
    s_cmp_lg_u32 s43, 0
    s_cbranch_scc1 K2_MAXLOOP
    ''')
    xhalf(41, 43); xhalf(42, 44)
    a(f'''
    s_lshl_b32 s44, s26, 9
    v_lshlrev_b32 v43, 2, v0
    v_add_u32 v43, s44, v43
    v_xor_b32 v45, 0x800, v43
    v_add_u32 v43, {FX}, v43
    v_add_u32 v45, {FX}, v45
    ds_write_b32 v43, v41
    ds_write_b32 v43, v42 offset:256
    s_waitcnt lgkmcnt(0)
    s_barrier
    ds_read_b32 v44, v45
    ds_read_b32 v45, v45 offset:256
    s_waitcnt lgkmcnt(0)
    v_max_f32 v41, v41, v44
    v_max_f32 v42, v42, v45
    v_sub_f32 v41, 0, v41
    v_sub_f32 v42, 0, v42
    v_mov_b32 v46, {MSK}
    ''')
    zero_acc()
    a(f'''
    s_branch K2_RESTART
    K2_COMBINE:
    ''')
    if not P1PROF: a.stamp(8)
    a(f'''
    s_and_b32 s44, s40, 7
    s_waitcnt lgkmcnt(0)
    v_add_f32 v{OA+8}, v{OA+8}, v{SA+8}
    v_rcp_f32 v{OA+8}, v{OA+8}
    ''')
    for r in range(8): a(f'v_add_f32 v{OA+r}, v{OA+r}, v{SA+r}')
    for r in range(8): a(f'v_mul_f32 v{OA+r}, v{OA+r}, v{OA+8}')
    for i in range(4): a(f'v_cvt_pk_bf16_f32 v{60+i}, v{OA+2*i}, v{OA+2*i+1}')
    a(f'buffer_store_dwordx4 v[60:63], v36, s[28:31], s36 offen{SC1}')
    a(f'''
    s_lshl_b32 s47, s41, 2
    s_add_u32 s47, s47, s33
    s_lshl_b32 s47, s47, 5
    s_add_u32 s47, s47, s40
    s_lshl_b32 s47, s47, 1
    s_add_u32 s47, s47, s34
    s_lshl_b32 s47, s47, {OFS}
    s_add_u32 s47, s47, {FLG_O}
    v_mov_b32 v5, s27
    v_mov_b32 v6, 0
    ''')
    if not FLAGLATE: o_flag(a)

def o_flag(a):
    a('s_waitcnt vmcnt(0)\ns_mov_b64 exec, 1\nbuffer_store_dword v5, v6, s[28:31], s47 offen sc1\ns_mov_b64 exec, -1')

def oproj(a):
    srd(a, 52, 20, 0x400000)
    a(f'''
    v_lshlrev_b32 v2, 4, v0
    s_and_b32 s56, s26, 1
    s_lshr_b32 s57, s26, 1
    s_lshr_b32 s58, s40, 3
    s_lshl_b32 s59, s41, 2
    s_add_u32 s59, s59, s58
    v_lshrrev_b32 v7, 5, v0
    v_bfe_u32 v8, v0, 2, 2
    v_lshl_add_u32 v9, v7, 2, v8
    v_bfe_u32 v10, v0, 4, 1
    v_lshlrev_b32 v10, 1, v10
    v_bfe_u32 v11, v0, 1, 1
    v_add_u32 v10, v10, v11
    v_and_b32 v8, 2, v8
    v_lshlrev_b32 v8, 1, v8
    v_xor_b32 v10, v10, v8
    v_lshlrev_b32 v10, 4, v10
    v_lshl_add_u32 v10, v9, 7, v10
    v_and_b32 v11, 1, v0
    v_lshl_add_u32 v10, v11, 3, v10
    s_lshl_b32 s60, s57, 14
    v_add_u32 v10, s60, v10
    v_xor_b32 v11, 64, v10
    s_lshl_b32 s61, s59, 16
    s_lshl_b32 s62, s56, 15
    s_add_u32 s61, s61, s62
    s_lshl_b32 s62, s57, 13
    s_add_u32 s61, s61, s62
    s_add_u32 s61, s61, {OF_OFF}
    s_add_u32 s62, s61, 4096
    s_barrier
    ''')
    if TAILPROF: a.stamp(5)
    for hd in range(8):
        for c in range(2):
            b = 64 + (hd*2+c)*4
            ad = 10 + c
            a(f'ds_read_b64_tr_b16 {vr(b,2)}, v{ad} offset:{hd*2048}')
            a(f'ds_read_b64_tr_b16 {vr(b+2,2)}, v{ad} offset:{hd*2048+1024}')
        if hd % 2 == 1 and hd < 7: a('s_waitcnt lgkmcnt(4)')
    if FLAGLATE: o_flag(a)
    a('s_barrier')
    if not P1PROF: a.stamp(9)
    def oloads():
        for hd in range(8):
            a(f'buffer_load_dwordx4 {vr(16+4*hd,4)}, v2, s[28:31], s{61 + hd//4} offen offset:{(hd%4)*1024}{SC1}')
    oloads()
    a(f'''
    s_lshl_b32 s60, s56, 15
    s_add_u32 s60, s60, 65536
    s_lshl_b32 s63, s57, 11
    s_add_u32 s63, s63, s60
    v_add_u32 v13, s63, v2
    s_lshl_b32 s63, s57, 13
    s_add_u32 s63, s63, s60
    v_add_u32 v14, s63, v2
    v_and_b32 v15, 31, v0
    s_lshl_b32 s60, s59, 6
    s_lshl_b32 s63, s56, 5
    s_add_u32 s60, s60, s63
    v_add_u32 v15, s60, v15
    v_lshlrev_b32 v15, 11, v15
    v_lshl_add_u32 v15, v7, 4, v15
    s_lshl_b32 s60, s44, 7
    s_lshl_b32 s63, s57, 5
    s_add_u32 s60, s60, s63
    s_waitcnt lgkmcnt(0)
    ''')
    for hd in range(8):
        a(f's_waitcnt vmcnt({7-hd})')
        for c in range(2):
            d = vr(128+16*c, 16)
            a(f'v_mfma_f32_32x32x16_bf16 {d}, {vr(64+(hd*2+c)*4,4)}, {vr(16+4*hd,4)}, {"0" if hd == 0 else d}')
    if TAILPROF: a.stamp(2)
    a('s_nop 11')
    for g in range(4):
        a(f'ds_write_b128 v13, {vr(128+8*g,4)} offset:{g*8192}')
        a(f'ds_write_b128 v13, {vr(132+8*g,4)} offset:{g*8192+1024}')
    a('s_waitcnt lgkmcnt(0)\ns_barrier')
    if TAILPROF: a.stamp(3)
    for s in range(4):
        a(f'ds_read_b128 {vr(16+8*s,4)}, v14 offset:{s*2048}')
        a(f'ds_read_b128 {vr(20+8*s,4)}, v14 offset:{s*2048+1024}')
    a('s_waitcnt lgkmcnt(4)')
    for r in range(8): a(f'v_add_f32 v{16+r}, v{16+r}, v{24+r}')
    a('s_waitcnt lgkmcnt(0)')
    for r in range(8): a(f'v_add_f32 v{32+r}, v{32+r}, v{40+r}')
    for r in range(8): a(f'v_add_f32 v{16+r}, v{16+r}, v{32+r}')
    for i in range(4): a(f'v_cvt_pk_bf16_f32 v{48+i}, v{16+2*i}, v{17+2*i}')
    a(f'''
    s_nop 1
    v_permlane32_swap_b32 v48, v50
    v_permlane32_swap_b32 v49, v51
    s_nop 1
    buffer_store_dwordx4 v[48:51], v15, s[52:55], s60 offen{OST}
    ''')

def lds_sync(a, tag, off, n):
    a(f"""
    v_mov_b32 v137, 1
    s_mov_b64 exec, 1
    s_waitcnt lgkmcnt(0)
    ds_add_u32 v159, v137 offset:{off}
    s_mov_b64 exec, -1
    {tag}:
    ds_read_b32 v137, v159 offset:{off}
    s_waitcnt lgkmcnt(0)
    v_readfirstlane_b32 s44, v137
    s_cmp_ge_u32 s44, {n}
    s_cbranch_scc0 {tag}
    """)

def get_nonce(a, tag):
    a(f"""
    s_mov_b32 s68, {SPIN_MAX}
    {tag}_NSP:
    global_load_dword v8, v2, s[22:23] sc1
    s_sub_u32 s68, s68, 1
    s_waitcnt vmcnt(0)
    v_readfirstlane_b32 s27, v8
    s_cbranch_scc1 {tag}_NOK
    s_cmp_eq_u32 s27, 0
    s_cbranch_scc1 {tag}_NSP
    {tag}_NOK:
    """)

def fnet1(a):
    RE = [3, 4, 5, 8, 9, 10, 11, 12, 13]
    PK = 140
    a(f"""
    s_and_b32 s42, s33, 1
    s_lshr_b32 s64, s33, 1
    s_and_b32 s43, s2, 7
    s_lshl_b32 s43, s43, 3
    s_lshr_b32 s44, s2, 3
    s_add_u32 s43, s43, s44
    s_sub_u32 s43, s43, 24
    s_lshl_b32 s43, s43, 1
    s_add_u32 s43, s43, s64
    v_and_b32 v6, 31, v0
    v_lshrrev_b32 v7, 5, v0
    v_and_b32 v8, 15, v0
    s_lshl_b32 s45, s43, 3
    s_lshl_b32 s46, s42, 2
    s_add_u32 s45, s45, s46
    s_lshl_b32 s46, s33, 13
    s_lshl_b32 s65, s64, 13
    s_add_u32 s65, s65, 32768
    s_lshl_b32 s64, s64, 2
    v_add_u32 v159, s64, v1
    s_waitcnt lgkmcnt(0)
    """)
    srd(a, 56, 10, 0x200000)
    for p in range(4):
        base = p*2048
        a(f"""
        s_add_u32 m0, s46, {base}
        s_add_u32 s47, s45, {p}
        s_lshl_b32 s44, s47, 10
        buffer_load_dwordx4 v14, s[56:59], s44 offen lds
        s_sub_u32 s44, 2048, s47
        s_cmp_eq_u32 s47, 0
        s_cselect_b32 s44, 1024, s44
        s_add_u32 m0, s46, {base+1024}
        s_lshl_b32 s44, s44, 10
        buffer_load_dwordx4 v14, s[56:59], s44 offen lds
        """)
    a('s_barrier')
    srd(a, 28, 24, WS_USED)
    a(f"""
    s_mov_b32 s60, 0xffff0000
    s_mov_b32 s61, 0xffff0000
    s_mov_b32 s62, 0x80008000
    v_mov_b32 v138, s62
    v_cndmask_b32 v138, 0, v138, s[60:61]
    v_bfe_u32 v3, v0, 2, 2
    v_lshl_add_u32 v3, v7, 3, v3
    v_lshlrev_b32 v3, 6, v3
    v_bfe_u32 v4, v0, 4, 1
    v_lshl_add_u32 v3, v4, 5, v3
    v_and_b32 v5, 3, v0
    v_lshl_add_u32 v3, v5, 3, v3
    v_add_u32 v15, s46, v3
    v_lshlrev_b32 v136, 12, v4
    v_lshl_add_u32 v136, v8, 4, v136
    v_lshl_add_u32 v136, v7, 10, v136
    s_lshl_b32 s44, s42, 3
    s_add_u32 s44, s44, s65
    v_add_u32 v136, s44, v136
    v_lshlrev_b32 v158, 2, v8
    v_lshl_add_u32 v158, v7, 8, v158
    s_or_b32 s63, s43, s42
    v_cvt_f32_u32 v9, v8
    v_cvt_f32_u32 v10, v7
    v_cvt_f32_u32 v11, v6
    v_cvt_f32_u32 v12, v4
    v_mul_f32 v13, {f2u(1/16)}, v9
    v_mul_f32 v3, v9, v10
    v_mul_f32 v3, 0.5, v3
    """)
    for j_ in range(8):
        a(f"v_cos_f32 v{88+j_}, v3\nv_sin_f32 v{96+j_}, -v3\nv_add_f32 v3, v3, v13")
    for q in range(4):
        a(f"v_cvt_pk_bf16_f32 v{16+q}, v{88+2*q}, v{89+2*q}\nv_cvt_pk_bf16_f32 v{20+q}, v{96+2*q}, v{97+2*q}")
    a(f"""
    v_mul_f32 v13, {f2u(1/512)}, v9
    v_mul_f32 v5, 4.0, v13
    v_mul_f32 v3, v10, v5
    v_mul_f32 v12, {f2u(0.25)}, v12
    v_add_f32 v3, v3, v12
    """)
    for r in range(16):
        a(f"v_cos_f32 v{48+r}, v3\nv_sin_f32 v{64+r}, -v3\nv_add_f32 v3, v3, v13")
        if r % 4 == 3: a("v_add_f32 v3, v3, v5")
    a(f"""
    v_mul_f32 v13, {f2u(1/32)}, v11
    v_mul_f32 v5, 4.0, v13
    v_mul_f32 v3, v10, v5
    """)
    for r in range(16):
        a(f"v_cos_f32 v{88+r}, v3\nv_sin_f32 v{104+r}, v3\nv_add_f32 v3, v3, v13")
        if r % 4 == 3: a("v_add_f32 v3, v3, v5")
    for q in range(8):
        a(f"v_cvt_pk_bf16_f32 v{32+q}, v{88+2*q}, v{89+2*q}\nv_cvt_pk_bf16_f32 v{40+q}, v{104+2*q}, v{105+2*q}\nv_xor_b32 v{24+q}, v138, v{16+q}")
    a("s_waitcnt vmcnt(0)")
    for p in range(4):
        ad = 15
        o = p*2048
        a(f"""
        ds_read_b64_tr_b16 v[80:81], v{ad} offset:{o}
        ds_read_b64_tr_b16 v[82:83], v{ad} offset:{o+256}
        ds_read_b64_tr_b16 v[84:85], v{ad} offset:{o+1024}
        ds_read_b64_tr_b16 v[86:87], v{ad} offset:{o+1280}
        """)
        if p == 0:
            a('s_cmp_lg_u32 s63, 0\ns_cbranch_scc1 F1_G0')
            for r in range(8):
                a(f'v_cndmask_b32 v{24+r}, 0, v{16+r}, s[60:61]\nv_cndmask_b32 v{16+r}, v{16+r}, 0, s[60:61]')
            a('F1_G0:')
        a(f"""
        s_waitcnt lgkmcnt(0)
        v_mfma_f32_32x32x16_bf16 v[88:103], v[80:83], v[16:19], 0
        v_mfma_f32_32x32x16_bf16 v[104:119], v[80:83], v[20:23], 0
        v_mfma_f32_32x32x16_bf16 v[88:103], v[84:87], v[24:27], v[88:103]
        v_mfma_f32_32x32x16_bf16 v[104:119], v[84:87], v[28:31], v[104:119]
        s_nop 11
        """)
        for r in range(16):
            a(f"""
            v_mul_f32 v137, v{88+r}, v{64+r}
            v_mul_f32 v{88+r}, v{88+r}, v{48+r}
            v_fma_f32 v{88+r}, -v{104+r}, v{64+r}, v{88+r}
            v_fma_f32 v{104+r}, v{104+r}, v{48+r}, v137
            """)
        for r in range(8):
            a(f'v_cvt_pk_bf16_f32 v{120+r}, v{88+2*r}, v{89+2*r}\nv_cvt_pk_bf16_f32 v{128+r}, v{104+2*r}, v{105+2*r}')
        if p == 0:
            a('s_cmp_lg_u32 s63, 0\ns_cbranch_scc1 F1_G1')
            for r in range(8):
                a(f"""
                v_xor_b32 v137, s62, v{128+r}
                v_cndmask_b32 v{128+r}, v{128+r}, v{120+r}, s[60:61]
                v_cndmask_b32 v{120+r}, v{120+r}, v137, s[60:61]
                v_or_b32 v{16+r}, v{16+r}, v{24+r}
                v_xor_b32 v{24+r}, v138, v{16+r}
                """)
            a('F1_G1:')
        a(f"""
        s_nop 1
        v_mfma_f32_32x32x16_bf16 v[88:103], v[32:35], v[120:123], 0
        v_mfma_f32_32x32x16_bf16 v[88:103], v[36:39], v[124:127], v[88:103]
        v_mfma_f32_32x32x16_bf16 v[88:103], v[40:43], v[128:131], v[88:103]
        v_mfma_f32_32x32x16_bf16 v[88:103], v[44:47], v[132:135], v[88:103]
        s_nop 11
        """)
        if p == 0:
            a(f's_cmp_lg_u32 s63, 0\ns_cbranch_scc1 F1_G2\ns_mov_b32 s44, {AE1K_OFF}\ns_mov_b64 exec, s[60:61]')
            for r in range(8): a(f'buffer_store_dword v{88+r}, v158, s[28:31], s44 offen offset:{(r&3)*64+(r>>2)*512}{SC1}')
            a(f's_mov_b64 exec, 0x10000\nbuffer_store_dword v96, v158, s[28:31], s44 offen offset:1024{SC1}\ns_mov_b64 exec, -1\nF1_G2:')
        for r in range(9):
            if p % 2 == 0: a(f'v_mov_b32 v{RE[r]}, v{88+r}')
            else: a(f'v_cvt_pk_bf16_f32 v{PK+2*r+p//2}, v{RE[r]}, v{88+r}')
    for r in range(8): a(f'ds_write_b64 v136, {vr(PK+2*r,2)} offset:{((r&3)+8*(r>>2))*256}')
    a(f's_mov_b64 exec, 1\nds_write_b64 v136, {vr(PK+16,2)} offset:4096\ns_mov_b64 exec, -1')
    lds_sync(a, 'F1_SB', F1C-SCR, 2)
    a(f"""
    s_lshl_b32 s44, s42, 12
    s_add_u32 s44, s44, s65
    v_add_u32 v3, s44, v14
    """)
    for q in range(4): a(f'ds_read_b128 {vr(16+4*q,4)}, v3 offset:{1024*q}')
    a(f"""
    v_lshlrev_b32 v4, 4, v6
    v_lshl_add_u32 v4, v7, 16, v4
    s_lshl_b32 s44, s43, 9
    s_lshl_b32 s45, s42, 19
    s_add_u32 s44, s44, s45
    s_add_u32 s44, s44, {AEF_OFF}
    """)
    for q in range(4):
        a(f's_waitcnt lgkmcnt({3-q})\nbuffer_store_dwordx4 {vr(16+4*q,4)}, v4, s[28:31], s44 offen{SC1}\ns_add_u32 s44, s44, 0x20000')
    get_nonce(a, 'F1')
    a(f"""
    s_lshl_b32 s44, s43, 6
    s_lshl_b32 s45, s42, 5
    s_add_u32 s44, s44, s45
    s_add_u32 s44, s44, {FLG_F1}
    s_mov_b64 exec, 1
    buffer_store_dword v8, v2, s[28:31], s44 offen sc1
    s_mov_b64 exec, -1
    """)

def background(a):
    ACC, EXT = 128, 144
    a(f"""
    s_setprio 2
    {'s_add_u32 s26, s26, 12' if BGFIRST else ''}
    s_sub_u32 s33, s26, 8
    s_cmp_eq_u32 s42, 3
    s_cbranch_scc1 BG_F1
    """)
    p1_loader(a)
    a('s_mov_b32 s65, 0\ns_branch BG_J1\nBG_F1:')
    bg_init(a)
    fnet1(a)
    a(f"""
    s_lshr_b32 s44, s43, 1
    s_lshr_b32 s45, s44, 1
    s_lshl_b32 s45, s45, 5
    v_add_u32 v6, s45, v6
    s_and_b32 s45, s44, 1
    s_mul_i32 s46, s45, {f2u(0.25)}
    v_mov_b32 v8, s46
    v_cmp_gt_u32 vcc, s45, v6
    v_mov_b32 v9, 1024
    s_lshl_b32 s46, s33, 5
    v_cndmask_b32 v6, v6, v9, vcc
    v_cndmask_b32 v8, v8, 0, vcc
    v_cvt_f32_u32 v6, v6
    v_mul_f32 v6, {f2u(1/2048)}, v6
    v_add_u32 v7, s46, v7
    v_lshlrev_b32 v7, 3, v7
    v_cvt_f32_u32 v7, v7
    v_fma_f32 v8, v6, v7, v8
    v_mul_f32 v7, {f2u(16.0)}, v6
    s_lshl_b32 s64, s44, 16
    s_lshl_b32 s46, s33, 14
    s_add_u32 s64, s64, s46
    s_add_u32 s64, s64, {CSF_OFF}
    s_lshl_b32 s65, s44, 6
    s_lshl_b32 s46, s33, 4
    s_add_u32 s65, s65, s46
    s_add_u32 s65, s65, {FLG_CS}
    s_mov_b32 s66, 1
    """)
    for ks in range(16):
        b = 64 + 4*ks
        a("v_fract_f32 v9, v8\nv_add_f32 v8, v8, v7")
        for j in range(8):
            a(f"v_cos_f32 v{16+j}, v9")
            if j < 7: a("v_add_f32 v9, v9, v6")
        a("s_nop 0")
        for q in range(4): a(f"v_cvt_pk_bf16_f32 v{b+q}, v{16+2*q}, v{17+2*q}")
    a('BG_J1:')
    srd(a, 28, 24, WS_USED)
    get_nonce(a, 'BG')
    a(f"""
    ds_write_b32 v1, v8 offset:16
    s_and_b32 s40, s2, 7
    s_lshr_b32 s41, s2, 3
    s_lshl_b32 s40, s40, 2
    s_lshr_b32 s45, s41, 3
    s_add_u32 s40, s40, s45
    s_and_b32 s41, s41, 7
    s_and_b32 s34, s33, 1
    s_lshr_b32 s50, s33, 1
    v_and_b32 v9, 15, v0
    v_lshlrev_b32 v9, 6, v9
    s_lshl_b32 s45, s34, 10
    s_add_u32 s45, s45, 1024
    v_add_u32 v9, s45, v9
    s_lshl_b32 s45, s41, 1
    s_add_u32 s45, s45, s50
    s_lshl_b32 s45, s45, 6
    v_mov_b32 v10, s45
    v_cmp_eq_u32 vcc, 16, v0
    s_lshr_b32 s45, s40, 3
    s_lshl_b32 s45, s45, 12
    s_add_u32 s45, s45, {FLG_P1}
    v_cndmask_b32 v9, v9, v10, vcc
    s_lshl_b32 s34, s34, 10
    s_lshl_b32 s35, s40, 17
    s_add_u32 s35, s35, s34
    s_add_u32 s35, s35, {KV_OFF}
    v_mul_u32_u24 v11, {TS}, v0
    v_mov_b32 v40, 0x3f803f80
    v_mov_b32 v41, v40
    v_mov_b32 v42, v40
    v_mov_b32 v43, v40
    s_lshr_b32 s48, s34, 8
    v_add_u32 v20, s48, v1
    s_lshl_b32 s36, s40, 6
    s_lshl_b32 s37, s41, 3
    s_add_u32 s36, s36, s37
    s_lshl_b32 s37, s33, 1
    s_add_u32 s36, s36, s37
    s_lshl_b32 s36, s36, 10
    s_lshl_b32 s37, s33, 11
    s_add_u32 s37, s37, {QST}
    s_lshl_b32 s48, s50, {GSH}
    s_lshl_b32 s53, 1, s48
    s_or_b32 s53, s53, 0x10000
    s_waitcnt lgkmcnt(0)
    """)
    a.stamp(1)
    a('s_barrier')
    a.stamp(2)
    a(f"""
    s_cmp_lg_u32 s66, 0
    s_cbranch_scc1 BG_NOFLAG
    s_mov_b64 exec, 1
    buffer_store_dword v8, v2, s[28:31], s67 offen sc1
    s_mov_b64 exec, -1
    BG_NOFLAG:
    ds_write_b128 v11, v[40:43] offset:2048
    s_mov_b32 s68, {SPIN_MAX}
    BG1_SP:
    buffer_load_dword v10, v9, s[28:31], s45 offen sc1
    s_sub_u32 s68, s68, 1
    s_waitcnt vmcnt(0)
    v_cmp_eq_u32 vcc, s27, v10
    s_cbranch_scc1 BG1_OK
    s_and_b32 s46, vcc_lo, s53
    s_cmp_eq_u32 s46, s53
    s_cbranch_scc0 BG1_SP
    BG1_OK:
    s_mov_b32 s46, vcc_lo
    """)
    a.stamp(3)
    def grp_issue():
        a(f"""
        s_mul_i32 s52, s50, {4*TS}
        s_add_u32 m0, s52, s34
        s_lshl_b32 s51, s48, 13
        s_add_u32 s51, s51, s35
        """)
        for t in range(4):
            a(f'buffer_load_dwordx4 v14, s[28:31], s51 offen{SC1} lds')
            if t < 3: a(f's_add_u32 m0, m0, {TS}\ns_add_u32 s51, s51, 2048')
    grp_issue()
    a(f"""
    s_mov_b32 m0, s37
    s_mov_b32 s49, 0
    buffer_load_dwordx4 v14, s[28:31], s36 offen{SC1} lds
    buffer_load_dwordx4 v14, s[28:31], s36 offen offset:1024{SC1} lds
    s_waitcnt vmcnt(0) lgkmcnt(0)
    s_barrier
    """)
    def publish():
        a('v_mov_b32 v21, s49\ns_mov_b64 exec, 1\nds_or_b32 v20, v21\ns_mov_b64 exec, -1')
    a(f"""
    BGL_LOOP:
    s_add_u32 s50, s50, 2
    s_and_b32 s48, s50, {(16 >> GSH) - 1}
    s_lshl_b32 s48, s48, {GSH}
    s_lshr_b32 s47, s50, {4 - GSH}
    s_add_u32 s48, s48, s47
    s_bitcmp1_b32 s46, s48
    s_cbranch_scc1 BGL_RDY
    s_waitcnt vmcnt(0)
    """)
    publish()
    a(f"""
    s_mov_b32 s68, {SPIN_MAX}
    BGL_SP:
    buffer_load_dword v10, v9, s[28:31], s45 offen sc1
    s_sub_u32 s68, s68, 1
    s_waitcnt vmcnt(0)
    v_cmp_eq_u32 vcc, s27, v10
    s_cbranch_scc1 BGL_RDY
    s_mov_b32 s46, vcc_lo
    s_bitcmp1_b32 s46, s48
    s_cbranch_scc0 BGL_SP
    BGL_RDY:
    """)
    grp_issue()
    a('s_waitcnt vmcnt(4)')
    publish()
    a(f"""
    s_cmp_eq_u32 s65, 0
    s_cbranch_scc1 BGL_NOTAB
    s_lshr_b32 s47, s50, 1
    s_cmp_lg_u32 s47, {TPOS // 2}
    s_cbranch_scc1 BGL_NOTAB
    """)
    for ks in range(16):
        a(f"buffer_store_dwordx4 {vr(64+4*ks,4)}, v14, s[28:31], s64 offen offset:{1024*(ks%4)}{SC1}")
        if ks % 4 == 3 and ks < 15: a("s_add_u32 s64, s64, 4096")
    a('BGL_NOTAB:')
    a(f"""
    s_lshl_b32 s49, 1, s50
    s_cmp_lt_u32 s50, 14
    s_cbranch_scc1 BGL_LOOP
    s_waitcnt vmcnt(0)
    """)
    publish()
    a(f"""
    s_cmp_eq_u32 s65, 0
    s_cbranch_scc1 BGL_NOFLG
    s_mov_b64 exec, 1
    buffer_store_dword v8, v2, s[28:31], s65 offen sc1
    s_mov_b64 exec, -1
    BGL_NOFLG:
    """)
    a(f'''
    s_lshr_b32 s34, s33, 1
    s_and_b32 s35, s33, 1
    s_cmp_eq_u32 s34, 0
    s_mov_b32 s37, {BOF_OFF}
    s_cselect_b32 s36, {AEF_OFF}, s37
    s_cselect_b32 s56, s41, s40
    s_xor_b32 s37, s36, {AEF_OFF ^ BOF_OFF}
    ''')
    srd(a, 52, 20, 0x400000)
    a(f'''
    v_and_b32 v6, 31, v0
    v_lshrrev_b32 v7, 5, v0
    s_lshl_b32 s47, s40, 1
    s_add_u32 s47, s47, s34
    s_lshl_b32 s48, s47, 16
    s_lshl_b32 s44, s35, 15
    s_add_u32 s48, s48, s44
    s_add_u32 s48, s48, {CSF_OFF}
    s_lshl_b32 s47, s47, 6
    s_lshl_b32 s49, s35, 5
    s_add_u32 s47, s47, s49
    s_add_u32 s47, s47, {FLG_CS}
    v_and_b32 v15, 1, v0
    v_lshlrev_b32 v15, 4, v15
    s_lshl_b32 s44, s41, 16
    s_lshl_b32 s45, s35, 15
    s_add_u32 s44, s44, s45
    v_add_u32 v12, s44, v14
    v_mov_b32 v10, 1
    v_mov_b32 v11, 0
    s_lshl_b32 s45, s35, 12
    s_add_u32 s45, s45, {FLG_F1}
    s_add_u32 s46, s45, 32
    v_lshlrev_b32 v9, 6, v0
    ''')
    for r in range(0, 16, 2): a(f'v_mov_b64 {vr(EXT+r,2)}, 0')
    a.stamp(4)
    if os.environ.get('NOFNET'): a('s_branch K_END')
    poll(a, 'BG2', 9, 13, 's45')
    poll(a, 'BG3', 9, 13, 's46')
    poll(a, 'BG4', 15, 13, 's47')
    def fl(ks, ext):
        NS = 8 if ext else 12
        b = 16 + (12 if ext else 8)*(ks % NS)
        o = 1024*(ks % 4)
        a(f"""
        buffer_load_dwordx4 {vr(b,4)}, v14, s[28:31], s48 offen offset:{o}{SC1}
        buffer_load_dwordx4 {vr(b+4,4)}, v12, s[28:31], s36 offen offset:{o}{SC1}
        """)
        if ext: a(f'buffer_load_dwordx4 {vr(b+8,4)}, v12, s[28:31], s37 offen offset:{o}{SC1}')
        if ks % 4 == 3: a('s_add_u32 s48, s48, 4096\ns_add_u32 s36, s36, 4096' + ('\ns_add_u32 s37, s37, 4096' if ext else ''))
    def floop(ext):
        per = 3 if ext else 2
        NS = 8 if ext else 12
        for ks in range(NS): fl(ks, ext)
        for ks in range(32):
            b = 16 + (12 if ext else 8)*(ks % NS)
            rem = min(32, ks+NS) - ks - 1
            a(f's_waitcnt vmcnt({per*rem})')
            a(f'v_mfma_f32_32x32x16_bf16 {vr(ACC,16)}, {vr(b,4)}, {vr(b+4,4)}, {"0" if ks == 0 else vr(ACC,16)}')
            if ext: a(f'v_mfma_f32_32x32x16_bf16 {vr(EXT,16)}, {vr(b,4)}, {vr(b+8,4)}, {vr(EXT,16)}')
            if ks+NS < 32: fl(ks+NS, ext)
    a('s_cmp_eq_u32 s56, 0\ns_cbranch_scc1 BG_FEXT')
    floop(False)
    a('s_branch BG_FDONE\nBG_FEXT:')
    floop(True)
    a('BG_FDONE:')
    a.stamp(5)
    a(f'''
    s_lshl_b32 s44, s41, 7
    v_lshl_add_u32 v12, v6, 2, s44
    s_mov_b32 s44, {AE1K_OFF}
    v_mov_b32 v13, 1024
    s_mov_b32 s69, s44
    s_mul_i32 s44, s33, 3072
    s_add_u32 s44, s44, {FX}
    s_lshl_b32 s45, s35, 7
    s_lshl_b32 s46, s34, 8
    s_add_u32 s45, s45, s46
    s_add_u32 s45, s45, {FE}
    v_lshlrev_b32 v3, 6, v7
    v_add_u32 v3, s45, v3
    v_lshl_add_u32 v4, v6, 2, s45
    s_nop 3
    ''')
    for g in range(4):
        a(f'''
        s_sub_u32 s46, {g+3}, s33
        s_and_b32 s46, s46, 3
        s_cmp_eq_u32 s46, 3
        s_cselect_b64 exec, 0, -1
        s_lshl_b32 s46, s46, 10
        s_add_u32 s46, s46, s44
        v_add_u32 v2, s46, v14
        ds_write_b128 v2, {vr(ACC+4*g,4)}
        ''')
    a(f'''
    s_mov_b64 exec, -1
    s_cmp_eq_u32 s34, 0
    s_cbranch_scc0 BG_XQ
    s_mov_b32 exec_lo, 1
    s_mov_b32 exec_hi, 1
    ''')
    for i in range(4): a(f'ds_write_b128 v3, {vr(EXT+4*i,4)} offset:{16*i}')
    a(f'''
    s_branch BG_XD
    BG_XQ:
    s_mov_b32 exec_hi, 0
    ds_write_b32 v4, v{EXT}
    BG_XD:
    s_mov_b64 exec, 1
    s_waitcnt lgkmcnt(0)
    ds_add_u32 v1, v10 offset:12
    s_mov_b64 exec, -1
    s_cmp_lt_u32 s33, 2
    s_cbranch_scc1 BG_M01
    s_cmp_eq_u32 s33, 2
    s_cbranch_scc1 BG_M2
    ''')
    def mv(g):
        for i in range(4): a(f'v_mov_b32 v{20+i}, v{ACC+4*g+i}')
    mv(3); a('s_branch BG_MD\nBG_M2:'); mv(2); a('s_branch BG_MD\nBG_M01:\ns_cmp_eq_u32 s33, 0\ns_cbranch_scc1 BG_M0'); mv(1); a('s_branch BG_MD\nBG_M0:'); mv(0)
    a('BG_MD:')
    for j in range(1, 4):
        a(f'''
        s_add_u32 s46, s33, {j}
        s_and_b32 s46, s46, 3
        s_mul_i32 s46, s46, 3072
        s_add_u32 s46, s46, {FX + (3-j)*1024}
        v_add_u32 v{40+j}, s46, v14
        ''')
    a(f'''
    s_lshl_b32 s46, s33, 4
    s_add_u32 s46, s46, {FE}
    v_lshlrev_b32 v3, 6, v7
    v_add_u32 v3, s46, v3
    v_lshlrev_b32 v4, 2, v6
    v_add_u32 v4, {FE+256}, v4
    BG_FSPIN:
    ds_read_b32 v5, v1 offset:12
    s_waitcnt lgkmcnt(0)
    v_readfirstlane_b32 s46, v5
    s_cmp_ge_u32 s46, 4
    s_cbranch_scc0 BG_FSPIN
    buffer_load_dword v16, v12, s[28:31], s69 offen{SC1}
    buffer_load_dword v17, v13, s[28:31], s69 offen{SC1}
    ds_read_b128 v[24:27], v41
    ds_read_b128 v[28:31], v42
    ds_read_b128 v[32:35], v43
    ds_read_b128 v[44:47], v3
    ds_read_b128 v[48:51], v3 offset:128
    ds_read_b32 v52, v4
    ds_read_b32 v53, v4 offset:128
    ''')
    bg_tail_a(a)
    a(f'''
    s_and_b32 s46, s33, 1
    s_cmp_eq_u32 s46, 0
    s_cselect_b64 s[60:61], -1, 0
    s_cmp_eq_u32 s34, 0
    s_cselect_b64 s[62:63], -1, 0
    s_cmp_eq_u32 s41, 0
    s_cselect_b32 s64, 1, 0
    s_mov_b32 s65, s64
    s_or_b32 s46, s40, s33
    s_cmp_eq_u32 s46, 0
    s_cselect_b32 s66, -1, 0
    s_mov_b32 s67, 0
    s_lshl_b32 s46, s41, 5
    v_add_u32 v2, s46, v6
    v_sub_u32 v3, 512, v2
    v_mov_b32 v4, 256
    v_cndmask_b32 v3, v3, v4, s[64:65]
    v_lshlrev_b32 v2, 1, v2
    v_lshlrev_b32 v3, 1, v3
    v_add_u32 v2, 1024, v2
    v_add_u32 v3, 1024, v3
    s_lshl_b32 s46, s40, 5
    s_lshl_b32 s47, s33, 3
    s_add_u32 s46, s46, s47
    v_lshl_add_u32 v4, v7, 2, s46
    v_sub_u32 v5, {2048-3}, v4
    v_lshl_add_u32 v8, v4, 11, v2
    v_lshl_add_u32 v9, v4, 11, v3
    v_lshl_add_u32 v10, v5, 11, v2
    v_lshl_add_u32 v11, v5, 11, v3
    v_mov_b32 v4, {1024-3}
    v_cndmask_b32 v5, v5, v4, s[66:67]
    v_lshl_add_u32 v12, v5, 11, v2
    v_lshl_add_u32 v13, v5, 11, v3
    s_waitcnt vmcnt(0) lgkmcnt(0)
    ''')
    for i in range(4):
        a(f'''
        v_cndmask_b32 v36, v{32+i}, v{24+i}, s[60:61]
        v_cndmask_b32 v37, v{24+i}, v{32+i}, s[60:61]
        v_add_f32 v36, v36, v{20+i}
        v_add_f32 v37, v37, v{28+i}
        v_cndmask_b32 v{20+i}, v37, v36, s[62:63]
        v_cndmask_b32 v{24+i}, v36, v37, s[62:63]
        v_add_f32 v{44+i}, v{44+i}, v{48+i}
        ''')
        op = 'v_add_f32' if i % 2 == 0 else 'v_sub_f32'
        a(f'{op} v{20+i}, v{20+i}, v16\n{op} v{44+i}, v{44+i}, v17')
    a(f'''
    v_add_f32 v52, v52, v53
    v_add_f32 v52, v52, v16
    v_add_f32 v53, v24, v17
    v_cndmask_b32 v24, v24, 0, s[66:67]
    v_cndmask_b32 v53, v52, v53, s[64:65]
    ''')
    for i in range(4):
        t0 = 56 + 8*i
        a(f'''
        v_cndmask_b32 v{24+i}, v{24+i}, 0, s[64:65]
        v_sub_f32 v{t0}, v{20+i}, v{24+i}
        v_add_f32 v{t0+1}, v{20+i}, v{24+i}
        v_cndmask_b32 v{t0+2}, v{t0+1}, v{44+i}, s[64:65]
        v_cndmask_b32 v{t0+3}, v{t0}, v{44+i}, s[64:65]
        ''')
        if i == 0:
            a(f'''
            v_cndmask_b32 v{t0+1}, v{t0+1}, v52, s[66:67]
            v_cndmask_b32 v{t0+3}, v{t0+3}, v53, s[66:67]
            ''')
        a(f'''
        v_cvt_pk_bf16_f32 v{t0+4}, v{t0}, v{t0+1}
        v_cvt_pk_bf16_f32 v{t0+5}, v{t0+2}, v{t0+3}
        s_mov_b32 s46, {i*2048}
        s_mov_b32 s47, {(3-i)*2048}
        buffer_store_short v{t0+4}, v8, s[52:55], s46 offen{FST}
        buffer_store_short_d16_hi v{t0+4}, v{12 if i == 0 else 10}, s[52:55], s47 offen{FST}
        buffer_store_short v{t0+5}, v9, s[52:55], s46 offen{FST}
        buffer_store_short_d16_hi v{t0+5}, v{13 if i == 0 else 11}, s[52:55], s47 offen{FST}
        ''')

def wo_stage(a):
    srd(a, 48, 8, 0x80000)
    a(f"""
    v_lshrrev_b32 v90, 3, v0
    v_and_b32 v91, 7, v0
    v_and_b32 v92, 2, v90
    v_lshlrev_b32 v92, 1, v92
    v_xor_b32 v91, v91, v92
    v_lshlrev_b32 v91, 4, v91
    v_lshl_add_u32 v90, v90, 10, v91
    s_and_b32 s44, s40, 7
    s_lshl_b32 s45, s44, 7
    s_lshl_b32 s69, s33, 17
    s_add_u32 s45, s45, s69
    """)
    for i in range(16):
        a(f'buffer_load_dwordx4 {vr(96+4*i,4)}, v90, s[48:51], s45 offen\ns_add_u32 s45, s45, 8192')
    a(f"""
    s_lshl_b32 s69, s33, 14
    v_add_u32 v91, s69, v14
    s_lshr_b32 s69, s40, 3
    s_lshl_b32 s47, s41, 2
    s_add_u32 s69, s69, s47
    s_lshl_b32 s69, s69, {OFS+6}
    s_add_u32 s69, s69, {FLG_O}
    v_lshlrev_b32 v92, {OFS}, v0
    s_waitcnt vmcnt(0) lgkmcnt(0)
    s_barrier
    ds_read_b32 v93, v1 offset:{BADF-SCR}
    s_waitcnt lgkmcnt(0)
    v_readfirstlane_b32 s47, v93
    s_cmp_eq_u32 s47, 0
    s_cbranch_scc1 BG_T1
    s_barrier
    s_barrier
    BG_T1:
    """)
    for i in range(16): a(f'ds_write_b128 v91, {vr(96+4*i,4)} offset:{1024*i}')
    a('s_waitcnt lgkmcnt(0)\ns_barrier')

def o_poll(a):
    a('s_cmp_lg_u32 s33, 0\ns_cbranch_scc1 K3_OK')
    poll(a, 'K3', 92, 93, 's69')
    a('s_barrier')

def bg_tail_a(a):
    if LATEF: wo_stage(a)

def bg_tail(a):
    if not LATEF: wo_stage(a)
    o_poll(a)

def fused():
    a = Asm()
    a('s_cmp_ge_u32 s2, 256\ns_cbranch_scc1 K_END')
    a.stamp(0)
    a(f'''
    s_load_dwordx8 s[4:11], s[0:1], 0
    s_load_dwordx4 s[20:23], s[0:1], 64
    s_load_dwordx2 s[24:25], s[0:1], 80
    v_lshrrev_b32 v1, 6, v0
    v_and_b32 v0, 63, v0
    s_and_b32 s44, s2, 7
    v_readfirstlane_b32 s26, v1
    s_lshr_b32 s45, s2, 3
    s_and_b32 s46, s45, 3
    s_lshl_b32 s40, s44, 1
    s_and_b32 s40, s40, 12
    s_add_u32 s40, s40, s46
    s_lshr_b32 s47, s45, 2
    s_lshr_b32 s42, s47, 1
    s_and_b32 s41, s44, 1
    s_lshl_b32 s41, s41, 1
    s_and_b32 s48, s47, 1
    s_add_u32 s41, s41, s48
    s_lshl_b32 s43, s46, 1
    s_add_u32 s43, s43, s47
    s_and_b32 s43, s43, {ROT}
    {'s_sub_u32 s26, s26, 4' if BGFIRST else 's_cmp_ge_u32 s26, 8'}
    s_cbranch_scc1 K_BG
    s_getpc_b64 s[44:45]
    PC_HERE:
    s_sub_u32 s44, s44, PC_HERE-{NAME}
    s_subb_u32 s45, s45, 0
    v_lshlrev_b32 v6, 7, v0
    s_lshl_b32 s47, s26, 13
    v_add_u32 v6, s47, v6
    v_min_u32 v6, K_END-{NAME}, v6
    global_load_dword v143, v6, s[44:45]
    s_branch K_MAIN
    K_BG:
    ''')
    background(a)
    a.stamp(6)
    bg_tail(a)
    a.flush(0, 26, grp=1)
    a('s_endpgm')
    a('.p2align 6')
    a('K_MAIN:')
    phase1(a)
    attention(a)
    oproj(a)
    if TAILPROF: a.stamp(4)
    if PROF: a('s_waitcnt vmcnt(0)')
    a.flush(0, 26)
    a('K_END:')
    a('s_endpgm')
    return header(NAME) + a.text(), kd(NAME, 160, 100)

if __name__ == '__main__':
    import sys
    c, d = fused()
    doc = """; One persistent launch, 256 workgroups (one per CU) of 8 attention waves + 4 helper waves.
"""
    out = '; @launch grid=(256,1,1) block=(768,1,1) lds=163840\n' + doc + '.amdgcn_target "amdgcn-amd-amdhsa--gfx950"\n.text\n' + c + '.section .rodata,"a"\n' + d
    open(sys.argv[1], 'w').write(out)
```

```python
from common import *
NAME = 'concat_heads__mha_block__spectral_fnet__prompt_kernel'
FLG_P1 = 0x710000
FLG_F1 = 0x720000
FLG_CS = 0x728000
FLG_PZ = 0x738000
FLG_O  = 0x730000
TS = 2064
SCR = 64*TS
MSK, BADF, CNT_F, NONCE, DCNT, QCNT, F1C = SCR, SCR+8, SCR+12, SCR+16, SCR+20, SCR+32, SCR+48
CMB = SCR+256
QST = CMB
FX = CMB+18432
FE = FX+12288
BIAS = float(os.environ.get('BIAS', '100'))
SPIN_MAX = 1 << 16
KA, VA, IDX, VB = 1, 2, 3, 47
KA0, VA0, VB0, QC, ONE = 36, 16, 17, 18, 19
QA, QB = 4, 8
KF = 12
VF = [[20, 24], [28, 32]]
SA, SB, OA, OB, MA, MB = 48, 64, 80, 96, 112, 128
PKD = 144
SC1 = ' sc1'
FST = OST = ''
OFS = 3
ROT = int(os.environ.get('ROT', '6'))
DEFER = int(os.environ.get('DEFER', '3'))
GSH = 1 if DEFER == 1 else 2
P1PROF = int(os.environ.get('P1PROF', '0'))
TPOS = int(os.environ.get('TPOS', '12'))
LATEF = int(os.environ.get('LATEF', '0'))
TAILPROF = int(os.environ.get('TAILPROF', '0'))
BGFIRST = int(os.environ.get('BGFIRST', '0'))
LALIGN = int(os.environ.get('LALIGN', '-1'))
FLAGLATE = int(os.environ.get('FLAGLATE', '0'))
DIRECT = int(os.environ.get('DIRECT', '1'))
BGBAR = int(os.environ.get('BGBAR', '0'))
MAINPRIO = int(os.environ.get('MAINPRIO', '1'))
assert FE + 512 <= 163840

def srd(a, d, lo, size):
    a(f's_mov_b32 s{d}, s{lo}\ns_mov_b32 s{d+1}, s{lo+1}\ns_mov_b32 s{d+2}, {size}\ns_mov_b32 s{d+3}, 0x20000')

def poll(a, tag, vaddr, vt, soff, mask=None):
    if mask: a(f's_mov_b64 exec, {mask}')
    a(f'''
    s_mov_b32 s68, {SPIN_MAX}
    {tag}_SP:
    buffer_load_dword v{vt}, v{vaddr}, s[28:31], {soff} offen sc1
    s_sub_u32 s68, s68, 1
    s_waitcnt vmcnt(0)
    v_cmp_ne_u32 vcc, s27, v{vt}
    s_cbranch_scc1 {tag}_OK
    s_cbranch_vccnz {tag}_SP
    {tag}_OK:
    ''')
    if mask: a('s_mov_b64 exec, -1')


def bg_init(a):
    a(f"""
    v_lshlrev_b32 v14, 4, v0
    v_mov_b32 v1, {SCR}
    v_mov_b32 v2, 0
    v_cmp_gt_u32 vcc, 2, v0
    v_lshrrev_b32 v4, 2, v0
    v_lshl_add_u32 v5, v0, 2, v1
    v_cndmask_b32 v3, 0, 3, vcc
    v_cmp_eq_u32 vcc, 2, v4
    s_lshl_b32 s67, s41, 2
    s_add_u32 s67, s67, s42
    v_cndmask_b32 v3, v3, 2, vcc
    s_mov_b64 exec, 0xffff
    ds_write_b32 v5, v3
    s_mov_b64 exec, -1
    s_lshl_b32 s67, s67, 4
    s_add_u32 s67, s67, s40
    s_lshl_b32 s67, s67, 6
    s_add_u32 s67, s67, {FLG_P1}
    s_and_b32 s66, s40, {DEFER}
    s_cmp_eq_u32 s42, 0
    s_cselect_b32 s66, 0, s66
    s_or_b32 s66, s66, s33
    """)

def p1_loader(a):
    a(f"""
    v_lshrrev_b32 v6, 3, v0
    v_and_b32 v8, 7, v0
    v_lshrrev_b32 v9, 4, v0
    v_xor_b32 v8, v8, v9
    v_lshlrev_b32 v8, 4, v8
    v_lshl_add_u32 v16, v6, 10, v8
    v_xor_b32 v17, 64, v16
    v_add_u32 v17, 0x2000, v17
    v_add_u32 v18, 0x4000, v16
    v_add_u32 v19, 0x4000, v17
    s_lshl_b32 s44, s40, 17
    s_lshl_b32 s45, s33, 15
    s_add_u32 s44, s44, s45
    v_mul_u32_u24 v7, 3072, v9
    v_and_b32 v8, 15, v0
    v_lshlrev_b32 v9, 2, v9
    v_xor_b32 v8, v8, v9
    v_lshl_add_u32 v20, v8, 4, v7
    v_add_u32 v21, {4*3072}, v20
    v_add_u32 v22, {8*3072}, v20
    v_add_u32 v23, {12*3072}, v20
    s_lshl_b32 s47, s42, 10
    s_lshl_b32 s48, s41, 8
    s_add_u32 s47, s47, s48
    s_mul_i32 s48, s33, {16*3072}
    s_add_u32 s47, s47, s48
    s_lshl_b32 s51, s33, 12
    s_waitcnt lgkmcnt(0)
    """)
    srd(a, 56, 4, 0x200000); srd(a, 36, 6, 0x180000)
    def issue(c):
        slot = c % 4
        a(f"""
        s_add_u32 s54, s43, {c}
        s_and_b32 s54, s54, 7
        s_lshl_b32 s55, s54, 7
        s_add_u32 s55, s55, s44
        s_mul_i32 s54, s54, {64*3072}
        s_add_u32 m0, s51, {slot*32768}
        s_add_u32 s54, s54, s47
        """)
        for j in range(4):
            a(f"""
            buffer_load_dwordx4 v{16+j}, s[56:59], s55 offen lds
            s_add_u32 m0, s51, {slot*32768+16384+j*1024}
            s_nop 0
            buffer_load_dwordx4 v{20+j}, s[36:39], s54 offen lds
            """)
            if j < 3: a(f"s_add_u32 m0, s51, {slot*32768+(j+1)*1024}\ns_nop 0")
    a.stamp(7)
    issue(0); issue(1)
    bg_init(a)
    a(f"""
    s_add_u32 s48, s2, s33
    s_cmp_lg_u32 s48, 0
    s_cbranch_scc1 BG_NONONCE
    s_memrealtime s[60:61]
    s_waitcnt lgkmcnt(0)
    s_or_b32 s60, s60, 1
    v_mov_b32 v8, s60
    s_mov_b64 exec, 1
    global_store_dword v2, v8, s[22:23] sc1
    s_mov_b64 exec, -1
    BG_NONONCE:
    """)
    for c in range(8):
        a(f"s_waitcnt vmcnt({8 if c < 7 else 0}){' lgkmcnt(0)' if c == 0 else ''}\ns_barrier")
        if c + 2 < 8: issue(c+2)

def phase1(a):
    a(f"""
    s_mov_b32 s66, 0
    v_mov_b32 v142, 0
    s_cmp_eq_u32 s42, 3
    s_cbranch_scc0 K1_GEMM
    s_waitcnt lgkmcnt(0)
    """)
    srd(a, 28, 24, WS_USED)
    a("s_barrier")
    a("s_branch K1_DONE\nK1_GEMM:")
    a(f'''
    s_and_b32 s57, s26, 1
    s_lshr_b32 s58, s26, 1
    v_and_b32 v6, 31, v0
    v_lshrrev_b32 v7, 5, v0
    s_lshl_b32 s49, s57, 5
    v_add_u32 v8, s49, v6
    v_bfe_u32 v9, v8, 1, 3
    v_xor_b32 v9, v9, v7
    ''')
    for ks in range(4):
        a(f'''
        v_xor_b32 v10, {2*ks}, v9
        v_lshlrev_b32 v10, 4, v10
        v_lshl_add_u32 v{96+ks}, v8, 7, v10
        v_add_u32 v{100+ks}, 0x10000, v{96+ks}
        ''')
    a('''
    v_bfe_u32 v8, v0, 2, 2
    v_lshl_add_u32 v9, v7, 3, v8
    v_bfe_u32 v10, v0, 4, 1
    v_lshlrev_b32 v10, 1, v10
    v_bfe_u32 v11, v0, 1, 1
    v_add_u32 v10, v10, v11
    s_lshl_b32 s49, s58, 2
    v_add_u32 v10, s49, v10
    v_lshlrev_b32 v8, 2, v8
    v_xor_b32 v10, v10, v8
    v_lshlrev_b32 v10, 4, v10
    v_lshl_add_u32 v10, v9, 8, v10
    v_and_b32 v11, 1, v0
    v_lshl_add_u32 v104, v11, 3, v10
    v_add_u32 v105, 0x10000, v104
    s_waitcnt lgkmcnt(0)
    s_mov_b32 s28, s24
    s_mov_b32 s29, s25
    s_mov_b32 s30, 14680064
    s_mov_b32 s31, 0x20000
    ''')
    a(f"""
    s_lshl_b32 s60, s41, 3
    s_lshl_b32 s61, s58, 1
    s_add_u32 s60, s60, s61
    s_lshl_b32 s60, s60, 6
    s_lshl_b32 s61, s40, 2
    s_add_u32 s61, s61, s57
    s_add_u32 s60, s60, s61
    s_lshl_b32 s67, s41, 2
    s_add_u32 s67, s67, s42
    s_lshl_b32 s67, s67, 4
    s_add_u32 s67, s67, s40
    s_lshl_b32 s67, s67, 6
    s_add_u32 s67, s67, {FLG_P1}
    s_and_b32 s66, s40, {DEFER}
    s_cmp_eq_u32 s42, 0
    s_cselect_b32 s66, 0, s66
    """)
    a('''
    s_cmp_ge_u32 s42, 2
    s_cbranch_scc1 K1_LOOP_XW
    ''')
    def reads(slot, ks, fs):
        b = 16 + 12*fs
        hi = slot >= 2
        so = (slot & 1)*32768
        xa = (100 if hi else 96) + ks
        wa = 105 if hi else 104
        a(f'''
        ds_read_b128 {vr(b,4)}, v{xa} offset:{so}
        ds_read_b64_tr_b16 {vr(b+8,2)}, v{wa} offset:{so+16384+ks*4096}
        ds_read_b64_tr_b16 {vr(b+10,2)}, v{wa} offset:{so+16384+ks*4096+1024}
        ds_read_b128 {vr(b+4,4)}, v{xa} offset:{so+8192}
        ''')
    def mfmas(wx, fs, first):
        b = 16 + 12*fs
        for T in range(2):
            d = vr(64+16*T, 16); c = '0' if first else d
            x = vr(b+4*T, 4); w = vr(b+8, 4)
            a(f'v_mfma_f32_32x32x16_bf16 {d}, {w if wx else x}, {x if wx else w}, {c}')
    def loop(wx):
        def enter(c):
            a('s_barrier')
            if c == 0: a.stamp(2)
            if P1PROF and c in (1,2,3,4,6): a.stamp({1:5,2:6,3:7,4:8,6:9}[c])
        enter(0)
        reads(0, 0, 0); reads(0, 1, 1)
        for i in range(32):
            n = i + 2
            if n < 32:
                if n % 4 == 0: enter(n // 4)
                reads((n // 4) % 4, n % 4, n % 4)
            a(f's_waitcnt lgkmcnt({8 if n < 32 else (4 if n == 32 else 0)})')
            mfmas(wx, i % 4, i == 0)
        a.stamp(3)
    def pack():
        for T in range(2):
            for hh in range(2):
                b = 64 + 16*T + 8*hh
                for i in range(4): a(f'v_cvt_pk_bf16_f32 v{PKD+(2*T+hh)*4+i}, v{b+2*i}, v{b+2*i+1}')
    def offs(f):
        for T in range(2):
            for hh in range(2): a(f's_add_u32 s{62+2*T+hh}, s60, {f(T, hh)}')
    loop(True)
    a(f"""
    s_cmp_eq_u32 s42, 0
    s_cbranch_scc0 K1_EPI_K
    s_lshl_b32 s60, s60, 10
    v_lshlrev_b32 v142, 4, v0
    s_mov_b32 s61, {f2u(QSCALE)}
    """)
    offs(lambda T, hh: QF_OFF + hh*65536 + T*2048)
    a('s_nop 2')
    a('s_mov_b32 s60, s61')
    for r in range(0, 32, 2): a(f'v_pk_mul_f32 {vr(64+r,2)}, {vr(64+r,2)}, s[60:61]')
    a(f"""
    s_branch K1_PACK
    K1_EPI_K:
    s_lshl_b32 s60, s60, 11
    v_and_b32 v1, 0x33, v0
    v_bfe_u32 v2, v0, 2, 1
    v_bfe_u32 v3, v0, 3, 1
    v_lshl_add_u32 v1, v2, 3, v1
    v_lshl_add_u32 v1, v3, 2, v1
    v_lshlrev_b32 v142, 4, v1
    """)
    offs(lambda T, hh: KV_OFF + hh*131072 + T*4096)
    a('s_branch K1_PACK')
    a('K1_LOOP_XW:')
    loop(False)
    a(f"""
    s_lshl_b32 s60, s60, 11
    v_and_b32 v1, 15, v0
    v_lshlrev_b32 v1, 4, v1
    v_bfe_u32 v2, v0, 4, 1
    v_lshl_add_u32 v1, v2, 17, v1
    v_lshl_add_u32 v142, v7, 8, v1
    """)
    offs(lambda T, f: KV_OFF + 1024 + f*512 + T*4096)
    a('s_nop 1\nK1_PACK:')
    pack()
    a('s_cmp_lg_u32 s66, 0\ns_cbranch_scc1 K1_DONE')
    p1_stores(a)
    a('K1_DONE:')

def p1_stores(a):
    for k in range(4): a(f'buffer_store_dwordx4 {vr(PKD+4*k,4)}, v142, s[28:31], s{62+k} offen{SC1}')

def arrive_deferred(a, tag):
    a(f"""
    s_waitcnt vmcnt(0)
    s_mov_b64 exec, 1
    ds_add_rtn_u32 v44, v46, v{ONE} offset:{DCNT-MSK}
    v_mov_b32 v45, s27
    v_mov_b32 v43, 0
    s_waitcnt lgkmcnt(0)
    v_cmp_eq_u32 vcc, 7, v44
    s_mov_b32 s66, 0
    s_cbranch_vccz {tag}
    buffer_store_dword v45, v43, s[28:31], s67 offen sc1
    {tag}:
    s_mov_b64 exec, -1
    """)

def attention(a):
    a(f"""
    s_and_b32 s40, s2, 7
    s_lshr_b32 s41, s2, 3
    s_lshl_b32 s40, s40, 2
    s_lshr_b32 s45, s41, 3
    s_add_u32 s40, s40, s45
    s_and_b32 s41, s41, 7
    s_and_b32 s33, s26, 3
    s_lshr_b32 s34, s26, 2
    s_lshl_b32 s35, s41, 3
    s_lshl_b32 s36, s33, 1
    s_add_u32 s35, s35, s36
    v_lshlrev_b32 v36, 4, v0
    v_and_b32 v39, 15, v0
    v_lshrrev_b32 v38, 5, v0
    v_lshlrev_b32 v39, 4, v39
    v_lshl_add_u32 v39, v38, 8, v39
    v_bfe_u32 v38, v0, 4, 1
    v_lshl_add_u32 v39, v38, 18, v39
    v_and_b32 v41, 27, v0
    v_cmp_eq_u32 vcc, 16, v41
    v_add_u32 v{VA0}, 1024, v39
    v_add_u32 v{VB0}, 1536, v39
    v_mov_b32 v41, 2048
    v_mov_b32 v{IDX}, 0xdddddddd
    v_cndmask_b32 v{VA0}, v{VA0}, v41, vcc
    v_cndmask_b32 v{VB0}, v{VB0}, v41, vcc
    s_mov_b32 s42, 0
    s_mov_b32 s32, 0xffff0003
    s_lshl_b32 s36, s33, 11
    s_add_u32 s36, s36, {QST}
    v_add_u32 v41, s36, v36
    v_mov_b32 v46, {MSK}
    s_lshl_b32 s36, s33, 2
    s_add_u32 s36, s36, {QCNT}
    v_mov_b32 v{QC}, s36
    v_mov_b32 v{ONE}, 1
    """)
    def zero_acc():
        for r in range(0, 32, 2): a(f'v_mov_b64 {vr(OA+r,2)}, 0')
        for r in range(0, 4, 2): a(f'v_mov_b64 {vr(VF[1][1]+r,2)}, 0')
    zero_acc()
    a('s_waitcnt vmcnt(0)')
    a.stamp(4)
    a('s_barrier')
    a('s_barrier')
    if not P1PROF: a.stamp(5)
    a(f"""
    ds_read_b128 {vr(QA,4)}, v41
    ds_read_b128 {vr(QB,4)}, v41 offset:1024
    ds_read_b128 {vr(KF,4)}, v36
    ds_read_b32 v44, v46 offset:16
    s_cmp_eq_u32 s66, 0
    s_cbranch_scc1 K2_NODEF
    """)
    p1_stores(a)
    a(f"""
    K2_NODEF:
    s_waitcnt lgkmcnt(0)
    v_mfma_f32_32x32x16_bf16 {vr(SA,16)}, {vr(KF,4)}, {vr(QA,4)}, 0
    v_mfma_f32_32x32x16_bf16 {vr(SB,16)}, {vr(KF,4)}, {vr(QB,4)}, 0
    v_readfirstlane_b32 s27, v44
    s_cmp_lg_u32 s34, 0
    s_cbranch_scc1 K2_FILL
    s_setprio {MAINPRIO}
    s_nop 6
    s_branch K2_GO
    K2_FILL:
    s_nop 7
    s_cmp_eq_u32 s66, 0
    s_cbranch_scc1 K2_GO
    """)
    arrive_deferred(a, 'K2_AD0')
    a('K2_GO:')
    def rowmax(S, dst, acc=False):
        if not acc:
            a(f'v_max3_f32 v{dst}, v{S}, v{S+1}, v{S+2}')
            for i in range(3, 15, 2): a(f'v_max3_f32 v{dst}, v{dst}, v{S+i}, v{S+i+1}')
            a(f'v_max_f32 v{dst}, v{dst}, v{S+15}')
        else:
            for i in range(0, 16, 2): a(f'v_max3_f32 v{dst}, v{dst}, v{S+i}, v{S+i+1}')
    def xhalf(r, t):
        a(f'''
        v_mov_b32 v{t}, v{r}
        s_nop 1
        v_permlane32_swap_b32 v{r}, v{t}
        s_nop 1
        v_max_f32 v{r}, v{r}, v{t}
        ''')
    rowmax(SA, 41); rowmax(SB, 42); xhalf(41, 43); xhalf(42, 44)
    a(f'''
    v_mov_b32 v43, {f2u(-BIAS)}
    v_sub_f32 v41, v43, v41
    v_sub_f32 v42, v43, v42
    K2_RESTART:
    s_mul_i32 s44, s34, {4*TS}
    v_add_u32 v{KA}, s44, v{KA0}
    v_add_u32 v{VA}, s44, v{VA0}
    v_add_u32 v{VB}, s44, v{VB0}
    ds_read_b128 {vr(KF,4)}, v{KA}
    ds_read_b128 {vr(VF[0][0],4)}, v{VA}
    ds_read_b128 {vr(VF[0][1],4)}, v{VB}
    ''')
    a('v_mov_b32 v40, v41\nv_mov_b32 v43, v42')
    for r in range(0, 16, 2): a(f'v_mov_b64 {vr(MA+r,2)}, v[40:41]')
    for r in range(0, 16, 2): a(f'v_mov_b64 {vr(MB+r,2)}, v[42:43]')
    for r in range(8, 16, 2): a(f'v_mov_b64 {vr(SB+r,2)}, 0')
    a(f'''
    s_waitcnt lgkmcnt(0)
    v_mfma_f32_32x32x16_bf16 {vr(SA,16)}, {vr(KF,4)}, {vr(QA,4)}, {vr(MA,16)}
    s_nop 10
    ''')
    if not P1PROF: a.stamp(6)
    a(f'''
    s_branch K2_LOOP
    K2_SPIN:
    {'s_memrealtime s[96:97]' if PROF else ''}
    K2_SPIN2:
    ds_read_b64 v[44:45], v46
    s_waitcnt lgkmcnt(0)
    v_and_b32 v44, v44, v45
    s_nop 0
    v_readfirstlane_b32 s32, v44
    s_or_b32 s32, s32, 0xffff0000
    s_bitcmp1_b32 s32, s43
    s_cbranch_scc0 K2_SPIN2
    {'s_memrealtime s[98:99]' if PROF else ''}
    {'s_waitcnt lgkmcnt(0)' if PROF else ''}
    {'s_sub_u32 s98, s98, s96' if PROF else ''}
    {'s_add_u32 s76, s76, s98' if PROF else ''}
    s_branch K2_READY
    K2_BACK:
    s_cmp_eq_u32 s66, 0
    s_cbranch_scc1 K2_LOOP
    ''')
    arrive_deferred(a, 'K2_AD1')
    if LALIGN >= 0:
        a('s_branch K2_LOOP')
        a('.p2align 6')
        for _ in range(LALIGN): a('s_nop 0')
    a(f'''
    K2_LOOP:
    ''')
    def ex(S, lo, hi):
        for i in range(lo, hi): a(f'v_exp_f32 v{S+i}, v{S+i}')
    def tile(j):
        vs, vp = VF[j & 1], VF[(j+1) & 1]
        ex(SA, 0, 2)
        a(f'v_smfmac_f32_32x32x32_bf16 {vr(OB,16)}, {vr(vp[1],4)}, {vr(SB+8,8)}, v{IDX}')
        ex(SA, 2, 5)
        a(f'v_mfma_f32_32x32x16_bf16 {vr(SB,16)}, {vr(KF,4)}, {vr(QB,4)}, {vr(MB,16)}')
        o = (j+1)*TS
        if j == 3:
            o = 0
            a(f"""
            s_min_u32 s44, s43, 15
            s_mulk_i32 s44, {4*TS}
            s_bitcmp1_b32 s32, s43
            s_cbranch_scc0 K2_SPIN
            K2_READY:
            v_add_u32 v{KA}, s44, v{KA0}
            v_add_u32 v{VA}, s44, v{VA0}
            v_add_u32 v{VB}, s44, v{VB0}
            """)
        a(f"""
        ds_read_b128 {vr(KF,4)}, v{KA} offset:{o}
        ds_read_b128 {vr(vp[0],4)}, v{VA} offset:{o}
        ds_read_b128 {vr(vp[1],4)}, v{VB} offset:{o}
        """)
        if j == 2: a(f's_mov_b64 exec, 1\nds_add_rtn_u32 v43, v{QC}, v{ONE}\ns_mov_b64 exec, -1')
        ex(SA, 5, 10)
        a(f'v_smfmac_f32_32x32x32_bf16 {vr(OA,16)}, {vr(vs[0],4)}, {vr(SA,8)}, v{IDX}')
        ex(SA, 10, 16)
        ex(SB, 0, 2)
        a(f'v_smfmac_f32_32x32x32_bf16 {vr(OA,16)}, {vr(vs[1],4)}, {vr(SA+8,8)}, v{IDX}')
        ex(SB, 2, 5)
        a('s_waitcnt lgkmcnt(0)')
        a(f'v_mfma_f32_32x32x16_bf16 {vr(SA,16)}, {vr(KF,4)}, {vr(QA,4)}, {vr(MA,16)}')
        ex(SB, 5, 10)
        a(f'v_smfmac_f32_32x32x32_bf16 {vr(OB,16)}, {vr(vs[0],4)}, {vr(SB,8)}, v{IDX}')
        if j == 2: a('v_readfirstlane_b32 s43, v43')
        if j == 3: a('s_cmp_lt_u32 s43, 16')
        ex(SB, 10, 16)
    for j in range(4): tile(j)
    a(f'''
    s_cbranch_scc1 K2_BACK
    s_nop 1
    v_smfmac_f32_32x32x32_bf16 {vr(OB,16)}, {vr(VF[1][1],4)}, {vr(SB+8,8)}, v{IDX}
    ''')
    if not P1PROF: a.stamp(7)
    a(f'''
    s_setprio 0
    s_cmp_eq_u32 s66, 0
    s_cbranch_scc1 K2_NOAD
    ''')
    arrive_deferred(a, 'K2_AD2')
    a(f'''
    K2_NOAD:
    s_nop 1
    s_mul_i32 s44, s26, 2304
    s_add_u32 s44, s44, {CMB}
    v_add_u32 v45, s44, v36
    v_lshlrev_b32 v46, 2, v0
    v_add_u32 v46, s44, v46
    s_mov_b32 s44, {f2u(2.0**100)}
    s_mov_b32 s45, 0x7f800000
    s_mov_b32 s46, {f2u(2.0**-(BIAS+1))}
    s_mov_b32 s47, {f2u(2.0**-105)}
    s_cmp_lg_u32 s42, 0
    s_cbranch_scc1 K2_GOOD
    ''')
    for k, O in enumerate((OA, OB)):
        t = 43+k
        a(f'v_add_f32 v{t}, abs(v{O}), abs(v{O+1})')
        for i in range(2, 8): a(f'v_add_f32 v{t}, v{t}, abs(v{O+i})')
        a(f'''
        v_cmp_ngt_f32 s[48:49], s44, v{O+8}
        v_cmp_ngt_f32 s[50:51], s45, v{t}
        v_cmp_le_f32 s[52:53], s46, v{O+8}
        v_cmp_gt_f32 vcc, s47, v{t}
        s_or_b64 s[48:49], s[48:49], s[50:51]
        s_and_b64 vcc, vcc, s[52:53]
        s_or_b64 s[{54+2*k}:{55+2*k}], s[48:49], vcc
        ''')
    a(f'''
    s_or_b64 s[54:55], s[54:55], s[56:57]
    s_cbranch_scc0 K2_GOOD
    v_mov_b32 v43, {BADF}
    v_mov_b32 v44, 1
    ds_write_b32 v43, v44
    K2_GOOD:
    s_cmp_eq_u32 s34, 0
    s_cbranch_scc1 K2_SENDB
    ds_write_b128 v45, {vr(OA,4)}
    ds_write_b128 v45, {vr(OA+4,4)} offset:1024
    ds_write_b32 v46, v{OA+8} offset:2048
    s_waitcnt lgkmcnt(0)
    ''')
    for r in range(9): a(f'v_mov_b32 v{OA+r}, v{OB+r}')
    a(f'''
    v_subrev_u32 v45, {4*2304}, v45
    v_subrev_u32 v46, {4*2304}, v46
    s_branch K2_SENT
    K2_SENDB:
    ds_write_b128 v45, {vr(OB,4)}
    ds_write_b128 v45, {vr(OB+4,4)} offset:1024
    ds_write_b32 v46, v{OB+8} offset:2048
    v_add_u32 v45, {4*2304}, v45
    v_add_u32 v46, {4*2304}, v46
    K2_SENT:
    v_mov_b32 v43, {BADF}
    s_waitcnt lgkmcnt(0)
    s_barrier
    ds_read_b32 v44, v43
    ds_read_b128 {vr(SA,4)}, v45
    ds_read_b128 {vr(SA+4,4)}, v45 offset:1024
    ds_read_b32 v{SA+8}, v46 offset:2048
    s_add_u32 s36, s35, s34
    s_lshl_b32 s36, s36, 5
    s_add_u32 s36, s36, s40
    s_lshl_b32 s36, s36, 10
    s_add_u32 s36, s36, {OF_OFF}
    s_waitcnt lgkmcnt(3)
    v_readfirstlane_b32 s44, v44
    s_cmp_lt_u32 s42, s44
    s_cbranch_scc0 K2_COMBINE
    ''')
    a(f'''
    s_mov_b32 s42, 1
    v_mov_b32 v41, 0xff800000
    v_mov_b32 v42, 0xff800000
    s_mul_i32 s44, s34, {32*TS}
    v_add_u32 v45, s44, v{KA0}
    v_mov_b32 v43, 2
    ds_write_b32 v{QC}, v43
    s_mov_b32 s43, 32
    K2_MAXLOOP:
    ds_read_b128 {vr(KF,4)}, v45
    v_add_u32 v45, {TS}, v45
    s_waitcnt lgkmcnt(0)
    v_mfma_f32_32x32x16_bf16 {vr(SA,16)}, {vr(KF,4)}, {vr(QA,4)}, 0
    v_mfma_f32_32x32x16_bf16 {vr(SB,16)}, {vr(KF,4)}, {vr(QB,4)}, 0
    s_nop 11
    ''')
    rowmax(SA, 41, True); rowmax(SB, 42, True)
    a(f'''
    s_sub_u32 s43, s43, 1
    s_cmp_lg_u32 s43, 0
    s_cbranch_scc1 K2_MAXLOOP
    ''')
    xhalf(41, 43); xhalf(42, 44)
    a(f'''
    s_lshl_b32 s44, s26, 9
    v_lshlrev_b32 v43, 2, v0
    v_add_u32 v43, s44, v43
    v_xor_b32 v45, 0x800, v43
    v_add_u32 v43, {FX}, v43
    v_add_u32 v45, {FX}, v45
    ds_write_b32 v43, v41
    ds_write_b32 v43, v42 offset:256
    s_waitcnt lgkmcnt(0)
    s_barrier
    ds_read_b32 v44, v45
    ds_read_b32 v45, v45 offset:256
    s_waitcnt lgkmcnt(0)
    v_max_f32 v41, v41, v44
    v_max_f32 v42, v42, v45
    v_sub_f32 v41, 0, v41
    v_sub_f32 v42, 0, v42
    v_mov_b32 v46, {MSK}
    ''')
    zero_acc()
    a(f'''
    s_branch K2_RESTART
    K2_COMBINE:
    ''')
    if not P1PROF: a.stamp(8)
    a(f'''
    s_and_b32 s44, s40, 7
    s_waitcnt lgkmcnt(0)
    v_add_f32 v{OA+8}, v{OA+8}, v{SA+8}
    v_rcp_f32 v{OA+8}, v{OA+8}
    ''')
    for r in range(8): a(f'v_add_f32 v{OA+r}, v{OA+r}, v{SA+r}')
    for r in range(8): a(f'v_mul_f32 v{OA+r}, v{OA+r}, v{OA+8}')
    for i in range(4): a(f'v_cvt_pk_bf16_f32 v{60+i}, v{OA+2*i}, v{OA+2*i+1}')
    a(f'buffer_store_dwordx4 v[60:63], v36, s[28:31], s36 offen{SC1}')
    a(f'''
    s_lshl_b32 s47, s41, 2
    s_add_u32 s47, s47, s33
    s_lshl_b32 s47, s47, 5
    s_add_u32 s47, s47, s40
    s_lshl_b32 s47, s47, 1
    s_add_u32 s47, s47, s34
    s_lshl_b32 s47, s47, {OFS}
    s_add_u32 s47, s47, {FLG_O}
    v_mov_b32 v5, s27
    v_mov_b32 v6, 0
    ''')
    if not FLAGLATE and not DIRECT: o_flag(a)

def o_flag(a):
    a('s_waitcnt vmcnt(0)\ns_mov_b64 exec, 1\nbuffer_store_dword v5, v6, s[28:31], s47 offen sc1\ns_mov_b64 exec, -1')

def oproj(a):
    srd(a, 52, 20, 0x400000)
    a(f'''
    v_lshlrev_b32 v2, 4, v0
    s_and_b32 s56, s26, 1
    s_lshr_b32 s57, s26, 1
    s_lshr_b32 s58, s40, 3
    s_lshl_b32 s59, s41, 2
    s_add_u32 s59, s59, s58
    v_lshrrev_b32 v7, 5, v0
    v_bfe_u32 v8, v0, 2, 2
    v_lshl_add_u32 v9, v7, 2, v8
    v_bfe_u32 v10, v0, 4, 1
    v_lshlrev_b32 v10, 1, v10
    v_bfe_u32 v11, v0, 1, 1
    v_add_u32 v10, v10, v11
    v_and_b32 v8, 2, v8
    v_lshlrev_b32 v8, 1, v8
    v_xor_b32 v10, v10, v8
    v_lshlrev_b32 v10, 4, v10
    v_lshl_add_u32 v10, v9, 7, v10
    v_and_b32 v11, 1, v0
    v_lshl_add_u32 v10, v11, 3, v10
    s_lshl_b32 s60, s57, 14
    v_add_u32 v10, s60, v10
    v_xor_b32 v11, 64, v10
    s_lshl_b32 s61, s59, 16
    s_lshl_b32 s62, s56, 15
    s_add_u32 s61, s61, s62
    s_lshl_b32 s62, s57, 13
    s_add_u32 s61, s61, s62
    s_add_u32 s61, s61, {OF_OFF}
    s_add_u32 s62, s61, 4096
    s_barrier
    ''')
    if TAILPROF: a.stamp(5)
    for hd in range(8):
        for c in range(2):
            b = 64 + (hd*2+c)*4
            ad = 10 + c
            a(f'ds_read_b64_tr_b16 {vr(b,2)}, v{ad} offset:{hd*2048}')
            a(f'ds_read_b64_tr_b16 {vr(b+2,2)}, v{ad} offset:{hd*2048+1024}')
        if hd % 2 == 1 and hd < 7: a('s_waitcnt lgkmcnt(4)')
    if FLAGLATE: o_flag(a)
    if not DIRECT: a('s_barrier')
    if not P1PROF: a.stamp(9)
    def oloads():
        for hd in range(8):
            a(f'buffer_load_dwordx4 {vr(16+4*hd,4)}, v2, s[28:31], s{61 + hd//4} offen offset:{(hd%4)*1024}{SC1}')
    oloads()
    if DIRECT:
        for r in range(0, 32, 2): a(f'v_mov_b64 {vr(128+r,2)}, 0')
        a(f's_mov_b32 s64, 0xff\ns_mov_b32 s65, -1\ns_mov_b32 s68, {SPIN_MAX}')
    a(f'''
    s_lshl_b32 s60, s56, 15
    s_add_u32 s60, s60, 65536
    s_lshl_b32 s63, s57, 11
    s_add_u32 s63, s63, s60
    v_add_u32 v13, s63, v2
    s_lshl_b32 s63, s57, 13
    s_add_u32 s63, s63, s60
    v_add_u32 v14, s63, v2
    v_and_b32 v15, 31, v0
    s_lshl_b32 s60, s59, 6
    s_lshl_b32 s63, s56, 5
    s_add_u32 s60, s60, s63
    v_add_u32 v15, s60, v15
    v_lshlrev_b32 v15, 11, v15
    v_lshl_add_u32 v15, v7, 4, v15
    s_lshl_b32 s60, s44, 7
    s_lshl_b32 s63, s57, 5
    s_add_u32 s60, s60, s63
    s_waitcnt lgkmcnt(0)
    ''')
    if not DIRECT:
        for hd in range(8):
            a(f's_waitcnt vmcnt({7-hd})')
            for c in range(2):
                d = vr(128+16*c, 16)
                a(f'v_mfma_f32_32x32x16_bf16 {d}, {vr(64+(hd*2+c)*4,4)}, {vr(16+4*hd,4)}, {"0" if hd == 0 else d}')
    else:
        def take(hd, tag):
            b = 16+4*hd
            a(f"""
            v_max3_u32 v12, v{b}, v{b+1}, v{b+2}
            v_max_u32 v12, v12, v{b+3}
            v_cmp_eq_u32 vcc, s65, v12
            s_cbranch_vccnz {tag}
            s_bitset0_b32 s64, {hd}
            """)
            for c in range(2):
                d = vr(128+16*c, 16)
                a(f'v_mfma_f32_32x32x16_bf16 {d}, {vr(64+(hd*2+c)*4,4)}, {vr(b,4)}, {d}')
            a(f'{tag}:')
        for hd in range(8):
            a(f's_waitcnt vmcnt({7-hd})')
            take(hd, f'K3_A{hd}')
        a(f"""
        K3_RETRY:
        s_cmp_eq_u32 s64, 0
        s_cbranch_scc1 K3_DONE
        s_sub_u32 s68, s68, 1
        s_cselect_b32 s66, 0x12345, -1
        """)
        for hd in range(8):
            a(f's_bitcmp1_b32 s64, {hd}\ns_cbranch_scc0 K3_L{hd}')
            a(f'buffer_load_dwordx4 {vr(16+4*hd,4)}, v2, s[28:31], s{61 + hd//4} offen offset:{(hd%4)*1024}{SC1}\nK3_L{hd}:')
        a('s_mov_b32 s65, s66\ns_waitcnt vmcnt(0)')
        for hd in range(8):
            a(f's_bitcmp1_b32 s64, {hd}\ns_cbranch_scc0 K3_B{hd}')
            take(hd, f'K3_B{hd}')
        a('s_cmp_lg_u32 s65, -1\ns_cbranch_scc0 K3_RETRY\nK3_DONE:')
    if TAILPROF: a.stamp(2)
    a('s_nop 11')
    for g in range(4):
        a(f'ds_write_b128 v13, {vr(128+8*g,4)} offset:{g*8192}')
        a(f'ds_write_b128 v13, {vr(132+8*g,4)} offset:{g*8192+1024}')
    a('s_waitcnt lgkmcnt(0)\ns_barrier')
    if TAILPROF: a.stamp(3)
    for s in range(4):
        a(f'ds_read_b128 {vr(16+8*s,4)}, v14 offset:{s*2048}')
        a(f'ds_read_b128 {vr(20+8*s,4)}, v14 offset:{s*2048+1024}')
    a('s_waitcnt lgkmcnt(4)')
    for r in range(8): a(f'v_add_f32 v{16+r}, v{16+r}, v{24+r}')
    a('s_waitcnt lgkmcnt(0)')
    for r in range(8): a(f'v_add_f32 v{32+r}, v{32+r}, v{40+r}')
    for r in range(8): a(f'v_add_f32 v{16+r}, v{16+r}, v{32+r}')
    for i in range(4): a(f'v_cvt_pk_bf16_f32 v{48+i}, v{16+2*i}, v{17+2*i}')
    a(f'''
    s_nop 1
    v_permlane32_swap_b32 v48, v50
    v_permlane32_swap_b32 v49, v51
    s_nop 1
    buffer_store_dwordx4 v[48:51], v15, s[52:55], s60 offen{OST}
    ''')

def lds_sync(a, tag, off, n):
    a(f"""
    v_mov_b32 v137, 1
    s_mov_b64 exec, 1
    s_waitcnt lgkmcnt(0)
    ds_add_u32 v159, v137 offset:{off}
    s_mov_b64 exec, -1
    {tag}:
    ds_read_b32 v137, v159 offset:{off}
    s_waitcnt lgkmcnt(0)
    v_readfirstlane_b32 s44, v137
    s_cmp_ge_u32 s44, {n}
    s_cbranch_scc0 {tag}
    """)

def get_nonce(a, tag):
    a(f"""
    s_mov_b32 s68, {SPIN_MAX}
    {tag}_NSP:
    global_load_dword v8, v2, s[22:23] sc1
    s_sub_u32 s68, s68, 1
    s_waitcnt vmcnt(0)
    v_readfirstlane_b32 s27, v8
    s_cbranch_scc1 {tag}_NOK
    s_cmp_eq_u32 s27, 0
    s_cbranch_scc1 {tag}_NSP
    {tag}_NOK:
    """)

def fnet1(a):
    RE = [3, 4, 5, 8, 9, 10, 11, 12, 13]
    PK = 140
    a(f"""
    s_and_b32 s42, s33, 1
    s_lshr_b32 s64, s33, 1
    s_and_b32 s43, s2, 7
    s_lshl_b32 s43, s43, 3
    s_lshr_b32 s44, s2, 3
    s_add_u32 s43, s43, s44
    s_sub_u32 s43, s43, 24
    s_lshl_b32 s43, s43, 1
    s_add_u32 s43, s43, s64
    v_and_b32 v6, 31, v0
    v_lshrrev_b32 v7, 5, v0
    v_and_b32 v8, 15, v0
    s_lshl_b32 s45, s43, 3
    s_lshl_b32 s46, s42, 2
    s_add_u32 s45, s45, s46
    s_lshl_b32 s46, s33, 13
    s_lshl_b32 s65, s64, 13
    s_add_u32 s65, s65, 32768
    s_lshl_b32 s64, s64, 2
    v_add_u32 v159, s64, v1
    s_waitcnt lgkmcnt(0)
    """)
    srd(a, 56, 10, 0x200000)
    for p in range(4):
        base = p*2048
        a(f"""
        s_add_u32 m0, s46, {base}
        s_add_u32 s47, s45, {p}
        s_lshl_b32 s44, s47, 10
        buffer_load_dwordx4 v14, s[56:59], s44 offen lds
        s_sub_u32 s44, 2048, s47
        s_cmp_eq_u32 s47, 0
        s_cselect_b32 s44, 1024, s44
        s_add_u32 m0, s46, {base+1024}
        s_lshl_b32 s44, s44, 10
        buffer_load_dwordx4 v14, s[56:59], s44 offen lds
        """)
    a('s_barrier')
    srd(a, 28, 24, WS_USED)
    a(f"""
    s_mov_b32 s60, 0xffff0000
    s_mov_b32 s61, 0xffff0000
    s_mov_b32 s62, 0x80008000
    v_mov_b32 v138, s62
    v_cndmask_b32 v138, 0, v138, s[60:61]
    v_bfe_u32 v3, v0, 2, 2
    v_lshl_add_u32 v3, v7, 3, v3
    v_lshlrev_b32 v3, 6, v3
    v_bfe_u32 v4, v0, 4, 1
    v_lshl_add_u32 v3, v4, 5, v3
    v_and_b32 v5, 3, v0
    v_lshl_add_u32 v3, v5, 3, v3
    v_add_u32 v15, s46, v3
    v_lshlrev_b32 v136, 12, v4
    v_lshl_add_u32 v136, v8, 4, v136
    v_lshl_add_u32 v136, v7, 10, v136
    s_lshl_b32 s44, s42, 3
    s_add_u32 s44, s44, s65
    v_add_u32 v136, s44, v136
    v_lshlrev_b32 v158, 2, v8
    v_lshl_add_u32 v158, v7, 8, v158
    s_or_b32 s63, s43, s42
    v_cvt_f32_u32 v9, v8
    v_cvt_f32_u32 v10, v7
    v_cvt_f32_u32 v11, v6
    v_cvt_f32_u32 v12, v4
    v_mul_f32 v13, {f2u(1/16)}, v9
    v_mul_f32 v3, v9, v10
    v_mul_f32 v3, 0.5, v3
    """)
    for j_ in range(8):
        a(f"v_cos_f32 v{88+j_}, v3\nv_sin_f32 v{96+j_}, -v3\nv_add_f32 v3, v3, v13")
    for q in range(4):
        a(f"v_cvt_pk_bf16_f32 v{16+q}, v{88+2*q}, v{89+2*q}\nv_cvt_pk_bf16_f32 v{20+q}, v{96+2*q}, v{97+2*q}")
    a(f"""
    v_mul_f32 v13, {f2u(1/512)}, v9
    v_mul_f32 v5, 4.0, v13
    v_mul_f32 v3, v10, v5
    v_mul_f32 v12, {f2u(0.25)}, v12
    v_add_f32 v3, v3, v12
    """)
    for r in range(16):
        a(f"v_cos_f32 v{48+r}, v3\nv_sin_f32 v{64+r}, -v3\nv_add_f32 v3, v3, v13")
        if r % 4 == 3: a("v_add_f32 v3, v3, v5")
    a(f"""
    v_mul_f32 v13, {f2u(1/32)}, v11
    v_mul_f32 v5, 4.0, v13
    v_mul_f32 v3, v10, v5
    """)
    for r in range(16):
        a(f"v_cos_f32 v{88+r}, v3\nv_sin_f32 v{104+r}, v3\nv_add_f32 v3, v3, v13")
        if r % 4 == 3: a("v_add_f32 v3, v3, v5")
    for q in range(8):
        a(f"v_cvt_pk_bf16_f32 v{32+q}, v{88+2*q}, v{89+2*q}\nv_cvt_pk_bf16_f32 v{40+q}, v{104+2*q}, v{105+2*q}\nv_xor_b32 v{24+q}, v138, v{16+q}")
    a("s_waitcnt vmcnt(0)")
    for p in range(4):
        ad = 15
        o = p*2048
        a(f"""
        ds_read_b64_tr_b16 v[80:81], v{ad} offset:{o}
        ds_read_b64_tr_b16 v[82:83], v{ad} offset:{o+256}
        ds_read_b64_tr_b16 v[84:85], v{ad} offset:{o+1024}
        ds_read_b64_tr_b16 v[86:87], v{ad} offset:{o+1280}
        """)
        if p == 0:
            a('s_cmp_lg_u32 s63, 0\ns_cbranch_scc1 F1_G0')
            for r in range(8):
                a(f'v_cndmask_b32 v{24+r}, 0, v{16+r}, s[60:61]\nv_cndmask_b32 v{16+r}, v{16+r}, 0, s[60:61]')
            a('F1_G0:')
        a(f"""
        s_waitcnt lgkmcnt(0)
        v_mfma_f32_32x32x16_bf16 v[88:103], v[80:83], v[16:19], 0
        v_mfma_f32_32x32x16_bf16 v[104:119], v[80:83], v[20:23], 0
        v_mfma_f32_32x32x16_bf16 v[88:103], v[84:87], v[24:27], v[88:103]
        v_mfma_f32_32x32x16_bf16 v[104:119], v[84:87], v[28:31], v[104:119]
        s_nop 11
        """)
        for r in range(16):
            a(f"""
            v_mul_f32 v137, v{88+r}, v{64+r}
            v_mul_f32 v{88+r}, v{88+r}, v{48+r}
            v_fma_f32 v{88+r}, -v{104+r}, v{64+r}, v{88+r}
            v_fma_f32 v{104+r}, v{104+r}, v{48+r}, v137
            """)
        for r in range(8):
            a(f'v_cvt_pk_bf16_f32 v{120+r}, v{88+2*r}, v{89+2*r}\nv_cvt_pk_bf16_f32 v{128+r}, v{104+2*r}, v{105+2*r}')
        if p == 0:
            a('s_cmp_lg_u32 s63, 0\ns_cbranch_scc1 F1_G1')
            for r in range(8):
                a(f"""
                v_xor_b32 v137, s62, v{128+r}
                v_cndmask_b32 v{128+r}, v{128+r}, v{120+r}, s[60:61]
                v_cndmask_b32 v{120+r}, v{120+r}, v137, s[60:61]
                v_or_b32 v{16+r}, v{16+r}, v{24+r}
                v_xor_b32 v{24+r}, v138, v{16+r}
                """)
            a('F1_G1:')
        a(f"""
        s_nop 1
        v_mfma_f32_32x32x16_bf16 v[88:103], v[32:35], v[120:123], 0
        v_mfma_f32_32x32x16_bf16 v[88:103], v[36:39], v[124:127], v[88:103]
        v_mfma_f32_32x32x16_bf16 v[88:103], v[40:43], v[128:131], v[88:103]
        v_mfma_f32_32x32x16_bf16 v[88:103], v[44:47], v[132:135], v[88:103]
        s_nop 11
        """)
        if p == 0:
            a(f's_cmp_lg_u32 s63, 0\ns_cbranch_scc1 F1_G2\ns_mov_b32 s44, {AE1K_OFF}\ns_mov_b64 exec, s[60:61]')
            for r in range(8): a(f'buffer_store_dword v{88+r}, v158, s[28:31], s44 offen offset:{(r&3)*64+(r>>2)*512}{SC1}')
            a(f's_mov_b64 exec, 0x10000\nbuffer_store_dword v96, v158, s[28:31], s44 offen offset:1024{SC1}\ns_mov_b64 exec, -1\nF1_G2:')
        for r in range(9):
            if p % 2 == 0: a(f'v_mov_b32 v{RE[r]}, v{88+r}')
            else: a(f'v_cvt_pk_bf16_f32 v{PK+2*r+p//2}, v{RE[r]}, v{88+r}')
    for r in range(8): a(f'ds_write_b64 v136, {vr(PK+2*r,2)} offset:{((r&3)+8*(r>>2))*256}')
    a(f's_mov_b64 exec, 1\nds_write_b64 v136, {vr(PK+16,2)} offset:4096\ns_mov_b64 exec, -1')
    lds_sync(a, 'F1_SB', F1C-SCR, 2)
    a(f"""
    s_lshl_b32 s44, s42, 12
    s_add_u32 s44, s44, s65
    v_add_u32 v3, s44, v14
    """)
    for q in range(4): a(f'ds_read_b128 {vr(16+4*q,4)}, v3 offset:{1024*q}')
    a(f"""
    v_lshlrev_b32 v4, 4, v6
    v_lshl_add_u32 v4, v7, 16, v4
    s_lshl_b32 s44, s43, 9
    s_lshl_b32 s45, s42, 19
    s_add_u32 s44, s44, s45
    s_add_u32 s44, s44, {AEF_OFF}
    """)
    for q in range(4):
        a(f's_waitcnt lgkmcnt({3-q})\nbuffer_store_dwordx4 {vr(16+4*q,4)}, v4, s[28:31], s44 offen{SC1}\ns_add_u32 s44, s44, 0x20000')
    get_nonce(a, 'F1')
    a(f"""
    s_lshl_b32 s44, s43, 6
    s_lshl_b32 s45, s42, 5
    s_add_u32 s44, s44, s45
    s_add_u32 s44, s44, {FLG_F1}
    s_mov_b64 exec, 1
    buffer_store_dword v8, v2, s[28:31], s44 offen sc1
    s_mov_b64 exec, -1
    """)

def background(a):
    ACC, EXT = 128, 144
    a(f"""
    s_setprio 2
    {'s_add_u32 s26, s26, 12' if BGFIRST else ''}
    s_sub_u32 s33, s26, 8
    s_cmp_eq_u32 s42, 3
    s_cbranch_scc1 BG_F1
    """)
    p1_loader(a)
    a('s_mov_b32 s65, 0\ns_branch BG_J1\nBG_F1:')
    bg_init(a)
    fnet1(a)
    a(f"""
    s_lshr_b32 s44, s43, 1
    s_lshr_b32 s45, s44, 1
    s_lshl_b32 s45, s45, 5
    v_add_u32 v6, s45, v6
    s_and_b32 s45, s44, 1
    s_mul_i32 s46, s45, {f2u(0.25)}
    v_mov_b32 v8, s46
    v_cmp_gt_u32 vcc, s45, v6
    v_mov_b32 v9, 1024
    s_lshl_b32 s46, s33, 5
    v_cndmask_b32 v6, v6, v9, vcc
    v_cndmask_b32 v8, v8, 0, vcc
    v_cvt_f32_u32 v6, v6
    v_mul_f32 v6, {f2u(1/2048)}, v6
    v_add_u32 v7, s46, v7
    v_lshlrev_b32 v7, 3, v7
    v_cvt_f32_u32 v7, v7
    v_fma_f32 v8, v6, v7, v8
    v_mul_f32 v7, {f2u(16.0)}, v6
    s_lshl_b32 s64, s44, 16
    s_lshl_b32 s46, s33, 14
    s_add_u32 s64, s64, s46
    s_add_u32 s64, s64, {CSF_OFF}
    s_lshl_b32 s65, s44, 6
    s_lshl_b32 s46, s33, 4
    s_add_u32 s65, s65, s46
    s_add_u32 s65, s65, {FLG_CS}
    s_mov_b32 s66, 1
    """)
    for ks in range(16):
        b = 64 + 4*ks
        a("v_fract_f32 v9, v8\nv_add_f32 v8, v8, v7")
        for j in range(8):
            a(f"v_cos_f32 v{16+j}, v9")
            if j < 7: a("v_add_f32 v9, v9, v6")
        a("s_nop 0")
        for q in range(4): a(f"v_cvt_pk_bf16_f32 v{b+q}, v{16+2*q}, v{17+2*q}")
    a('BG_J1:')
    srd(a, 28, 24, WS_USED)
    get_nonce(a, 'BG')
    a(f"""
    ds_write_b32 v1, v8 offset:16
    s_and_b32 s40, s2, 7
    s_lshr_b32 s41, s2, 3
    s_lshl_b32 s40, s40, 2
    s_lshr_b32 s45, s41, 3
    s_add_u32 s40, s40, s45
    s_and_b32 s41, s41, 7
    s_and_b32 s34, s33, 1
    s_lshr_b32 s50, s33, 1
    v_and_b32 v9, 15, v0
    v_lshlrev_b32 v9, 6, v9
    s_lshl_b32 s45, s34, 10
    s_add_u32 s45, s45, 1024
    v_add_u32 v9, s45, v9
    s_lshl_b32 s45, s41, 1
    s_add_u32 s45, s45, s50
    s_lshl_b32 s45, s45, 6
    v_mov_b32 v10, s45
    v_cmp_eq_u32 vcc, 16, v0
    s_lshr_b32 s45, s40, 3
    s_lshl_b32 s45, s45, 12
    s_add_u32 s45, s45, {FLG_P1}
    v_cndmask_b32 v9, v9, v10, vcc
    s_lshl_b32 s34, s34, 10
    s_lshl_b32 s35, s40, 17
    s_add_u32 s35, s35, s34
    s_add_u32 s35, s35, {KV_OFF}
    v_mul_u32_u24 v11, {TS}, v0
    v_mov_b32 v40, 0x3f803f80
    v_mov_b32 v41, v40
    v_mov_b32 v42, v40
    v_mov_b32 v43, v40
    s_lshr_b32 s48, s34, 8
    v_add_u32 v20, s48, v1
    s_lshl_b32 s36, s40, 6
    s_lshl_b32 s37, s41, 3
    s_add_u32 s36, s36, s37
    s_lshl_b32 s37, s33, 1
    s_add_u32 s36, s36, s37
    s_lshl_b32 s36, s36, 10
    s_lshl_b32 s37, s33, 11
    s_add_u32 s37, s37, {QST}
    s_lshl_b32 s48, s50, {GSH}
    s_lshl_b32 s53, 1, s48
    s_or_b32 s53, s53, 0x10000
    s_waitcnt lgkmcnt(0)
    """)
    a.stamp(1)
    a('s_barrier')
    a.stamp(2)
    a(f"""
    s_cmp_lg_u32 s66, 0
    s_cbranch_scc1 BG_NOFLAG
    s_mov_b64 exec, 1
    buffer_store_dword v8, v2, s[28:31], s67 offen sc1
    s_mov_b64 exec, -1
    BG_NOFLAG:
    ds_write_b128 v11, v[40:43] offset:2048
    s_mov_b32 s68, {SPIN_MAX}
    BG1_SP:
    buffer_load_dword v10, v9, s[28:31], s45 offen sc1
    s_sub_u32 s68, s68, 1
    s_waitcnt vmcnt(0)
    v_cmp_eq_u32 vcc, s27, v10
    s_cbranch_scc1 BG1_OK
    s_and_b32 s46, vcc_lo, s53
    s_cmp_eq_u32 s46, s53
    s_cbranch_scc0 BG1_SP
    BG1_OK:
    s_mov_b32 s46, vcc_lo
    """)
    a.stamp(3)
    def grp_issue():
        a(f"""
        s_mul_i32 s52, s50, {4*TS}
        s_add_u32 m0, s52, s34
        s_lshl_b32 s51, s48, 13
        s_add_u32 s51, s51, s35
        """)
        for t in range(4):
            a(f'buffer_load_dwordx4 v14, s[28:31], s51 offen{SC1} lds')
            if t < 3: a(f's_add_u32 m0, m0, {TS}\ns_add_u32 s51, s51, 2048')
    grp_issue()
    a(f"""
    s_mov_b32 m0, s37
    s_mov_b32 s49, 0
    buffer_load_dwordx4 v14, s[28:31], s36 offen{SC1} lds
    buffer_load_dwordx4 v14, s[28:31], s36 offen offset:1024{SC1} lds
    s_waitcnt vmcnt(0) lgkmcnt(0)
    s_barrier
    """)
    def publish():
        a('v_mov_b32 v21, s49\ns_mov_b64 exec, 1\nds_or_b32 v20, v21\ns_mov_b64 exec, -1')
    a(f"""
    BGL_LOOP:
    s_add_u32 s50, s50, 2
    s_and_b32 s48, s50, {(16 >> GSH) - 1}
    s_lshl_b32 s48, s48, {GSH}
    s_lshr_b32 s47, s50, {4 - GSH}
    s_add_u32 s48, s48, s47
    s_bitcmp1_b32 s46, s48
    s_cbranch_scc1 BGL_RDY
    s_waitcnt vmcnt(0)
    """)
    publish()
    a(f"""
    s_mov_b32 s68, {SPIN_MAX}
    BGL_SP:
    buffer_load_dword v10, v9, s[28:31], s45 offen sc1
    s_sub_u32 s68, s68, 1
    s_waitcnt vmcnt(0)
    v_cmp_eq_u32 vcc, s27, v10
    s_cbranch_scc1 BGL_RDY
    s_mov_b32 s46, vcc_lo
    s_bitcmp1_b32 s46, s48
    s_cbranch_scc0 BGL_SP
    BGL_RDY:
    """)
    grp_issue()
    a('s_waitcnt vmcnt(4)')
    publish()
    a(f"""
    s_cmp_eq_u32 s65, 0
    s_cbranch_scc1 BGL_NOTAB
    s_lshr_b32 s47, s50, 1
    s_cmp_lg_u32 s47, {TPOS // 2}
    s_cbranch_scc1 BGL_NOTAB
    """)
    for ks in range(16):
        a(f"buffer_store_dwordx4 {vr(64+4*ks,4)}, v14, s[28:31], s64 offen offset:{1024*(ks%4)}{SC1}")
        if ks % 4 == 3 and ks < 15: a("s_add_u32 s64, s64, 4096")
    a('BGL_NOTAB:')
    a(f"""
    s_lshl_b32 s49, 1, s50
    s_cmp_lt_u32 s50, 14
    s_cbranch_scc1 BGL_LOOP
    s_waitcnt vmcnt(0)
    """)
    publish()
    a(f"""
    s_cmp_eq_u32 s65, 0
    s_cbranch_scc1 BGL_NOFLG
    s_mov_b64 exec, 1
    buffer_store_dword v8, v2, s[28:31], s65 offen sc1
    s_mov_b64 exec, -1
    BGL_NOFLG:
    """)
    a(f'''
    s_lshr_b32 s34, s33, 1
    s_and_b32 s35, s33, 1
    s_cmp_eq_u32 s34, 0
    s_mov_b32 s37, {BOF_OFF}
    s_cselect_b32 s36, {AEF_OFF}, s37
    s_cselect_b32 s56, s41, s40
    s_xor_b32 s37, s36, {AEF_OFF ^ BOF_OFF}
    ''')
    srd(a, 52, 20, 0x400000)
    a(f'''
    v_and_b32 v6, 31, v0
    v_lshrrev_b32 v7, 5, v0
    s_lshl_b32 s47, s40, 1
    s_add_u32 s47, s47, s34
    s_lshl_b32 s48, s47, 16
    s_lshl_b32 s44, s35, 15
    s_add_u32 s48, s48, s44
    s_add_u32 s48, s48, {CSF_OFF}
    s_lshl_b32 s47, s47, 6
    s_lshl_b32 s49, s35, 5
    s_add_u32 s47, s47, s49
    s_add_u32 s47, s47, {FLG_CS}
    v_and_b32 v15, 1, v0
    v_lshlrev_b32 v15, 4, v15
    s_lshl_b32 s44, s41, 16
    s_lshl_b32 s45, s35, 15
    s_add_u32 s44, s44, s45
    v_add_u32 v12, s44, v14
    v_mov_b32 v10, 1
    v_mov_b32 v11, 0
    s_lshl_b32 s45, s35, 12
    s_add_u32 s45, s45, {FLG_F1}
    s_add_u32 s46, s45, 32
    v_lshlrev_b32 v9, 6, v0
    ''')
    for r in range(0, 16, 2): a(f'v_mov_b64 {vr(EXT+r,2)}, 0')
    a.stamp(4)
    if os.environ.get('NOFNET'): a('s_branch K_END')
    if DIRECT:
        a(f"""
        s_lshl_b32 s57, s41, 2
        s_add_u32 s57, s57, s33
        s_lshl_b32 s58, s57, 16
        s_lshl_b32 s59, s40, 10
        s_add_u32 s58, s58, s59
        s_add_u32 s58, s58, {OF_OFF}
        s_add_u32 s59, s58, 0x8000
        v_mov_b64 v[16:17], -1
        v_mov_b64 v[18:19], -1
        s_lshl_b32 s57, s57, 5
        s_add_u32 s57, s57, s40
        buffer_store_dwordx4 v[16:19], v14, s[28:31], s58 offen sc1
        buffer_store_dwordx4 v[16:19], v14, s[28:31], s59 offen sc1
        s_lshl_b32 s57, s57, 4
        s_add_u32 s57, s57, {FLG_PZ}
        """)
    poll(a, 'BG2', 9, 13, 's45')
    if DIRECT:
        a('v_mov_b32 v13, s27\ns_mov_b64 exec, 1\nbuffer_store_dword v13, v11, s[28:31], s57 offen sc1\ns_mov_b64 exec, -1')
    poll(a, 'BG3', 9, 13, 's46')
    poll(a, 'BG4', 15, 13, 's47')
    def fl(ks, ext):
        NS = 8 if ext else 12
        b = 16 + (12 if ext else 8)*(ks % NS)
        o = 1024*(ks % 4)
        a(f"""
        buffer_load_dwordx4 {vr(b,4)}, v14, s[28:31], s48 offen offset:{o}{SC1}
        buffer_load_dwordx4 {vr(b+4,4)}, v12, s[28:31], s36 offen offset:{o}{SC1}
        """)
        if ext: a(f'buffer_load_dwordx4 {vr(b+8,4)}, v12, s[28:31], s37 offen offset:{o}{SC1}')
        if ks % 4 == 3: a('s_add_u32 s48, s48, 4096\ns_add_u32 s36, s36, 4096' + ('\ns_add_u32 s37, s37, 4096' if ext else ''))
    def floop(ext):
        per = 3 if ext else 2
        NS = 8 if ext else 12
        for ks in range(NS): fl(ks, ext)
        for ks in range(32):
            b = 16 + (12 if ext else 8)*(ks % NS)
            rem = min(32, ks+NS) - ks - 1
            a(f's_waitcnt vmcnt({per*rem})')
            a(f'v_mfma_f32_32x32x16_bf16 {vr(ACC,16)}, {vr(b,4)}, {vr(b+4,4)}, {"0" if ks == 0 else vr(ACC,16)}')
            if ext: a(f'v_mfma_f32_32x32x16_bf16 {vr(EXT,16)}, {vr(b,4)}, {vr(b+8,4)}, {vr(EXT,16)}')
            if ks+NS < 32: fl(ks+NS, ext)
    a('s_cmp_eq_u32 s56, 0\ns_cbranch_scc1 BG_FEXT')
    floop(False)
    a('s_branch BG_FDONE\nBG_FEXT:')
    floop(True)
    a('BG_FDONE:')
    a.stamp(5)
    a(f'''
    s_lshl_b32 s44, s41, 7
    v_lshl_add_u32 v12, v6, 2, s44
    s_mov_b32 s44, {AE1K_OFF}
    v_mov_b32 v13, 1024
    s_mov_b32 s69, s44
    s_mul_i32 s44, s33, 3072
    s_add_u32 s44, s44, {FX}
    s_lshl_b32 s45, s35, 7
    s_lshl_b32 s46, s34, 8
    s_add_u32 s45, s45, s46
    s_add_u32 s45, s45, {FE}
    v_lshlrev_b32 v3, 6, v7
    v_add_u32 v3, s45, v3
    v_lshl_add_u32 v4, v6, 2, s45
    s_nop 3
    ''')
    for g in range(4):
        a(f'''
        s_sub_u32 s46, {g+3}, s33
        s_and_b32 s46, s46, 3
        s_cmp_eq_u32 s46, 3
        s_cselect_b64 exec, 0, -1
        s_lshl_b32 s46, s46, 10
        s_add_u32 s46, s46, s44
        v_add_u32 v2, s46, v14
        ds_write_b128 v2, {vr(ACC+4*g,4)}
        ''')
    a(f'''
    s_mov_b64 exec, -1
    s_cmp_eq_u32 s34, 0
    s_cbranch_scc0 BG_XQ
    s_mov_b32 exec_lo, 1
    s_mov_b32 exec_hi, 1
    ''')
    for i in range(4): a(f'ds_write_b128 v3, {vr(EXT+4*i,4)} offset:{16*i}')
    a(f'''
    s_branch BG_XD
    BG_XQ:
    s_mov_b32 exec_hi, 0
    ds_write_b32 v4, v{EXT}
    BG_XD:
    s_mov_b64 exec, 1
    s_waitcnt lgkmcnt(0)
    ds_add_u32 v1, v10 offset:12
    s_mov_b64 exec, -1
    s_cmp_lt_u32 s33, 2
    s_cbranch_scc1 BG_M01
    s_cmp_eq_u32 s33, 2
    s_cbranch_scc1 BG_M2
    ''')
    def mv(g):
        for i in range(4): a(f'v_mov_b32 v{20+i}, v{ACC+4*g+i}')
    mv(3); a('s_branch BG_MD\nBG_M2:'); mv(2); a('s_branch BG_MD\nBG_M01:\ns_cmp_eq_u32 s33, 0\ns_cbranch_scc1 BG_M0'); mv(1); a('s_branch BG_MD\nBG_M0:'); mv(0)
    a('BG_MD:')
    for j in range(1, 4):
        a(f'''
        s_add_u32 s46, s33, {j}
        s_and_b32 s46, s46, 3
        s_mul_i32 s46, s46, 3072
        s_add_u32 s46, s46, {FX + (3-j)*1024}
        v_add_u32 v{40+j}, s46, v14
        ''')
    a(f'''
    s_lshl_b32 s46, s33, 4
    s_add_u32 s46, s46, {FE}
    v_lshlrev_b32 v3, 6, v7
    v_add_u32 v3, s46, v3
    v_lshlrev_b32 v4, 2, v6
    v_add_u32 v4, {FE+256}, v4
    BG_FSPIN:
    ds_read_b32 v5, v1 offset:12
    s_waitcnt lgkmcnt(0)
    v_readfirstlane_b32 s46, v5
    s_cmp_ge_u32 s46, 4
    s_cbranch_scc0 BG_FSPIN
    buffer_load_dword v16, v12, s[28:31], s69 offen{SC1}
    buffer_load_dword v17, v13, s[28:31], s69 offen{SC1}
    ds_read_b128 v[24:27], v41
    ds_read_b128 v[28:31], v42
    ds_read_b128 v[32:35], v43
    ds_read_b128 v[44:47], v3
    ds_read_b128 v[48:51], v3 offset:128
    ds_read_b32 v52, v4
    ds_read_b32 v53, v4 offset:128
    ''')
    bg_tail_a(a)
    a(f'''
    s_and_b32 s46, s33, 1
    s_cmp_eq_u32 s46, 0
    s_cselect_b64 s[60:61], -1, 0
    s_cmp_eq_u32 s34, 0
    s_cselect_b64 s[62:63], -1, 0
    s_cmp_eq_u32 s41, 0
    s_cselect_b32 s64, 1, 0
    s_mov_b32 s65, s64
    s_or_b32 s46, s40, s33
    s_cmp_eq_u32 s46, 0
    s_cselect_b32 s66, -1, 0
    s_mov_b32 s67, 0
    s_lshl_b32 s46, s41, 5
    v_add_u32 v2, s46, v6
    v_sub_u32 v3, 512, v2
    v_mov_b32 v4, 256
    v_cndmask_b32 v3, v3, v4, s[64:65]
    v_lshlrev_b32 v2, 1, v2
    v_lshlrev_b32 v3, 1, v3
    v_add_u32 v2, 1024, v2
    v_add_u32 v3, 1024, v3
    s_lshl_b32 s46, s40, 5
    s_lshl_b32 s47, s33, 3
    s_add_u32 s46, s46, s47
    v_lshl_add_u32 v4, v7, 2, s46
    v_sub_u32 v5, {2048-3}, v4
    v_lshl_add_u32 v8, v4, 11, v2
    v_lshl_add_u32 v9, v4, 11, v3
    v_lshl_add_u32 v10, v5, 11, v2
    v_lshl_add_u32 v11, v5, 11, v3
    v_mov_b32 v4, {1024-3}
    v_cndmask_b32 v5, v5, v4, s[66:67]
    v_lshl_add_u32 v12, v5, 11, v2
    v_lshl_add_u32 v13, v5, 11, v3
    s_waitcnt vmcnt(0) lgkmcnt(0)
    ''')
    for i in range(4):
        a(f'''
        v_cndmask_b32 v36, v{32+i}, v{24+i}, s[60:61]
        v_cndmask_b32 v37, v{24+i}, v{32+i}, s[60:61]
        v_add_f32 v36, v36, v{20+i}
        v_add_f32 v37, v37, v{28+i}
        v_cndmask_b32 v{20+i}, v37, v36, s[62:63]
        v_cndmask_b32 v{24+i}, v36, v37, s[62:63]
        v_add_f32 v{44+i}, v{44+i}, v{48+i}
        ''')
        op = 'v_add_f32' if i % 2 == 0 else 'v_sub_f32'
        a(f'{op} v{20+i}, v{20+i}, v16\n{op} v{44+i}, v{44+i}, v17')
    a(f'''
    v_add_f32 v52, v52, v53
    v_add_f32 v52, v52, v16
    v_add_f32 v53, v24, v17
    v_cndmask_b32 v24, v24, 0, s[66:67]
    v_cndmask_b32 v53, v52, v53, s[64:65]
    ''')
    for i in range(4):
        t0 = 56 + 8*i
        a(f'''
        v_cndmask_b32 v{24+i}, v{24+i}, 0, s[64:65]
        v_sub_f32 v{t0}, v{20+i}, v{24+i}
        v_add_f32 v{t0+1}, v{20+i}, v{24+i}
        v_cndmask_b32 v{t0+2}, v{t0+1}, v{44+i}, s[64:65]
        v_cndmask_b32 v{t0+3}, v{t0}, v{44+i}, s[64:65]
        ''')
        if i == 0:
            a(f'''
            v_cndmask_b32 v{t0+1}, v{t0+1}, v52, s[66:67]
            v_cndmask_b32 v{t0+3}, v{t0+3}, v53, s[66:67]
            ''')
        a(f'''
        v_cvt_pk_bf16_f32 v{t0+4}, v{t0}, v{t0+1}
        v_cvt_pk_bf16_f32 v{t0+5}, v{t0+2}, v{t0+3}
        s_mov_b32 s46, {i*2048}
        s_mov_b32 s47, {(3-i)*2048}
        buffer_store_short v{t0+4}, v8, s[52:55], s46 offen{FST}
        buffer_store_short_d16_hi v{t0+4}, v{12 if i == 0 else 10}, s[52:55], s47 offen{FST}
        buffer_store_short v{t0+5}, v9, s[52:55], s46 offen{FST}
        buffer_store_short_d16_hi v{t0+5}, v{13 if i == 0 else 11}, s[52:55], s47 offen{FST}
        ''')

def wo_stage(a):
    srd(a, 48, 8, 0x80000)
    a(f"""
    v_lshrrev_b32 v90, 3, v0
    v_and_b32 v91, 7, v0
    v_and_b32 v92, 2, v90
    v_lshlrev_b32 v92, 1, v92
    v_xor_b32 v91, v91, v92
    v_lshlrev_b32 v91, 4, v91
    v_lshl_add_u32 v90, v90, 10, v91
    s_and_b32 s44, s40, 7
    s_lshl_b32 s45, s44, 7
    s_lshl_b32 s69, s33, 17
    s_add_u32 s45, s45, s69
    """)
    for i in range(16):
        a(f'buffer_load_dwordx4 {vr(96+4*i,4)}, v90, s[48:51], s45 offen\ns_add_u32 s45, s45, 8192')
    a(f"""
    s_lshl_b32 s69, s33, 14
    v_add_u32 v91, s69, v14
    s_lshr_b32 s69, s40, 3
    s_lshl_b32 s47, s41, 2
    s_add_u32 s69, s69, s47
    s_lshl_b32 s69, s69, {OFS+6}
    s_add_u32 s69, s69, {FLG_O}
    v_lshlrev_b32 v92, {OFS}, v0
    s_waitcnt vmcnt(0) lgkmcnt(0)
    s_barrier
    ds_read_b32 v93, v1 offset:{BADF-SCR}
    s_waitcnt lgkmcnt(0)
    v_readfirstlane_b32 s47, v93
    s_cmp_eq_u32 s47, 0
    s_cbranch_scc1 BG_T1
    s_barrier
    s_barrier
    BG_T1:
    """)
    for i in range(16): a(f'ds_write_b128 v91, {vr(96+4*i,4)} offset:{1024*i}')
    a('s_waitcnt lgkmcnt(0)\ns_barrier')

def o_poll(a):
    a('s_cmp_lg_u32 s33, 0\ns_cbranch_scc1 K3_OK')
    poll(a, 'K3', 92, 93, 's69')
    a('s_barrier')

def bg_tail_a(a):
    if DIRECT:
        a(f"""
        s_lshr_b32 s46, s40, 3
        s_lshl_b32 s47, s41, 2
        s_add_u32 s46, s46, s47
        s_lshl_b32 s46, s46, 9
        s_add_u32 s46, s46, {FLG_PZ}
        v_lshlrev_b32 v2, 4, v6
        """)
        poll(a, 'BG5', 2, 3, 's46')
    if LATEF: wo_stage(a)

def bg_tail(a):
    if not LATEF: wo_stage(a)
    if not DIRECT: o_poll(a)
    if BGBAR: a('s_barrier')

def fused():
    a = Asm()
    a('s_cmp_ge_u32 s2, 256\ns_cbranch_scc1 K_END')
    a.stamp(0)
    a(f'''
    s_load_dwordx8 s[4:11], s[0:1], 0
    s_load_dwordx4 s[20:23], s[0:1], 64
    s_load_dwordx2 s[24:25], s[0:1], 80
    v_lshrrev_b32 v1, 6, v0
    v_and_b32 v0, 63, v0
    s_and_b32 s44, s2, 7
    v_readfirstlane_b32 s26, v1
    s_lshr_b32 s45, s2, 3
    s_and_b32 s46, s45, 3
    s_lshl_b32 s40, s44, 1
    s_and_b32 s40, s40, 12
    s_add_u32 s40, s40, s46
    s_lshr_b32 s47, s45, 2
    s_lshr_b32 s42, s47, 1
    s_and_b32 s41, s44, 1
    s_lshl_b32 s41, s41, 1
    s_and_b32 s48, s47, 1
    s_add_u32 s41, s41, s48
    s_lshl_b32 s43, s46, 1
    s_add_u32 s43, s43, s47
    s_and_b32 s43, s43, {ROT}
    {'s_sub_u32 s26, s26, 4' if BGFIRST else 's_cmp_ge_u32 s26, 8'}
    s_cbranch_scc1 K_BG
    s_getpc_b64 s[44:45]
    PC_HERE:
    s_sub_u32 s44, s44, PC_HERE-{NAME}
    s_subb_u32 s45, s45, 0
    v_lshlrev_b32 v6, 7, v0
    s_lshl_b32 s47, s26, 13
    v_add_u32 v6, s47, v6
    v_min_u32 v6, K_END-{NAME}, v6
    global_load_dword v143, v6, s[44:45]
    s_branch K_MAIN
    K_BG:
    ''')
    background(a)
    a.stamp(6)
    bg_tail(a)
    a.flush(0, 26, grp=1)
    a('s_endpgm')
    a('.p2align 6')
    a('K_MAIN:')
    phase1(a)
    attention(a)
    oproj(a)
    if TAILPROF: a.stamp(4)
    if PROF: a('s_waitcnt vmcnt(0)')
    a.flush(0, 26)
    a('K_END:')
    a('s_endpgm')
    return header(NAME) + a.text(), kd(NAME, 160, 100)

if __name__ == '__main__':
    import sys
    c, d = fused()
    doc = """; One persistent launch, 256 workgroups (one per CU) of 8 attention waves + 4 helper waves.
"""
    out = '; @launch grid=(256,1,1) block=(768,1,1) lds=163840\n' + doc + '.amdgcn_target "amdgcn-amd-amdhsa--gfx950"\n.text\n' + c + '.section .rodata,"a"\n' + d
    open(sys.argv[1], 'w').write(out)
```

```python
from common import *
NAME = 'concat_heads__mha_block__spectral_fnet__prompt_kernel'
FLG_P1 = 0x710000
FLG_F1 = 0x720000
FLG_CS = 0x728000
FLG_PZ = 0x738000
FLG_O  = 0x730000
TS = 2064
SCR = 64*TS
MSK, BADF, CNT_F, NONCE, DCNT, QCNT, F1C = SCR, SCR+8, SCR+12, SCR+16, SCR+20, SCR+32, SCR+48
CMB = SCR+256
QST = CMB
FX = CMB+18432
FE = FX+12288
BIAS = float(os.environ.get('BIAS', '100'))
SPIN_MAX = 1 << 16
KA, VA, IDX, VB = 1, 2, 3, 47
KA0, VA0, VB0, QC, ONE = 36, 16, 17, 18, 19
QA, QB = 4, 8
KF = 12
VF = [[20, 24], [28, 32]]
SA, SB, OA, OB, MA, MB = 48, 64, 80, 96, 112, 128
PKD = 144
SC1 = ' sc1'
FST = OST = ''
OFS = 3
ROT = int(os.environ.get('ROT', '6'))
DEFER = int(os.environ.get('DEFER', '3'))
GSH = 1 if DEFER == 1 else 2
P1PROF = int(os.environ.get('P1PROF', '0'))
TPOS = int(os.environ.get('TPOS', '12'))
LATEF = int(os.environ.get('LATEF', '0'))
TAILPROF = int(os.environ.get('TAILPROF', '0'))
BGFIRST = int(os.environ.get('BGFIRST', '0'))
LALIGN = int(os.environ.get('LALIGN', '-1'))
FLAGLATE = int(os.environ.get('FLAGLATE', '0'))
DIRECT = int(os.environ.get('DIRECT', '1'))
BGBAR = int(os.environ.get('BGBAR', '0'))
KORD = [int(x) for x in os.environ.get('KORD', '01234567')]
MAINPRIO = int(os.environ.get('MAINPRIO', '1'))
assert FE + 512 <= 163840

def srd(a, d, lo, size):
    a(f's_mov_b32 s{d}, s{lo}\ns_mov_b32 s{d+1}, s{lo+1}\ns_mov_b32 s{d+2}, {size}\ns_mov_b32 s{d+3}, 0x20000')

def poll(a, tag, vaddr, vt, soff, mask=None):
    if mask: a(f's_mov_b64 exec, {mask}')
    a(f'''
    s_mov_b32 s68, {SPIN_MAX}
    {tag}_SP:
    buffer_load_dword v{vt}, v{vaddr}, s[28:31], {soff} offen sc1
    s_sub_u32 s68, s68, 1
    s_waitcnt vmcnt(0)
    v_cmp_ne_u32 vcc, s27, v{vt}
    s_cbranch_scc1 {tag}_OK
    s_cbranch_vccnz {tag}_SP
    {tag}_OK:
    ''')
    if mask: a('s_mov_b64 exec, -1')


def bg_init(a):
    a(f"""
    v_lshlrev_b32 v14, 4, v0
    v_mov_b32 v1, {SCR}
    v_mov_b32 v2, 0
    v_cmp_gt_u32 vcc, 2, v0
    v_lshrrev_b32 v4, 2, v0
    v_lshl_add_u32 v5, v0, 2, v1
    v_cndmask_b32 v3, 0, 3, vcc
    v_cmp_eq_u32 vcc, 2, v4
    s_lshl_b32 s67, s41, 2
    s_add_u32 s67, s67, s42
    v_cndmask_b32 v3, v3, 2, vcc
    s_mov_b64 exec, 0xffff
    ds_write_b32 v5, v3
    s_mov_b64 exec, -1
    s_lshl_b32 s67, s67, 4
    s_add_u32 s67, s67, s40
    s_lshl_b32 s67, s67, 6
    s_add_u32 s67, s67, {FLG_P1}
    s_and_b32 s66, s40, {DEFER}
    s_cmp_eq_u32 s42, 0
    s_cselect_b32 s66, 0, s66
    s_or_b32 s66, s66, s33
    """)

def p1_loader(a):
    a(f"""
    v_lshrrev_b32 v6, 3, v0
    v_and_b32 v8, 7, v0
    v_lshrrev_b32 v9, 4, v0
    v_xor_b32 v8, v8, v9
    v_lshlrev_b32 v8, 4, v8
    v_lshl_add_u32 v16, v6, 10, v8
    v_xor_b32 v17, 64, v16
    v_add_u32 v17, 0x2000, v17
    v_add_u32 v18, 0x4000, v16
    v_add_u32 v19, 0x4000, v17
    s_lshl_b32 s44, s40, 17
    s_lshl_b32 s45, s33, 15
    s_add_u32 s44, s44, s45
    v_mul_u32_u24 v7, 3072, v9
    v_and_b32 v8, 15, v0
    v_lshlrev_b32 v9, 2, v9
    v_xor_b32 v8, v8, v9
    v_lshl_add_u32 v20, v8, 4, v7
    v_add_u32 v21, {4*3072}, v20
    v_add_u32 v22, {8*3072}, v20
    v_add_u32 v23, {12*3072}, v20
    s_lshl_b32 s47, s42, 10
    s_lshl_b32 s48, s41, 8
    s_add_u32 s47, s47, s48
    s_mul_i32 s48, s33, {16*3072}
    s_add_u32 s47, s47, s48
    s_lshl_b32 s51, s33, 12
    s_waitcnt lgkmcnt(0)
    """)
    srd(a, 56, 4, 0x200000); srd(a, 36, 6, 0x180000)
    def issue(c):
        slot = c % 4
        a(f"""
        s_add_u32 s54, s43, {KORD[c]}
        s_and_b32 s54, s54, 7
        s_lshl_b32 s55, s54, 7
        s_add_u32 s55, s55, s44
        s_mul_i32 s54, s54, {64*3072}
        s_add_u32 m0, s51, {slot*32768}
        s_add_u32 s54, s54, s47
        """)
        for j in range(4):
            a(f"""
            buffer_load_dwordx4 v{16+j}, s[56:59], s55 offen lds
            s_add_u32 m0, s51, {slot*32768+16384+j*1024}
            s_nop 0
            buffer_load_dwordx4 v{20+j}, s[36:39], s54 offen lds
            """)
            if j < 3: a(f"s_add_u32 m0, s51, {slot*32768+(j+1)*1024}\ns_nop 0")
    a.stamp(7)
    issue(0); issue(1)
    bg_init(a)
    a(f"""
    s_add_u32 s48, s2, s33
    s_cmp_lg_u32 s48, 0
    s_cbranch_scc1 BG_NONONCE
    s_memrealtime s[60:61]
    s_waitcnt lgkmcnt(0)
    s_or_b32 s60, s60, 1
    v_mov_b32 v8, s60
    s_mov_b64 exec, 1
    global_store_dword v2, v8, s[22:23] sc1
    s_mov_b64 exec, -1
    BG_NONONCE:
    """)
    for c in range(8):
        a(f"s_waitcnt vmcnt({8 if c < 7 else 0}){' lgkmcnt(0)' if c == 0 else ''}\ns_barrier")
        if c + 2 < 8: issue(c+2)

def phase1(a):
    a(f"""
    s_mov_b32 s66, 0
    v_mov_b32 v142, 0
    s_cmp_eq_u32 s42, 3
    s_cbranch_scc0 K1_GEMM
    s_waitcnt lgkmcnt(0)
    """)
    srd(a, 28, 24, WS_USED)
    a("s_barrier")
    a("s_branch K1_DONE\nK1_GEMM:")
    a(f'''
    s_and_b32 s57, s26, 1
    s_lshr_b32 s58, s26, 1
    v_and_b32 v6, 31, v0
    v_lshrrev_b32 v7, 5, v0
    s_lshl_b32 s49, s57, 5
    v_add_u32 v8, s49, v6
    v_bfe_u32 v9, v8, 1, 3
    v_xor_b32 v9, v9, v7
    ''')
    for ks in range(4):
        a(f'''
        v_xor_b32 v10, {2*ks}, v9
        v_lshlrev_b32 v10, 4, v10
        v_lshl_add_u32 v{96+ks}, v8, 7, v10
        v_add_u32 v{100+ks}, 0x10000, v{96+ks}
        ''')
    a('''
    v_bfe_u32 v8, v0, 2, 2
    v_lshl_add_u32 v9, v7, 3, v8
    v_bfe_u32 v10, v0, 4, 1
    v_lshlrev_b32 v10, 1, v10
    v_bfe_u32 v11, v0, 1, 1
    v_add_u32 v10, v10, v11
    s_lshl_b32 s49, s58, 2
    v_add_u32 v10, s49, v10
    v_lshlrev_b32 v8, 2, v8
    v_xor_b32 v10, v10, v8
    v_lshlrev_b32 v10, 4, v10
    v_lshl_add_u32 v10, v9, 8, v10
    v_and_b32 v11, 1, v0
    v_lshl_add_u32 v104, v11, 3, v10
    v_add_u32 v105, 0x10000, v104
    s_waitcnt lgkmcnt(0)
    s_mov_b32 s28, s24
    s_mov_b32 s29, s25
    s_mov_b32 s30, 14680064
    s_mov_b32 s31, 0x20000
    ''')
    a(f"""
    s_lshl_b32 s60, s41, 3
    s_lshl_b32 s61, s58, 1
    s_add_u32 s60, s60, s61
    s_lshl_b32 s60, s60, 6
    s_lshl_b32 s61, s40, 2
    s_add_u32 s61, s61, s57
    s_add_u32 s60, s60, s61
    s_lshl_b32 s67, s41, 2
    s_add_u32 s67, s67, s42
    s_lshl_b32 s67, s67, 4
    s_add_u32 s67, s67, s40
    s_lshl_b32 s67, s67, 6
    s_add_u32 s67, s67, {FLG_P1}
    s_and_b32 s66, s40, {DEFER}
    s_cmp_eq_u32 s42, 0
    s_cselect_b32 s66, 0, s66
    """)
    a('''
    s_cmp_ge_u32 s42, 2
    s_cbranch_scc1 K1_LOOP_XW
    ''')
    def reads(slot, ks, fs):
        b = 16 + 12*fs
        hi = slot >= 2
        so = (slot & 1)*32768
        xa = (100 if hi else 96) + ks
        wa = 105 if hi else 104
        a(f'''
        ds_read_b128 {vr(b,4)}, v{xa} offset:{so}
        ds_read_b64_tr_b16 {vr(b+8,2)}, v{wa} offset:{so+16384+ks*4096}
        ds_read_b64_tr_b16 {vr(b+10,2)}, v{wa} offset:{so+16384+ks*4096+1024}
        ds_read_b128 {vr(b+4,4)}, v{xa} offset:{so+8192}
        ''')
    def mfmas(wx, fs, first):
        b = 16 + 12*fs
        for T in range(2):
            d = vr(64+16*T, 16); c = '0' if first else d
            x = vr(b+4*T, 4); w = vr(b+8, 4)
            a(f'v_mfma_f32_32x32x16_bf16 {d}, {w if wx else x}, {x if wx else w}, {c}')
    def loop(wx):
        def enter(c):
            a('s_barrier')
            if c == 0: a.stamp(2)
            if P1PROF and c in (1,2,3,4,6): a.stamp({1:5,2:6,3:7,4:8,6:9}[c])
        enter(0)
        reads(0, 0, 0); reads(0, 1, 1)
        for i in range(32):
            n = i + 2
            if n < 32:
                if n % 4 == 0: enter(n // 4)
                reads((n // 4) % 4, n % 4, n % 4)
            a(f's_waitcnt lgkmcnt({8 if n < 32 else (4 if n == 32 else 0)})')
            mfmas(wx, i % 4, i == 0)
        a.stamp(3)
    def pack():
        for T in range(2):
            for hh in range(2):
                b = 64 + 16*T + 8*hh
                for i in range(4): a(f'v_cvt_pk_bf16_f32 v{PKD+(2*T+hh)*4+i}, v{b+2*i}, v{b+2*i+1}')
    def offs(f):
        for T in range(2):
            for hh in range(2): a(f's_add_u32 s{62+2*T+hh}, s60, {f(T, hh)}')
    loop(True)
    a(f"""
    s_cmp_eq_u32 s42, 0
    s_cbranch_scc0 K1_EPI_K
    s_lshl_b32 s60, s60, 10
    v_lshlrev_b32 v142, 4, v0
    s_mov_b32 s61, {f2u(QSCALE)}
    """)
    offs(lambda T, hh: QF_OFF + hh*65536 + T*2048)
    a('s_nop 2')
    a('s_mov_b32 s60, s61')
    for r in range(0, 32, 2): a(f'v_pk_mul_f32 {vr(64+r,2)}, {vr(64+r,2)}, s[60:61]')
    a(f"""
    s_branch K1_PACK
    K1_EPI_K:
    s_lshl_b32 s60, s60, 11
    v_and_b32 v1, 0x33, v0
    v_bfe_u32 v2, v0, 2, 1
    v_bfe_u32 v3, v0, 3, 1
    v_lshl_add_u32 v1, v2, 3, v1
    v_lshl_add_u32 v1, v3, 2, v1
    v_lshlrev_b32 v142, 4, v1
    """)
    offs(lambda T, hh: KV_OFF + hh*131072 + T*4096)
    a('s_branch K1_PACK')
    a('K1_LOOP_XW:')
    loop(False)
    a(f"""
    s_lshl_b32 s60, s60, 11
    v_and_b32 v1, 15, v0
    v_lshlrev_b32 v1, 4, v1
    v_bfe_u32 v2, v0, 4, 1
    v_lshl_add_u32 v1, v2, 17, v1
    v_lshl_add_u32 v142, v7, 8, v1
    """)
    offs(lambda T, f: KV_OFF + 1024 + f*512 + T*4096)
    a('s_nop 1\nK1_PACK:')
    pack()
    a('s_cmp_lg_u32 s66, 0\ns_cbranch_scc1 K1_DONE')
    p1_stores(a)
    a('K1_DONE:')

def p1_stores(a):
    for k in range(4): a(f'buffer_store_dwordx4 {vr(PKD+4*k,4)}, v142, s[28:31], s{62+k} offen{SC1}')

def arrive_deferred(a, tag):
    a(f"""
    s_waitcnt vmcnt(0)
    s_mov_b64 exec, 1
    ds_add_rtn_u32 v44, v46, v{ONE} offset:{DCNT-MSK}
    v_mov_b32 v45, s27
    v_mov_b32 v43, 0
    s_waitcnt lgkmcnt(0)
    v_cmp_eq_u32 vcc, 7, v44
    s_mov_b32 s66, 0
    s_cbranch_vccz {tag}
    buffer_store_dword v45, v43, s[28:31], s67 offen sc1
    {tag}:
    s_mov_b64 exec, -1
    """)

def attention(a):
    a(f"""
    s_and_b32 s40, s2, 7
    s_lshr_b32 s41, s2, 3
    s_lshl_b32 s40, s40, 2
    s_lshr_b32 s45, s41, 3
    s_add_u32 s40, s40, s45
    s_and_b32 s41, s41, 7
    s_and_b32 s33, s26, 3
    s_lshr_b32 s34, s26, 2
    s_lshl_b32 s35, s41, 3
    s_lshl_b32 s36, s33, 1
    s_add_u32 s35, s35, s36
    v_lshlrev_b32 v36, 4, v0
    v_and_b32 v39, 15, v0
    v_lshrrev_b32 v38, 5, v0
    v_lshlrev_b32 v39, 4, v39
    v_lshl_add_u32 v39, v38, 8, v39
    v_bfe_u32 v38, v0, 4, 1
    v_lshl_add_u32 v39, v38, 18, v39
    v_and_b32 v41, 27, v0
    v_cmp_eq_u32 vcc, 16, v41
    v_add_u32 v{VA0}, 1024, v39
    v_add_u32 v{VB0}, 1536, v39
    v_mov_b32 v41, 2048
    v_mov_b32 v{IDX}, 0xdddddddd
    v_cndmask_b32 v{VA0}, v{VA0}, v41, vcc
    v_cndmask_b32 v{VB0}, v{VB0}, v41, vcc
    s_mov_b32 s42, 0
    s_mov_b32 s32, 0xffff0003
    s_lshl_b32 s36, s33, 11
    s_add_u32 s36, s36, {QST}
    v_add_u32 v41, s36, v36
    v_mov_b32 v46, {MSK}
    s_lshl_b32 s36, s33, 2
    s_add_u32 s36, s36, {QCNT}
    v_mov_b32 v{QC}, s36
    v_mov_b32 v{ONE}, 1
    """)
    def zero_acc():
        for r in range(0, 32, 2): a(f'v_mov_b64 {vr(OA+r,2)}, 0')
        for r in range(0, 4, 2): a(f'v_mov_b64 {vr(VF[1][1]+r,2)}, 0')
    zero_acc()
    a('s_waitcnt vmcnt(0)')
    a.stamp(4)
    a('s_barrier')
    a('s_barrier')
    if not P1PROF: a.stamp(5)
    a(f"""
    ds_read_b128 {vr(QA,4)}, v41
    ds_read_b128 {vr(QB,4)}, v41 offset:1024
    ds_read_b128 {vr(KF,4)}, v36
    ds_read_b32 v44, v46 offset:16
    s_cmp_eq_u32 s66, 0
    s_cbranch_scc1 K2_NODEF
    """)
    p1_stores(a)
    a(f"""
    K2_NODEF:
    s_waitcnt lgkmcnt(0)
    v_mfma_f32_32x32x16_bf16 {vr(SA,16)}, {vr(KF,4)}, {vr(QA,4)}, 0
    v_mfma_f32_32x32x16_bf16 {vr(SB,16)}, {vr(KF,4)}, {vr(QB,4)}, 0
    v_readfirstlane_b32 s27, v44
    s_cmp_lg_u32 s34, 0
    s_cbranch_scc1 K2_FILL
    s_setprio {MAINPRIO}
    s_nop 6
    s_branch K2_GO
    K2_FILL:
    s_nop 7
    s_cmp_eq_u32 s66, 0
    s_cbranch_scc1 K2_GO
    """)
    arrive_deferred(a, 'K2_AD0')
    a('K2_GO:')
    def rowmax(S, dst, acc=False):
        if not acc:
            a(f'v_max3_f32 v{dst}, v{S}, v{S+1}, v{S+2}')
            for i in range(3, 15, 2): a(f'v_max3_f32 v{dst}, v{dst}, v{S+i}, v{S+i+1}')
            a(f'v_max_f32 v{dst}, v{dst}, v{S+15}')
        else:
            for i in range(0, 16, 2): a(f'v_max3_f32 v{dst}, v{dst}, v{S+i}, v{S+i+1}')
    def xhalf(r, t):
        a(f'''
        v_mov_b32 v{t}, v{r}
        s_nop 1
        v_permlane32_swap_b32 v{r}, v{t}
        s_nop 1
        v_max_f32 v{r}, v{r}, v{t}
        ''')
    rowmax(SA, 41); rowmax(SB, 42); xhalf(41, 43); xhalf(42, 44)
    a(f'''
    v_mov_b32 v43, {f2u(-BIAS)}
    v_sub_f32 v41, v43, v41
    v_sub_f32 v42, v43, v42
    K2_RESTART:
    s_mul_i32 s44, s34, {4*TS}
    v_add_u32 v{KA}, s44, v{KA0}
    v_add_u32 v{VA}, s44, v{VA0}
    v_add_u32 v{VB}, s44, v{VB0}
    ds_read_b128 {vr(KF,4)}, v{KA}
    ds_read_b128 {vr(VF[0][0],4)}, v{VA}
    ds_read_b128 {vr(VF[0][1],4)}, v{VB}
    ''')
    a('v_mov_b32 v40, v41\nv_mov_b32 v43, v42')
    for r in range(0, 16, 2): a(f'v_mov_b64 {vr(MA+r,2)}, v[40:41]')
    for r in range(0, 16, 2): a(f'v_mov_b64 {vr(MB+r,2)}, v[42:43]')
    for r in range(8, 16, 2): a(f'v_mov_b64 {vr(SB+r,2)}, 0')
    a(f'''
    s_waitcnt lgkmcnt(0)
    v_mfma_f32_32x32x16_bf16 {vr(SA,16)}, {vr(KF,4)}, {vr(QA,4)}, {vr(MA,16)}
    s_nop 10
    ''')
    if not P1PROF: a.stamp(6)
    a(f'''
    s_branch K2_LOOP
    K2_SPIN:
    {'s_memrealtime s[96:97]' if PROF else ''}
    K2_SPIN2:
    ds_read_b64 v[44:45], v46
    s_waitcnt lgkmcnt(0)
    v_and_b32 v44, v44, v45
    s_nop 0
    v_readfirstlane_b32 s32, v44
    s_or_b32 s32, s32, 0xffff0000
    s_bitcmp1_b32 s32, s43
    s_cbranch_scc0 K2_SPIN2
    {'s_memrealtime s[98:99]' if PROF else ''}
    {'s_waitcnt lgkmcnt(0)' if PROF else ''}
    {'s_sub_u32 s98, s98, s96' if PROF else ''}
    {'s_add_u32 s76, s76, s98' if PROF else ''}
    s_branch K2_READY
    K2_BACK:
    s_cmp_eq_u32 s66, 0
    s_cbranch_scc1 K2_LOOP
    ''')
    arrive_deferred(a, 'K2_AD1')
    if LALIGN >= 0:
        a('s_branch K2_LOOP')
        a('.p2align 6')
        for _ in range(LALIGN): a('s_nop 0')
    a(f'''
    K2_LOOP:
    ''')
    def ex(S, lo, hi):
        for i in range(lo, hi): a(f'v_exp_f32 v{S+i}, v{S+i}')
    def tile(j):
        vs, vp = VF[j & 1], VF[(j+1) & 1]
        ex(SA, 0, 2)
        a(f'v_smfmac_f32_32x32x32_bf16 {vr(OB,16)}, {vr(vp[1],4)}, {vr(SB+8,8)}, v{IDX}')
        ex(SA, 2, 5)
        a(f'v_mfma_f32_32x32x16_bf16 {vr(SB,16)}, {vr(KF,4)}, {vr(QB,4)}, {vr(MB,16)}')
        o = (j+1)*TS
        if j == 3:
            o = 0
            a(f"""
            s_min_u32 s44, s43, 15
            s_mulk_i32 s44, {4*TS}
            s_bitcmp1_b32 s32, s43
            s_cbranch_scc0 K2_SPIN
            K2_READY:
            v_add_u32 v{KA}, s44, v{KA0}
            v_add_u32 v{VA}, s44, v{VA0}
            v_add_u32 v{VB}, s44, v{VB0}
            """)
        a(f"""
        ds_read_b128 {vr(KF,4)}, v{KA} offset:{o}
        ds_read_b128 {vr(vp[0],4)}, v{VA} offset:{o}
        ds_read_b128 {vr(vp[1],4)}, v{VB} offset:{o}
        """)
        if j == 2: a(f's_mov_b64 exec, 1\nds_add_rtn_u32 v43, v{QC}, v{ONE}\ns_mov_b64 exec, -1')
        ex(SA, 5, 10)
        a(f'v_smfmac_f32_32x32x32_bf16 {vr(OA,16)}, {vr(vs[0],4)}, {vr(SA,8)}, v{IDX}')
        ex(SA, 10, 16)
        ex(SB, 0, 2)
        a(f'v_smfmac_f32_32x32x32_bf16 {vr(OA,16)}, {vr(vs[1],4)}, {vr(SA+8,8)}, v{IDX}')
        ex(SB, 2, 5)
        a('s_waitcnt lgkmcnt(0)')
        a(f'v_mfma_f32_32x32x16_bf16 {vr(SA,16)}, {vr(KF,4)}, {vr(QA,4)}, {vr(MA,16)}')
        ex(SB, 5, 10)
        a(f'v_smfmac_f32_32x32x32_bf16 {vr(OB,16)}, {vr(vs[0],4)}, {vr(SB,8)}, v{IDX}')
        if j == 2: a('v_readfirstlane_b32 s43, v43')
        if j == 3: a('s_cmp_lt_u32 s43, 16')
        ex(SB, 10, 16)
    for j in range(4): tile(j)
    a(f'''
    s_cbranch_scc1 K2_BACK
    s_nop 1
    v_smfmac_f32_32x32x32_bf16 {vr(OB,16)}, {vr(VF[1][1],4)}, {vr(SB+8,8)}, v{IDX}
    ''')
    if not P1PROF: a.stamp(7)
    a(f'''
    s_setprio 0
    s_cmp_eq_u32 s66, 0
    s_cbranch_scc1 K2_NOAD
    ''')
    arrive_deferred(a, 'K2_AD2')
    a(f'''
    K2_NOAD:
    s_nop 1
    s_mul_i32 s44, s26, 2304
    s_add_u32 s44, s44, {CMB}
    v_add_u32 v45, s44, v36
    v_lshlrev_b32 v46, 2, v0
    v_add_u32 v46, s44, v46
    s_mov_b32 s44, {f2u(2.0**100)}
    s_mov_b32 s45, 0x7f800000
    s_mov_b32 s46, {f2u(2.0**-(BIAS+1))}
    s_mov_b32 s47, {f2u(2.0**-105)}
    s_cmp_lg_u32 s42, 0
    s_cbranch_scc1 K2_GOOD
    ''')
    for k, O in enumerate((OA, OB)):
        t = 43+k
        a(f'v_add_f32 v{t}, abs(v{O}), abs(v{O+1})')
        for i in range(2, 8): a(f'v_add_f32 v{t}, v{t}, abs(v{O+i})')
        a(f'''
        v_cmp_ngt_f32 s[48:49], s44, v{O+8}
        v_cmp_ngt_f32 s[50:51], s45, v{t}
        v_cmp_le_f32 s[52:53], s46, v{O+8}
        v_cmp_gt_f32 vcc, s47, v{t}
        s_or_b64 s[48:49], s[48:49], s[50:51]
        s_and_b64 vcc, vcc, s[52:53]
        s_or_b64 s[{54+2*k}:{55+2*k}], s[48:49], vcc
        ''')
    a(f'''
    s_or_b64 s[54:55], s[54:55], s[56:57]
    s_cbranch_scc0 K2_GOOD
    v_mov_b32 v43, {BADF}
    v_mov_b32 v44, 1
    ds_write_b32 v43, v44
    K2_GOOD:
    s_cmp_eq_u32 s34, 0
    s_cbranch_scc1 K2_SENDB
    ds_write_b128 v45, {vr(OA,4)}
    ds_write_b128 v45, {vr(OA+4,4)} offset:1024
    ds_write_b32 v46, v{OA+8} offset:2048
    s_waitcnt lgkmcnt(0)
    ''')
    for r in range(9): a(f'v_mov_b32 v{OA+r}, v{OB+r}')
    a(f'''
    v_subrev_u32 v45, {4*2304}, v45
    v_subrev_u32 v46, {4*2304}, v46
    s_branch K2_SENT
    K2_SENDB:
    ds_write_b128 v45, {vr(OB,4)}
    ds_write_b128 v45, {vr(OB+4,4)} offset:1024
    ds_write_b32 v46, v{OB+8} offset:2048
    v_add_u32 v45, {4*2304}, v45
    v_add_u32 v46, {4*2304}, v46
    K2_SENT:
    v_mov_b32 v43, {BADF}
    s_waitcnt lgkmcnt(0)
    s_barrier
    ds_read_b32 v44, v43
    ds_read_b128 {vr(SA,4)}, v45
    ds_read_b128 {vr(SA+4,4)}, v45 offset:1024
    ds_read_b32 v{SA+8}, v46 offset:2048
    s_add_u32 s36, s35, s34
    s_lshl_b32 s36, s36, 5
    s_add_u32 s36, s36, s40
    s_lshl_b32 s36, s36, 10
    s_add_u32 s36, s36, {OF_OFF}
    s_waitcnt lgkmcnt(3)
    v_readfirstlane_b32 s44, v44
    s_cmp_lt_u32 s42, s44
    s_cbranch_scc0 K2_COMBINE
    ''')
    a(f'''
    s_mov_b32 s42, 1
    v_mov_b32 v41, 0xff800000
    v_mov_b32 v42, 0xff800000
    s_mul_i32 s44, s34, {32*TS}
    v_add_u32 v45, s44, v{KA0}
    v_mov_b32 v43, 2
    ds_write_b32 v{QC}, v43
    s_mov_b32 s43, 32
    K2_MAXLOOP:
    ds_read_b128 {vr(KF,4)}, v45
    v_add_u32 v45, {TS}, v45
    s_waitcnt lgkmcnt(0)
    v_mfma_f32_32x32x16_bf16 {vr(SA,16)}, {vr(KF,4)}, {vr(QA,4)}, 0
    v_mfma_f32_32x32x16_bf16 {vr(SB,16)}, {vr(KF,4)}, {vr(QB,4)}, 0
    s_nop 11
    ''')
    rowmax(SA, 41, True); rowmax(SB, 42, True)
    a(f'''
    s_sub_u32 s43, s43, 1
    s_cmp_lg_u32 s43, 0
    s_cbranch_scc1 K2_MAXLOOP
    ''')
    xhalf(41, 43); xhalf(42, 44)
    a(f'''
    s_lshl_b32 s44, s26, 9
    v_lshlrev_b32 v43, 2, v0
    v_add_u32 v43, s44, v43
    v_xor_b32 v45, 0x800, v43
    v_add_u32 v43, {FX}, v43
    v_add_u32 v45, {FX}, v45
    ds_write_b32 v43, v41
    ds_write_b32 v43, v42 offset:256
    s_waitcnt lgkmcnt(0)
    s_barrier
    ds_read_b32 v44, v45
    ds_read_b32 v45, v45 offset:256
    s_waitcnt lgkmcnt(0)
    v_max_f32 v41, v41, v44
    v_max_f32 v42, v42, v45
    v_sub_f32 v41, 0, v41
    v_sub_f32 v42, 0, v42
    v_mov_b32 v46, {MSK}
    ''')
    zero_acc()
    a(f'''
    s_branch K2_RESTART
    K2_COMBINE:
    ''')
    if not P1PROF: a.stamp(8)
    a(f'''
    s_and_b32 s44, s40, 7
    s_waitcnt lgkmcnt(0)
    v_add_f32 v{OA+8}, v{OA+8}, v{SA+8}
    v_rcp_f32 v{OA+8}, v{OA+8}
    ''')
    for r in range(8): a(f'v_add_f32 v{OA+r}, v{OA+r}, v{SA+r}')
    for r in range(8): a(f'v_mul_f32 v{OA+r}, v{OA+r}, v{OA+8}')
    for i in range(4): a(f'v_cvt_pk_bf16_f32 v{60+i}, v{OA+2*i}, v{OA+2*i+1}')
    a(f'buffer_store_dwordx4 v[60:63], v36, s[28:31], s36 offen{SC1}')
    a(f'''
    s_lshl_b32 s47, s41, 2
    s_add_u32 s47, s47, s33
    s_lshl_b32 s47, s47, 5
    s_add_u32 s47, s47, s40
    s_lshl_b32 s47, s47, 1
    s_add_u32 s47, s47, s34
    s_lshl_b32 s47, s47, {OFS}
    s_add_u32 s47, s47, {FLG_O}
    v_mov_b32 v5, s27
    v_mov_b32 v6, 0
    ''')
    if not FLAGLATE and not DIRECT: o_flag(a)

def o_flag(a):
    a('s_waitcnt vmcnt(0)\ns_mov_b64 exec, 1\nbuffer_store_dword v5, v6, s[28:31], s47 offen sc1\ns_mov_b64 exec, -1')

def oproj(a):
    srd(a, 52, 20, 0x400000)
    a(f'''
    v_lshlrev_b32 v2, 4, v0
    s_and_b32 s56, s26, 1
    s_lshr_b32 s57, s26, 1
    s_lshr_b32 s58, s40, 3
    s_lshl_b32 s59, s41, 2
    s_add_u32 s59, s59, s58
    v_lshrrev_b32 v7, 5, v0
    v_bfe_u32 v8, v0, 2, 2
    v_lshl_add_u32 v9, v7, 2, v8
    v_bfe_u32 v10, v0, 4, 1
    v_lshlrev_b32 v10, 1, v10
    v_bfe_u32 v11, v0, 1, 1
    v_add_u32 v10, v10, v11
    v_and_b32 v8, 2, v8
    v_lshlrev_b32 v8, 1, v8
    v_xor_b32 v10, v10, v8
    v_lshlrev_b32 v10, 4, v10
    v_lshl_add_u32 v10, v9, 7, v10
    v_and_b32 v11, 1, v0
    v_lshl_add_u32 v10, v11, 3, v10
    s_lshl_b32 s60, s57, 14
    v_add_u32 v10, s60, v10
    v_xor_b32 v11, 64, v10
    s_lshl_b32 s61, s59, 16
    s_lshl_b32 s62, s56, 15
    s_add_u32 s61, s61, s62
    s_lshl_b32 s62, s57, 13
    s_add_u32 s61, s61, s62
    s_add_u32 s61, s61, {OF_OFF}
    s_add_u32 s62, s61, 4096
    s_barrier
    ''')
    if TAILPROF: a.stamp(5)
    for hd in range(8):
        for c in range(2):
            b = 64 + (hd*2+c)*4
            ad = 10 + c
            a(f'ds_read_b64_tr_b16 {vr(b,2)}, v{ad} offset:{hd*2048}')
            a(f'ds_read_b64_tr_b16 {vr(b+2,2)}, v{ad} offset:{hd*2048+1024}')
        if hd % 2 == 1 and hd < 7: a('s_waitcnt lgkmcnt(4)')
    if FLAGLATE: o_flag(a)
    if not DIRECT: a('s_barrier')
    if not P1PROF: a.stamp(9)
    def oloads():
        for hd in range(8):
            a(f'buffer_load_dwordx4 {vr(16+4*hd,4)}, v2, s[28:31], s{61 + hd//4} offen offset:{(hd%4)*1024}{SC1}')
    oloads()
    if DIRECT:
        for r in range(0, 32, 2): a(f'v_mov_b64 {vr(128+r,2)}, 0')
        a(f's_mov_b32 s64, 0xff\ns_mov_b32 s65, -1\ns_mov_b32 s68, {SPIN_MAX}')
    a(f'''
    s_lshl_b32 s60, s56, 15
    s_add_u32 s60, s60, 65536
    s_lshl_b32 s63, s57, 11
    s_add_u32 s63, s63, s60
    v_add_u32 v13, s63, v2
    s_lshl_b32 s63, s57, 13
    s_add_u32 s63, s63, s60
    v_add_u32 v14, s63, v2
    v_and_b32 v15, 31, v0
    s_lshl_b32 s60, s59, 6
    s_lshl_b32 s63, s56, 5
    s_add_u32 s60, s60, s63
    v_add_u32 v15, s60, v15
    v_lshlrev_b32 v15, 11, v15
    v_lshl_add_u32 v15, v7, 4, v15
    s_lshl_b32 s60, s44, 7
    s_lshl_b32 s63, s57, 5
    s_add_u32 s60, s60, s63
    s_waitcnt lgkmcnt(0)
    ''')
    if not DIRECT:
        for hd in range(8):
            a(f's_waitcnt vmcnt({7-hd})')
            for c in range(2):
                d = vr(128+16*c, 16)
                a(f'v_mfma_f32_32x32x16_bf16 {d}, {vr(64+(hd*2+c)*4,4)}, {vr(16+4*hd,4)}, {"0" if hd == 0 else d}')
    else:
        def take(hd, tag):
            b = 16+4*hd
            a(f"""
            v_max3_u32 v12, v{b}, v{b+1}, v{b+2}
            v_max_u32 v12, v12, v{b+3}
            v_cmp_eq_u32 vcc, s65, v12
            s_cbranch_vccnz {tag}
            s_bitset0_b32 s64, {hd}
            """)
            for c in range(2):
                d = vr(128+16*c, 16)
                a(f'v_mfma_f32_32x32x16_bf16 {d}, {vr(64+(hd*2+c)*4,4)}, {vr(b,4)}, {d}')
            a(f'{tag}:')
        for hd in range(8):
            a(f's_waitcnt vmcnt({7-hd})')
            take(hd, f'K3_A{hd}')
        a(f"""
        K3_RETRY:
        s_cmp_eq_u32 s64, 0
        s_cbranch_scc1 K3_DONE
        s_sub_u32 s68, s68, 1
        s_cselect_b32 s66, 0x12345, -1
        """)
        for hd in range(8):
            a(f's_bitcmp1_b32 s64, {hd}\ns_cbranch_scc0 K3_L{hd}')
            a(f'buffer_load_dwordx4 {vr(16+4*hd,4)}, v2, s[28:31], s{61 + hd//4} offen offset:{(hd%4)*1024}{SC1}\nK3_L{hd}:')
        a('s_mov_b32 s65, s66\ns_waitcnt vmcnt(0)')
        for hd in range(8):
            a(f's_bitcmp1_b32 s64, {hd}\ns_cbranch_scc0 K3_B{hd}')
            take(hd, f'K3_B{hd}')
        a('s_cmp_lg_u32 s65, -1\ns_cbranch_scc0 K3_RETRY\nK3_DONE:')
    if TAILPROF: a.stamp(2)
    a('s_nop 11')
    for g in range(4):
        a(f'ds_write_b128 v13, {vr(128+8*g,4)} offset:{g*8192}')
        a(f'ds_write_b128 v13, {vr(132+8*g,4)} offset:{g*8192+1024}')
    a('s_waitcnt lgkmcnt(0)\ns_barrier')
    if TAILPROF: a.stamp(3)
    for s in range(4):
        a(f'ds_read_b128 {vr(16+8*s,4)}, v14 offset:{s*2048}')
        a(f'ds_read_b128 {vr(20+8*s,4)}, v14 offset:{s*2048+1024}')
    a('s_waitcnt lgkmcnt(4)')
    for r in range(8): a(f'v_add_f32 v{16+r}, v{16+r}, v{24+r}')
    a('s_waitcnt lgkmcnt(0)')
    for r in range(8): a(f'v_add_f32 v{32+r}, v{32+r}, v{40+r}')
    for r in range(8): a(f'v_add_f32 v{16+r}, v{16+r}, v{32+r}')
    for i in range(4): a(f'v_cvt_pk_bf16_f32 v{48+i}, v{16+2*i}, v{17+2*i}')
    a(f'''
    s_nop 1
    v_permlane32_swap_b32 v48, v50
    v_permlane32_swap_b32 v49, v51
    s_nop 1
    buffer_store_dwordx4 v[48:51], v15, s[52:55], s60 offen{OST}
    ''')

def lds_sync(a, tag, off, n):
    a(f"""
    v_mov_b32 v137, 1
    s_mov_b64 exec, 1
    s_waitcnt lgkmcnt(0)
    ds_add_u32 v159, v137 offset:{off}
    s_mov_b64 exec, -1
    {tag}:
    ds_read_b32 v137, v159 offset:{off}
    s_waitcnt lgkmcnt(0)
    v_readfirstlane_b32 s44, v137
    s_cmp_ge_u32 s44, {n}
    s_cbranch_scc0 {tag}
    """)

def get_nonce(a, tag):
    a(f"""
    s_mov_b32 s68, {SPIN_MAX}
    {tag}_NSP:
    global_load_dword v8, v2, s[22:23] sc1
    s_sub_u32 s68, s68, 1
    s_waitcnt vmcnt(0)
    v_readfirstlane_b32 s27, v8
    s_cbranch_scc1 {tag}_NOK
    s_cmp_eq_u32 s27, 0
    s_cbranch_scc1 {tag}_NSP
    {tag}_NOK:
    """)

def fnet1(a):
    RE = [3, 4, 5, 8, 9, 10, 11, 12, 13]
    PK = 140
    a(f"""
    s_and_b32 s42, s33, 1
    s_lshr_b32 s64, s33, 1
    s_and_b32 s43, s2, 7
    s_lshl_b32 s43, s43, 3
    s_lshr_b32 s44, s2, 3
    s_add_u32 s43, s43, s44
    s_sub_u32 s43, s43, 24
    s_lshl_b32 s43, s43, 1
    s_add_u32 s43, s43, s64
    v_and_b32 v6, 31, v0
    v_lshrrev_b32 v7, 5, v0
    v_and_b32 v8, 15, v0
    s_lshl_b32 s45, s43, 3
    s_lshl_b32 s46, s42, 2
    s_add_u32 s45, s45, s46
    s_lshl_b32 s46, s33, 13
    s_lshl_b32 s65, s64, 13
    s_add_u32 s65, s65, 32768
    s_lshl_b32 s64, s64, 2
    v_add_u32 v159, s64, v1
    s_waitcnt lgkmcnt(0)
    """)
    srd(a, 56, 10, 0x200000)
    for p in range(4):
        base = p*2048
        a(f"""
        s_add_u32 m0, s46, {base}
        s_add_u32 s47, s45, {p}
        s_lshl_b32 s44, s47, 10
        buffer_load_dwordx4 v14, s[56:59], s44 offen lds
        s_sub_u32 s44, 2048, s47
        s_cmp_eq_u32 s47, 0
        s_cselect_b32 s44, 1024, s44
        s_add_u32 m0, s46, {base+1024}
        s_lshl_b32 s44, s44, 10
        buffer_load_dwordx4 v14, s[56:59], s44 offen lds
        """)
    a('s_barrier')
    srd(a, 28, 24, WS_USED)
    a(f"""
    s_mov_b32 s60, 0xffff0000
    s_mov_b32 s61, 0xffff0000
    s_mov_b32 s62, 0x80008000
    v_mov_b32 v138, s62
    v_cndmask_b32 v138, 0, v138, s[60:61]
    v_bfe_u32 v3, v0, 2, 2
    v_lshl_add_u32 v3, v7, 3, v3
    v_lshlrev_b32 v3, 6, v3
    v_bfe_u32 v4, v0, 4, 1
    v_lshl_add_u32 v3, v4, 5, v3
    v_and_b32 v5, 3, v0
    v_lshl_add_u32 v3, v5, 3, v3
    v_add_u32 v15, s46, v3
    v_lshlrev_b32 v136, 12, v4
    v_lshl_add_u32 v136, v8, 4, v136
    v_lshl_add_u32 v136, v7, 10, v136
    s_lshl_b32 s44, s42, 3
    s_add_u32 s44, s44, s65
    v_add_u32 v136, s44, v136
    v_lshlrev_b32 v158, 2, v8
    v_lshl_add_u32 v158, v7, 8, v158
    s_or_b32 s63, s43, s42
    v_cvt_f32_u32 v9, v8
    v_cvt_f32_u32 v10, v7
    v_cvt_f32_u32 v11, v6
    v_cvt_f32_u32 v12, v4
    v_mul_f32 v13, {f2u(1/16)}, v9
    v_mul_f32 v3, v9, v10
    v_mul_f32 v3, 0.5, v3
    """)
    for j_ in range(8):
        a(f"v_cos_f32 v{88+j_}, v3\nv_sin_f32 v{96+j_}, -v3\nv_add_f32 v3, v3, v13")
    for q in range(4):
        a(f"v_cvt_pk_bf16_f32 v{16+q}, v{88+2*q}, v{89+2*q}\nv_cvt_pk_bf16_f32 v{20+q}, v{96+2*q}, v{97+2*q}")
    a(f"""
    v_mul_f32 v13, {f2u(1/512)}, v9
    v_mul_f32 v5, 4.0, v13
    v_mul_f32 v3, v10, v5
    v_mul_f32 v12, {f2u(0.25)}, v12
    v_add_f32 v3, v3, v12
    """)
    for r in range(16):
        a(f"v_cos_f32 v{48+r}, v3\nv_sin_f32 v{64+r}, -v3\nv_add_f32 v3, v3, v13")
        if r % 4 == 3: a("v_add_f32 v3, v3, v5")
    a(f"""
    v_mul_f32 v13, {f2u(1/32)}, v11
    v_mul_f32 v5, 4.0, v13
    v_mul_f32 v3, v10, v5
    """)
    for r in range(16):
        a(f"v_cos_f32 v{88+r}, v3\nv_sin_f32 v{104+r}, v3\nv_add_f32 v3, v3, v13")
        if r % 4 == 3: a("v_add_f32 v3, v3, v5")
    for q in range(8):
        a(f"v_cvt_pk_bf16_f32 v{32+q}, v{88+2*q}, v{89+2*q}\nv_cvt_pk_bf16_f32 v{40+q}, v{104+2*q}, v{105+2*q}\nv_xor_b32 v{24+q}, v138, v{16+q}")
    a("s_waitcnt vmcnt(0)")
    for p in range(4):
        ad = 15
        o = p*2048
        a(f"""
        ds_read_b64_tr_b16 v[80:81], v{ad} offset:{o}
        ds_read_b64_tr_b16 v[82:83], v{ad} offset:{o+256}
        ds_read_b64_tr_b16 v[84:85], v{ad} offset:{o+1024}
        ds_read_b64_tr_b16 v[86:87], v{ad} offset:{o+1280}
        """)
        if p == 0:
            a('s_cmp_lg_u32 s63, 0\ns_cbranch_scc1 F1_G0')
            for r in range(8):
                a(f'v_cndmask_b32 v{24+r}, 0, v{16+r}, s[60:61]\nv_cndmask_b32 v{16+r}, v{16+r}, 0, s[60:61]')
            a('F1_G0:')
        a(f"""
        s_waitcnt lgkmcnt(0)
        v_mfma_f32_32x32x16_bf16 v[88:103], v[80:83], v[16:19], 0
        v_mfma_f32_32x32x16_bf16 v[104:119], v[80:83], v[20:23], 0
        v_mfma_f32_32x32x16_bf16 v[88:103], v[84:87], v[24:27], v[88:103]
        v_mfma_f32_32x32x16_bf16 v[104:119], v[84:87], v[28:31], v[104:119]
        s_nop 11
        """)
        for r in range(16):
            a(f"""
            v_mul_f32 v137, v{88+r}, v{64+r}
            v_mul_f32 v{88+r}, v{88+r}, v{48+r}
            v_fma_f32 v{88+r}, -v{104+r}, v{64+r}, v{88+r}
            v_fma_f32 v{104+r}, v{104+r}, v{48+r}, v137
            """)
        for r in range(8):
            a(f'v_cvt_pk_bf16_f32 v{120+r}, v{88+2*r}, v{89+2*r}\nv_cvt_pk_bf16_f32 v{128+r}, v{104+2*r}, v{105+2*r}')
        if p == 0:
            a('s_cmp_lg_u32 s63, 0\ns_cbranch_scc1 F1_G1')
            for r in range(8):
                a(f"""
                v_xor_b32 v137, s62, v{128+r}
                v_cndmask_b32 v{128+r}, v{128+r}, v{120+r}, s[60:61]
                v_cndmask_b32 v{120+r}, v{120+r}, v137, s[60:61]
                v_or_b32 v{16+r}, v{16+r}, v{24+r}
                v_xor_b32 v{24+r}, v138, v{16+r}
                """)
            a('F1_G1:')
        a(f"""
        s_nop 1
        v_mfma_f32_32x32x16_bf16 v[88:103], v[32:35], v[120:123], 0
        v_mfma_f32_32x32x16_bf16 v[88:103], v[36:39], v[124:127], v[88:103]
        v_mfma_f32_32x32x16_bf16 v[88:103], v[40:43], v[128:131], v[88:103]
        v_mfma_f32_32x32x16_bf16 v[88:103], v[44:47], v[132:135], v[88:103]
        s_nop 11
        """)
        if p == 0:
            a(f's_cmp_lg_u32 s63, 0\ns_cbranch_scc1 F1_G2\ns_mov_b32 s44, {AE1K_OFF}\ns_mov_b64 exec, s[60:61]')
            for r in range(8): a(f'buffer_store_dword v{88+r}, v158, s[28:31], s44 offen offset:{(r&3)*64+(r>>2)*512}{SC1}')
            a(f's_mov_b64 exec, 0x10000\nbuffer_store_dword v96, v158, s[28:31], s44 offen offset:1024{SC1}\ns_mov_b64 exec, -1\nF1_G2:')
        for r in range(9):
            if p % 2 == 0: a(f'v_mov_b32 v{RE[r]}, v{88+r}')
            else: a(f'v_cvt_pk_bf16_f32 v{PK+2*r+p//2}, v{RE[r]}, v{88+r}')
    for r in range(8): a(f'ds_write_b64 v136, {vr(PK+2*r,2)} offset:{((r&3)+8*(r>>2))*256}')
    a(f's_mov_b64 exec, 1\nds_write_b64 v136, {vr(PK+16,2)} offset:4096\ns_mov_b64 exec, -1')
    lds_sync(a, 'F1_SB', F1C-SCR, 2)
    a(f"""
    s_lshl_b32 s44, s42, 12
    s_add_u32 s44, s44, s65
    v_add_u32 v3, s44, v14
    """)
    for q in range(4): a(f'ds_read_b128 {vr(16+4*q,4)}, v3 offset:{1024*q}')
    a(f"""
    v_lshlrev_b32 v4, 4, v6
    v_lshl_add_u32 v4, v7, 16, v4
    s_lshl_b32 s44, s43, 9
    s_lshl_b32 s45, s42, 19
    s_add_u32 s44, s44, s45
    s_add_u32 s44, s44, {AEF_OFF}
    """)
    for q in range(4):
        a(f's_waitcnt lgkmcnt({3-q})\nbuffer_store_dwordx4 {vr(16+4*q,4)}, v4, s[28:31], s44 offen{SC1}\ns_add_u32 s44, s44, 0x20000')
    get_nonce(a, 'F1')
    a(f"""
    s_lshl_b32 s44, s43, 6
    s_lshl_b32 s45, s42, 5
    s_add_u32 s44, s44, s45
    s_add_u32 s44, s44, {FLG_F1}
    s_mov_b64 exec, 1
    buffer_store_dword v8, v2, s[28:31], s44 offen sc1
    s_mov_b64 exec, -1
    """)

def background(a):
    ACC, EXT = 128, 144
    a(f"""
    s_setprio 2
    {'s_add_u32 s26, s26, 12' if BGFIRST else ''}
    s_sub_u32 s33, s26, 8
    s_cmp_eq_u32 s42, 3
    s_cbranch_scc1 BG_F1
    """)
    p1_loader(a)
    a('s_mov_b32 s65, 0\ns_branch BG_J1\nBG_F1:')
    bg_init(a)
    fnet1(a)
    a(f"""
    s_lshr_b32 s44, s43, 1
    s_lshr_b32 s45, s44, 1
    s_lshl_b32 s45, s45, 5
    v_add_u32 v6, s45, v6
    s_and_b32 s45, s44, 1
    s_mul_i32 s46, s45, {f2u(0.25)}
    v_mov_b32 v8, s46
    v_cmp_gt_u32 vcc, s45, v6
    v_mov_b32 v9, 1024
    s_lshl_b32 s46, s33, 5
    v_cndmask_b32 v6, v6, v9, vcc
    v_cndmask_b32 v8, v8, 0, vcc
    v_cvt_f32_u32 v6, v6
    v_mul_f32 v6, {f2u(1/2048)}, v6
    v_add_u32 v7, s46, v7
    v_lshlrev_b32 v7, 3, v7
    v_cvt_f32_u32 v7, v7
    v_fma_f32 v8, v6, v7, v8
    v_mul_f32 v7, {f2u(16.0)}, v6
    s_lshl_b32 s64, s44, 16
    s_lshl_b32 s46, s33, 14
    s_add_u32 s64, s64, s46
    s_add_u32 s64, s64, {CSF_OFF}
    s_lshl_b32 s65, s44, 6
    s_lshl_b32 s46, s33, 4
    s_add_u32 s65, s65, s46
    s_add_u32 s65, s65, {FLG_CS}
    s_mov_b32 s66, 1
    """)
    for ks in range(16):
        b = 64 + 4*ks
        a("v_fract_f32 v9, v8\nv_add_f32 v8, v8, v7")
        for j in range(8):
            a(f"v_cos_f32 v{16+j}, v9")
            if j < 7: a("v_add_f32 v9, v9, v6")
        a("s_nop 0")
        for q in range(4): a(f"v_cvt_pk_bf16_f32 v{b+q}, v{16+2*q}, v{17+2*q}")
    a('BG_J1:')
    srd(a, 28, 24, WS_USED)
    get_nonce(a, 'BG')
    a(f"""
    ds_write_b32 v1, v8 offset:16
    s_and_b32 s40, s2, 7
    s_lshr_b32 s41, s2, 3
    s_lshl_b32 s40, s40, 2
    s_lshr_b32 s45, s41, 3
    s_add_u32 s40, s40, s45
    s_and_b32 s41, s41, 7
    s_and_b32 s34, s33, 1
    s_lshr_b32 s50, s33, 1
    v_and_b32 v9, 15, v0
    v_lshlrev_b32 v9, 6, v9
    s_lshl_b32 s45, s34, 10
    s_add_u32 s45, s45, 1024
    v_add_u32 v9, s45, v9
    s_lshl_b32 s45, s41, 1
    s_add_u32 s45, s45, s50
    s_lshl_b32 s45, s45, 6
    v_mov_b32 v10, s45
    v_cmp_eq_u32 vcc, 16, v0
    s_lshr_b32 s45, s40, 3
    s_lshl_b32 s45, s45, 12
    s_add_u32 s45, s45, {FLG_P1}
    v_cndmask_b32 v9, v9, v10, vcc
    s_lshl_b32 s34, s34, 10
    s_lshl_b32 s35, s40, 17
    s_add_u32 s35, s35, s34
    s_add_u32 s35, s35, {KV_OFF}
    v_mul_u32_u24 v11, {TS}, v0
    v_mov_b32 v40, 0x3f803f80
    v_mov_b32 v41, v40
    v_mov_b32 v42, v40
    v_mov_b32 v43, v40
    s_lshr_b32 s48, s34, 8
    v_add_u32 v20, s48, v1
    s_lshl_b32 s36, s40, 6
    s_lshl_b32 s37, s41, 3
    s_add_u32 s36, s36, s37
    s_lshl_b32 s37, s33, 1
    s_add_u32 s36, s36, s37
    s_lshl_b32 s36, s36, 10
    s_lshl_b32 s37, s33, 11
    s_add_u32 s37, s37, {QST}
    s_lshl_b32 s48, s50, {GSH}
    s_lshl_b32 s53, 1, s48
    s_or_b32 s53, s53, 0x10000
    s_waitcnt lgkmcnt(0)
    """)
    a.stamp(1)
    a('s_barrier')
    a.stamp(2)
    a(f"""
    s_cmp_lg_u32 s66, 0
    s_cbranch_scc1 BG_NOFLAG
    s_mov_b64 exec, 1
    buffer_store_dword v8, v2, s[28:31], s67 offen sc1
    s_mov_b64 exec, -1
    BG_NOFLAG:
    ds_write_b128 v11, v[40:43] offset:2048
    s_mov_b32 s68, {SPIN_MAX}
    BG1_SP:
    buffer_load_dword v10, v9, s[28:31], s45 offen sc1
    s_sub_u32 s68, s68, 1
    s_waitcnt vmcnt(0)
    v_cmp_eq_u32 vcc, s27, v10
    s_cbranch_scc1 BG1_OK
    s_and_b32 s46, vcc_lo, s53
    s_cmp_eq_u32 s46, s53
    s_cbranch_scc0 BG1_SP
    BG1_OK:
    s_mov_b32 s46, vcc_lo
    """)
    a.stamp(3)
    def grp_issue():
        a(f"""
        s_mul_i32 s52, s50, {4*TS}
        s_add_u32 m0, s52, s34
        s_lshl_b32 s51, s48, 13
        s_add_u32 s51, s51, s35
        """)
        for t in range(4):
            a(f'buffer_load_dwordx4 v14, s[28:31], s51 offen{SC1} lds')
            if t < 3: a(f's_add_u32 m0, m0, {TS}\ns_add_u32 s51, s51, 2048')
    grp_issue()
    a(f"""
    s_mov_b32 m0, s37
    s_mov_b32 s49, 0
    buffer_load_dwordx4 v14, s[28:31], s36 offen{SC1} lds
    buffer_load_dwordx4 v14, s[28:31], s36 offen offset:1024{SC1} lds
    s_waitcnt vmcnt(0) lgkmcnt(0)
    s_barrier
    """)
    def publish():
        a('v_mov_b32 v21, s49\ns_mov_b64 exec, 1\nds_or_b32 v20, v21\ns_mov_b64 exec, -1')
    a(f"""
    BGL_LOOP:
    s_add_u32 s50, s50, 2
    s_and_b32 s48, s50, {(16 >> GSH) - 1}
    s_lshl_b32 s48, s48, {GSH}
    s_lshr_b32 s47, s50, {4 - GSH}
    s_add_u32 s48, s48, s47
    s_bitcmp1_b32 s46, s48
    s_cbranch_scc1 BGL_RDY
    s_waitcnt vmcnt(0)
    """)
    publish()
    a(f"""
    s_mov_b32 s68, {SPIN_MAX}
    BGL_SP:
    buffer_load_dword v10, v9, s[28:31], s45 offen sc1
    s_sub_u32 s68, s68, 1
    s_waitcnt vmcnt(0)
    v_cmp_eq_u32 vcc, s27, v10
    s_cbranch_scc1 BGL_RDY
    s_mov_b32 s46, vcc_lo
    s_bitcmp1_b32 s46, s48
    s_cbranch_scc0 BGL_SP
    BGL_RDY:
    """)
    grp_issue()
    a('s_waitcnt vmcnt(4)')
    publish()
    a(f"""
    s_cmp_eq_u32 s65, 0
    s_cbranch_scc1 BGL_NOTAB
    s_lshr_b32 s47, s50, 1
    s_cmp_lg_u32 s47, {TPOS // 2}
    s_cbranch_scc1 BGL_NOTAB
    """)
    for ks in range(16):
        a(f"buffer_store_dwordx4 {vr(64+4*ks,4)}, v14, s[28:31], s64 offen offset:{1024*(ks%4)}{SC1}")
        if ks % 4 == 3 and ks < 15: a("s_add_u32 s64, s64, 4096")
    a('BGL_NOTAB:')
    a(f"""
    s_lshl_b32 s49, 1, s50
    s_cmp_lt_u32 s50, 14
    s_cbranch_scc1 BGL_LOOP
    s_waitcnt vmcnt(0)
    """)
    publish()
    a(f"""
    s_cmp_eq_u32 s65, 0
    s_cbranch_scc1 BGL_NOFLG
    s_mov_b64 exec, 1
    buffer_store_dword v8, v2, s[28:31], s65 offen sc1
    s_mov_b64 exec, -1
    BGL_NOFLG:
    """)
    a(f'''
    s_lshr_b32 s34, s33, 1
    s_and_b32 s35, s33, 1
    s_cmp_eq_u32 s34, 0
    s_mov_b32 s37, {BOF_OFF}
    s_cselect_b32 s36, {AEF_OFF}, s37
    s_cselect_b32 s56, s41, s40
    s_xor_b32 s37, s36, {AEF_OFF ^ BOF_OFF}
    ''')
    srd(a, 52, 20, 0x400000)
    a(f'''
    v_and_b32 v6, 31, v0
    v_lshrrev_b32 v7, 5, v0
    s_lshl_b32 s47, s40, 1
    s_add_u32 s47, s47, s34
    s_lshl_b32 s48, s47, 16
    s_lshl_b32 s44, s35, 15
    s_add_u32 s48, s48, s44
    s_add_u32 s48, s48, {CSF_OFF}
    s_lshl_b32 s47, s47, 6
    s_lshl_b32 s49, s35, 5
    s_add_u32 s47, s47, s49
    s_add_u32 s47, s47, {FLG_CS}
    v_and_b32 v15, 1, v0
    v_lshlrev_b32 v15, 4, v15
    s_lshl_b32 s44, s41, 16
    s_lshl_b32 s45, s35, 15
    s_add_u32 s44, s44, s45
    v_add_u32 v12, s44, v14
    v_mov_b32 v10, 1
    v_mov_b32 v11, 0
    s_lshl_b32 s45, s35, 12
    s_add_u32 s45, s45, {FLG_F1}
    s_add_u32 s46, s45, 32
    v_lshlrev_b32 v9, 6, v0
    ''')
    for r in range(0, 16, 2): a(f'v_mov_b64 {vr(EXT+r,2)}, 0')
    a.stamp(4)
    if os.environ.get('NOFNET'): a('s_branch K_END')
    if DIRECT:
        a(f"""
        s_lshl_b32 s57, s41, 2
        s_add_u32 s57, s57, s33
        s_lshl_b32 s58, s57, 16
        s_lshl_b32 s59, s40, 10
        s_add_u32 s58, s58, s59
        s_add_u32 s58, s58, {OF_OFF}
        s_add_u32 s59, s58, 0x8000
        v_mov_b64 v[16:17], -1
        v_mov_b64 v[18:19], -1
        s_lshl_b32 s57, s57, 5
        s_add_u32 s57, s57, s40
        buffer_store_dwordx4 v[16:19], v14, s[28:31], s58 offen sc1
        buffer_store_dwordx4 v[16:19], v14, s[28:31], s59 offen sc1
        s_lshl_b32 s57, s57, 4
        s_add_u32 s57, s57, {FLG_PZ}
        """)
    poll(a, 'BG2', 9, 13, 's45')
    if DIRECT:
        a('v_mov_b32 v13, s27\ns_mov_b64 exec, 1\nbuffer_store_dword v13, v11, s[28:31], s57 offen sc1\ns_mov_b64 exec, -1')
    poll(a, 'BG3', 9, 13, 's46')
    poll(a, 'BG4', 15, 13, 's47')
    def fl(ks, ext):
        NS = 8 if ext else 12
        b = 16 + (12 if ext else 8)*(ks % NS)
        o = 1024*(ks % 4)
        a(f"""
        buffer_load_dwordx4 {vr(b,4)}, v14, s[28:31], s48 offen offset:{o}{SC1}
        buffer_load_dwordx4 {vr(b+4,4)}, v12, s[28:31], s36 offen offset:{o}{SC1}
        """)
        if ext: a(f'buffer_load_dwordx4 {vr(b+8,4)}, v12, s[28:31], s37 offen offset:{o}{SC1}')
        if ks % 4 == 3: a('s_add_u32 s48, s48, 4096\ns_add_u32 s36, s36, 4096' + ('\ns_add_u32 s37, s37, 4096' if ext else ''))
    def floop(ext):
        per = 3 if ext else 2
        NS = 8 if ext else 12
        for ks in range(NS): fl(ks, ext)
        for ks in range(32):
            b = 16 + (12 if ext else 8)*(ks % NS)
            rem = min(32, ks+NS) - ks - 1
            a(f's_waitcnt vmcnt({per*rem})')
            a(f'v_mfma_f32_32x32x16_bf16 {vr(ACC,16)}, {vr(b,4)}, {vr(b+4,4)}, {"0" if ks == 0 else vr(ACC,16)}')
            if ext: a(f'v_mfma_f32_32x32x16_bf16 {vr(EXT,16)}, {vr(b,4)}, {vr(b+8,4)}, {vr(EXT,16)}')
            if ks+NS < 32: fl(ks+NS, ext)
    a('s_cmp_eq_u32 s56, 0\ns_cbranch_scc1 BG_FEXT')
    floop(False)
    a('s_branch BG_FDONE\nBG_FEXT:')
    floop(True)
    a('BG_FDONE:')
    a.stamp(5)
    a(f'''
    s_lshl_b32 s44, s41, 7
    v_lshl_add_u32 v12, v6, 2, s44
    s_mov_b32 s44, {AE1K_OFF}
    v_mov_b32 v13, 1024
    s_mov_b32 s69, s44
    s_mul_i32 s44, s33, 3072
    s_add_u32 s44, s44, {FX}
    s_lshl_b32 s45, s35, 7
    s_lshl_b32 s46, s34, 8
    s_add_u32 s45, s45, s46
    s_add_u32 s45, s45, {FE}
    v_lshlrev_b32 v3, 6, v7
    v_add_u32 v3, s45, v3
    v_lshl_add_u32 v4, v6, 2, s45
    s_nop 3
    ''')
    for g in range(4):
        a(f'''
        s_sub_u32 s46, {g+3}, s33
        s_and_b32 s46, s46, 3
        s_cmp_eq_u32 s46, 3
        s_cselect_b64 exec, 0, -1
        s_lshl_b32 s46, s46, 10
        s_add_u32 s46, s46, s44
        v_add_u32 v2, s46, v14
        ds_write_b128 v2, {vr(ACC+4*g,4)}
        ''')
    a(f'''
    s_mov_b64 exec, -1
    s_cmp_eq_u32 s34, 0
    s_cbranch_scc0 BG_XQ
    s_mov_b32 exec_lo, 1
    s_mov_b32 exec_hi, 1
    ''')
    for i in range(4): a(f'ds_write_b128 v3, {vr(EXT+4*i,4)} offset:{16*i}')
    a(f'''
    s_branch BG_XD
    BG_XQ:
    s_mov_b32 exec_hi, 0
    ds_write_b32 v4, v{EXT}
    BG_XD:
    s_mov_b64 exec, 1
    s_waitcnt lgkmcnt(0)
    ds_add_u32 v1, v10 offset:12
    s_mov_b64 exec, -1
    s_cmp_lt_u32 s33, 2
    s_cbranch_scc1 BG_M01
    s_cmp_eq_u32 s33, 2
    s_cbranch_scc1 BG_M2
    ''')
    def mv(g):
        for i in range(4): a(f'v_mov_b32 v{20+i}, v{ACC+4*g+i}')
    mv(3); a('s_branch BG_MD\nBG_M2:'); mv(2); a('s_branch BG_MD\nBG_M01:\ns_cmp_eq_u32 s33, 0\ns_cbranch_scc1 BG_M0'); mv(1); a('s_branch BG_MD\nBG_M0:'); mv(0)
    a('BG_MD:')
    for j in range(1, 4):
        a(f'''
        s_add_u32 s46, s33, {j}
        s_and_b32 s46, s46, 3
        s_mul_i32 s46, s46, 3072
        s_add_u32 s46, s46, {FX + (3-j)*1024}
        v_add_u32 v{40+j}, s46, v14
        ''')
    a(f'''
    s_lshl_b32 s46, s33, 4
    s_add_u32 s46, s46, {FE}
    v_lshlrev_b32 v3, 6, v7
    v_add_u32 v3, s46, v3
    v_lshlrev_b32 v4, 2, v6
    v_add_u32 v4, {FE+256}, v4
    BG_FSPIN:
    ds_read_b32 v5, v1 offset:12
    s_waitcnt lgkmcnt(0)
    v_readfirstlane_b32 s46, v5
    s_cmp_ge_u32 s46, 4
    s_cbranch_scc0 BG_FSPIN
    buffer_load_dword v16, v12, s[28:31], s69 offen{SC1}
    buffer_load_dword v17, v13, s[28:31], s69 offen{SC1}
    ds_read_b128 v[24:27], v41
    ds_read_b128 v[28:31], v42
    ds_read_b128 v[32:35], v43
    ds_read_b128 v[44:47], v3
    ds_read_b128 v[48:51], v3 offset:128
    ds_read_b32 v52, v4
    ds_read_b32 v53, v4 offset:128
    ''')
    bg_tail_a(a)
    a(f'''
    s_and_b32 s46, s33, 1
    s_cmp_eq_u32 s46, 0
    s_cselect_b64 s[60:61], -1, 0
    s_cmp_eq_u32 s34, 0
    s_cselect_b64 s[62:63], -1, 0
    s_cmp_eq_u32 s41, 0
    s_cselect_b32 s64, 1, 0
    s_mov_b32 s65, s64
    s_or_b32 s46, s40, s33
    s_cmp_eq_u32 s46, 0
    s_cselect_b32 s66, -1, 0
    s_mov_b32 s67, 0
    s_lshl_b32 s46, s41, 5
    v_add_u32 v2, s46, v6
    v_sub_u32 v3, 512, v2
    v_mov_b32 v4, 256
    v_cndmask_b32 v3, v3, v4, s[64:65]
    v_lshlrev_b32 v2, 1, v2
    v_lshlrev_b32 v3, 1, v3
    v_add_u32 v2, 1024, v2
    v_add_u32 v3, 1024, v3
    s_lshl_b32 s46, s40, 5
    s_lshl_b32 s47, s33, 3
    s_add_u32 s46, s46, s47
    v_lshl_add_u32 v4, v7, 2, s46
    v_sub_u32 v5, {2048-3}, v4
    v_lshl_add_u32 v8, v4, 11, v2
    v_lshl_add_u32 v9, v4, 11, v3
    v_lshl_add_u32 v10, v5, 11, v2
    v_lshl_add_u32 v11, v5, 11, v3
    v_mov_b32 v4, {1024-3}
    v_cndmask_b32 v5, v5, v4, s[66:67]
    v_lshl_add_u32 v12, v5, 11, v2
    v_lshl_add_u32 v13, v5, 11, v3
    s_waitcnt vmcnt(0) lgkmcnt(0)
    ''')
    for i in range(4):
        a(f'''
        v_cndmask_b32 v36, v{32+i}, v{24+i}, s[60:61]
        v_cndmask_b32 v37, v{24+i}, v{32+i}, s[60:61]
        v_add_f32 v36, v36, v{20+i}
        v_add_f32 v37, v37, v{28+i}
        v_cndmask_b32 v{20+i}, v37, v36, s[62:63]
        v_cndmask_b32 v{24+i}, v36, v37, s[62:63]
        v_add_f32 v{44+i}, v{44+i}, v{48+i}
        ''')
        op = 'v_add_f32' if i % 2 == 0 else 'v_sub_f32'
        a(f'{op} v{20+i}, v{20+i}, v16\n{op} v{44+i}, v{44+i}, v17')
    a(f'''
    v_add_f32 v52, v52, v53
    v_add_f32 v52, v52, v16
    v_add_f32 v53, v24, v17
    v_cndmask_b32 v24, v24, 0, s[66:67]
    v_cndmask_b32 v53, v52, v53, s[64:65]
    ''')
    def fstores(i):
        t0 = 56 + 8*i
        a(f"""
        s_mov_b32 s46, {i*2048}
        s_mov_b32 s47, {(3-i)*2048}
        buffer_store_short v{t0+4}, v8, s[52:55], s46 offen
        buffer_store_short_d16_hi v{t0+4}, v{12 if i == 0 else 10}, s[52:55], s47 offen
        buffer_store_short v{t0+5}, v9, s[52:55], s46 offen
        buffer_store_short_d16_hi v{t0+5}, v{13 if i == 0 else 11}, s[52:55], s47 offen
        """)
    for i in range(4):
        t0 = 56 + 8*i
        a(f'''
        v_cndmask_b32 v{24+i}, v{24+i}, 0, s[64:65]
        v_sub_f32 v{t0}, v{20+i}, v{24+i}
        v_add_f32 v{t0+1}, v{20+i}, v{24+i}
        v_cndmask_b32 v{t0+2}, v{t0+1}, v{44+i}, s[64:65]
        v_cndmask_b32 v{t0+3}, v{t0}, v{44+i}, s[64:65]
        ''')
        if i == 0:
            a(f'''
            v_cndmask_b32 v{t0+1}, v{t0+1}, v52, s[66:67]
            v_cndmask_b32 v{t0+3}, v{t0+3}, v53, s[66:67]
            ''')
        a(f"""
        v_cvt_pk_bf16_f32 v{t0+4}, v{t0}, v{t0+1}
        v_cvt_pk_bf16_f32 v{t0+5}, v{t0+2}, v{t0+3}
        """)
        if LATEF < 2: fstores(i)
    if LATEF == 2:
        a('s_barrier')
        for i in range(4): fstores(i)

def wo_stage(a):
    srd(a, 48, 8, 0x80000)
    a(f"""
    v_lshrrev_b32 v90, 3, v0
    v_and_b32 v91, 7, v0
    v_and_b32 v92, 2, v90
    v_lshlrev_b32 v92, 1, v92
    v_xor_b32 v91, v91, v92
    v_lshlrev_b32 v91, 4, v91
    v_lshl_add_u32 v90, v90, 10, v91
    s_and_b32 s44, s40, 7
    s_lshl_b32 s45, s44, 7
    s_lshl_b32 s69, s33, 17
    s_add_u32 s45, s45, s69
    """)
    for i in range(16):
        a(f'buffer_load_dwordx4 {vr(96+4*i,4)}, v90, s[48:51], s45 offen\ns_add_u32 s45, s45, 8192')
    a(f"""
    s_lshl_b32 s69, s33, 14
    v_add_u32 v91, s69, v14
    s_lshr_b32 s69, s40, 3
    s_lshl_b32 s47, s41, 2
    s_add_u32 s69, s69, s47
    s_lshl_b32 s69, s69, {OFS+6}
    s_add_u32 s69, s69, {FLG_O}
    v_lshlrev_b32 v92, {OFS}, v0
    s_waitcnt vmcnt(0) lgkmcnt(0)
    s_barrier
    ds_read_b32 v93, v1 offset:{BADF-SCR}
    s_waitcnt lgkmcnt(0)
    v_readfirstlane_b32 s47, v93
    s_cmp_eq_u32 s47, 0
    s_cbranch_scc1 BG_T1
    s_barrier
    s_barrier
    BG_T1:
    """)
    for i in range(16): a(f'ds_write_b128 v91, {vr(96+4*i,4)} offset:{1024*i}')
    a('s_waitcnt lgkmcnt(0)\ns_barrier')

def o_poll(a):
    a('s_cmp_lg_u32 s33, 0\ns_cbranch_scc1 K3_OK')
    poll(a, 'K3', 92, 93, 's69')
    a('s_barrier')

def bg_tail_a(a):
    if DIRECT:
        a(f"""
        s_lshr_b32 s46, s40, 3
        s_lshl_b32 s47, s41, 2
        s_add_u32 s46, s46, s47
        s_lshl_b32 s46, s46, 9
        s_add_u32 s46, s46, {FLG_PZ}
        v_lshlrev_b32 v2, 4, v6
        """)
        poll(a, 'BG5', 2, 3, 's46')
    if LATEF: wo_stage(a)
    if LATEF == 2: a('s_setprio 0')

def bg_tail(a):
    if not LATEF: wo_stage(a)
    if not DIRECT: o_poll(a)
    if BGBAR: a('s_barrier')

def fused():
    a = Asm()
    a('s_cmp_ge_u32 s2, 256\ns_cbranch_scc1 K_END')
    a.stamp(0)
    a(f'''
    s_load_dwordx8 s[4:11], s[0:1], 0
    s_load_dwordx4 s[20:23], s[0:1], 64
    s_load_dwordx2 s[24:25], s[0:1], 80
    v_lshrrev_b32 v1, 6, v0
    v_and_b32 v0, 63, v0
    s_and_b32 s44, s2, 7
    v_readfirstlane_b32 s26, v1
    s_lshr_b32 s45, s2, 3
    s_and_b32 s46, s45, 3
    s_lshl_b32 s40, s44, 1
    s_and_b32 s40, s40, 12
    s_add_u32 s40, s40, s46
    s_lshr_b32 s47, s45, 2
    s_lshr_b32 s42, s47, 1
    s_and_b32 s41, s44, 1
    s_lshl_b32 s41, s41, 1
    s_and_b32 s48, s47, 1
    s_add_u32 s41, s41, s48
    s_lshl_b32 s43, s46, 1
    s_add_u32 s43, s43, s47
    s_and_b32 s43, s43, {ROT}
    {'s_sub_u32 s26, s26, 4' if BGFIRST else 's_cmp_ge_u32 s26, 8'}
    s_cbranch_scc1 K_BG
    s_getpc_b64 s[44:45]
    PC_HERE:
    s_sub_u32 s44, s44, PC_HERE-{NAME}
    s_subb_u32 s45, s45, 0
    v_lshlrev_b32 v6, 7, v0
    s_lshl_b32 s47, s26, 13
    v_add_u32 v6, s47, v6
    v_min_u32 v6, K_END-{NAME}, v6
    global_load_dword v143, v6, s[44:45]
    s_branch K_MAIN
    K_BG:
    ''')
    background(a)
    a.stamp(6)
    bg_tail(a)
    a.flush(0, 26, grp=1)
    a('s_endpgm')
    a('.p2align 6')
    a('K_MAIN:')
    phase1(a)
    attention(a)
    oproj(a)
    if TAILPROF: a.stamp(4)
    if PROF: a('s_waitcnt vmcnt(0)')
    a.flush(0, 26)
    a('K_END:')
    a('s_endpgm')
    return header(NAME) + a.text(), kd(NAME, 160, 100)

if __name__ == '__main__':
    import sys
    c, d = fused()
    doc = """; One persistent launch, 256 workgroups (one per CU) of 8 attention waves + 4 helper waves.
"""
    out = '; @launch grid=(256,1,1) block=(768,1,1) lds=163840\n' + doc + '.amdgcn_target "amdgcn-amd-amdhsa--gfx950"\n.text\n' + c + '.section .rodata,"a"\n' + d
    open(sys.argv[1], 'w').write(out)
```

```python
from common import *
NAME = 'concat_heads__mha_block__spectral_fnet__prompt_kernel'
FLG_P1 = 0x710000
FLG_F1 = 0x720000
FLG_CS = 0x728000
FLG_PZ = 0x738000
FLG_O  = 0x730000
TS = 2064
SCR = 64*TS
MSK, BADF, CNT_F, NONCE, DCNT, QCNT, F1C = SCR, SCR+8, SCR+12, SCR+16, SCR+20, SCR+32, SCR+48
CMB = SCR+256
QST = CMB
FX = CMB+18432
FE = FX+12288
BIAS = float(os.environ.get('BIAS', '100'))
SPIN_MAX = 1 << 16
KA, VA, IDX, VB = 1, 2, 3, 47
KA0, VA0, VB0, QC, ONE = 36, 16, 17, 18, 19
QA, QB = 4, 8
KF = 12
VF = [[20, 24], [28, 32]]
SA, SB, OA, OB, MA, MB = 48, 64, 80, 96, 112, 128
PKD = 144
SC1 = ' sc1'
OST = os.environ.get('OST', '')
FULLROW = int(os.environ.get('FULLROW', '1'))
OFS = 3
ROT = int(os.environ.get('ROT', '6'))
DEFER = int(os.environ.get('DEFER', '3'))
GSH = 1 if DEFER == 1 else 2
P1PROF = int(os.environ.get('P1PROF', '0'))
TPOS = int(os.environ.get('TPOS', '12'))
LATEF = int(os.environ.get('LATEF', '2'))
TAILPROF = int(os.environ.get('TAILPROF', '0'))
BGFIRST = int(os.environ.get('BGFIRST', '0'))
LALIGN = int(os.environ.get('LALIGN', '-1'))
FLAGLATE = int(os.environ.get('FLAGLATE', '0'))
DIRECT = int(os.environ.get('DIRECT', '1'))
BGBAR = int(os.environ.get('BGBAR', '0'))
KORD = [int(x) for x in os.environ.get('KORD', '01234567')]
MAINPRIO = int(os.environ.get('MAINPRIO', '1'))
assert FE + 512 <= 163840

def srd(a, d, lo, size):
    a(f's_mov_b32 s{d}, s{lo}\ns_mov_b32 s{d+1}, s{lo+1}\ns_mov_b32 s{d+2}, {size}\ns_mov_b32 s{d+3}, 0x20000')

def poll(a, tag, vaddr, vt, soff, mask=None):
    if mask: a(f's_mov_b64 exec, {mask}')
    a(f'''
    s_mov_b32 s68, {SPIN_MAX}
    {tag}_SP:
    buffer_load_dword v{vt}, v{vaddr}, s[28:31], {soff} offen sc1
    s_sub_u32 s68, s68, 1
    s_waitcnt vmcnt(0)
    v_cmp_ne_u32 vcc, s27, v{vt}
    s_cbranch_scc1 {tag}_OK
    s_cbranch_vccnz {tag}_SP
    {tag}_OK:
    ''')
    if mask: a('s_mov_b64 exec, -1')


def bg_init(a):
    a(f"""
    v_lshlrev_b32 v14, 4, v0
    v_mov_b32 v1, {SCR}
    v_mov_b32 v2, 0
    v_cmp_gt_u32 vcc, 2, v0
    v_lshrrev_b32 v4, 2, v0
    v_lshl_add_u32 v5, v0, 2, v1
    v_cndmask_b32 v3, 0, 3, vcc
    v_cmp_eq_u32 vcc, 2, v4
    s_lshl_b32 s67, s41, 2
    s_add_u32 s67, s67, s42
    v_cndmask_b32 v3, v3, 2, vcc
    s_mov_b64 exec, 0xffff
    ds_write_b32 v5, v3
    s_mov_b64 exec, -1
    s_lshl_b32 s67, s67, 4
    s_add_u32 s67, s67, s40
    s_lshl_b32 s67, s67, 6
    s_add_u32 s67, s67, {FLG_P1}
    s_and_b32 s66, s40, {DEFER}
    s_cmp_eq_u32 s42, 0
    s_cselect_b32 s66, 0, s66
    s_or_b32 s66, s66, s33
    """)

def p1_loader(a):
    a(f"""
    v_lshrrev_b32 v6, 3, v0
    v_and_b32 v8, 7, v0
    v_lshrrev_b32 v9, 4, v0
    v_xor_b32 v8, v8, v9
    v_lshlrev_b32 v8, 4, v8
    v_lshl_add_u32 v16, v6, 10, v8
    v_xor_b32 v17, 64, v16
    v_add_u32 v17, 0x2000, v17
    v_add_u32 v18, 0x4000, v16
    v_add_u32 v19, 0x4000, v17
    s_lshl_b32 s44, s40, 17
    s_lshl_b32 s45, s33, 15
    s_add_u32 s44, s44, s45
    v_mul_u32_u24 v7, 3072, v9
    v_and_b32 v8, 15, v0
    v_lshlrev_b32 v9, 2, v9
    v_xor_b32 v8, v8, v9
    v_lshl_add_u32 v20, v8, 4, v7
    v_add_u32 v21, {4*3072}, v20
    v_add_u32 v22, {8*3072}, v20
    v_add_u32 v23, {12*3072}, v20
    s_lshl_b32 s47, s42, 10
    s_lshl_b32 s48, s41, 8
    s_add_u32 s47, s47, s48
    s_mul_i32 s48, s33, {16*3072}
    s_add_u32 s47, s47, s48
    s_lshl_b32 s51, s33, 12
    s_waitcnt lgkmcnt(0)
    """)
    srd(a, 56, 4, 0x200000); srd(a, 36, 6, 0x180000)
    def issue(c):
        slot = c % 4
        a(f"""
        s_add_u32 s54, s43, {KORD[c]}
        s_and_b32 s54, s54, 7
        s_lshl_b32 s55, s54, 7
        s_add_u32 s55, s55, s44
        s_mul_i32 s54, s54, {64*3072}
        s_add_u32 m0, s51, {slot*32768}
        s_add_u32 s54, s54, s47
        """)
        for j in range(4):
            a(f"""
            buffer_load_dwordx4 v{16+j}, s[56:59], s55 offen lds
            s_add_u32 m0, s51, {slot*32768+16384+j*1024}
            s_nop 0
            buffer_load_dwordx4 v{20+j}, s[36:39], s54 offen lds
            """)
            if j < 3: a(f"s_add_u32 m0, s51, {slot*32768+(j+1)*1024}\ns_nop 0")
    a.stamp(7)
    issue(0); issue(1)
    bg_init(a)
    a(f"""
    s_add_u32 s48, s2, s33
    s_cmp_lg_u32 s48, 0
    s_cbranch_scc1 BG_NONONCE
    s_memrealtime s[60:61]
    s_waitcnt lgkmcnt(0)
    s_or_b32 s60, s60, 1
    v_mov_b32 v8, s60
    s_mov_b64 exec, 1
    global_store_dword v2, v8, s[22:23] sc1
    s_mov_b64 exec, -1
    BG_NONONCE:
    """)
    for c in range(8):
        a(f"s_waitcnt vmcnt({8 if c < 7 else 0}){' lgkmcnt(0)' if c == 0 else ''}\ns_barrier")
        if c + 2 < 8: issue(c+2)

def phase1(a):
    a(f"""
    s_mov_b32 s66, 0
    v_mov_b32 v142, 0
    s_cmp_eq_u32 s42, 3
    s_cbranch_scc0 K1_GEMM
    s_waitcnt lgkmcnt(0)
    """)
    srd(a, 28, 24, WS_USED)
    a("s_barrier")
    a("s_branch K1_DONE\nK1_GEMM:")
    a(f'''
    s_and_b32 s57, s26, 1
    s_lshr_b32 s58, s26, 1
    v_and_b32 v6, 31, v0
    v_lshrrev_b32 v7, 5, v0
    s_lshl_b32 s49, s57, 5
    v_add_u32 v8, s49, v6
    v_bfe_u32 v9, v8, 1, 3
    v_xor_b32 v9, v9, v7
    ''')
    for ks in range(4):
        a(f'''
        v_xor_b32 v10, {2*ks}, v9
        v_lshlrev_b32 v10, 4, v10
        v_lshl_add_u32 v{96+ks}, v8, 7, v10
        v_add_u32 v{100+ks}, 0x10000, v{96+ks}
        ''')
    a('''
    v_bfe_u32 v8, v0, 2, 2
    v_lshl_add_u32 v9, v7, 3, v8
    v_bfe_u32 v10, v0, 4, 1
    v_lshlrev_b32 v10, 1, v10
    v_bfe_u32 v11, v0, 1, 1
    v_add_u32 v10, v10, v11
    s_lshl_b32 s49, s58, 2
    v_add_u32 v10, s49, v10
    v_lshlrev_b32 v8, 2, v8
    v_xor_b32 v10, v10, v8
    v_lshlrev_b32 v10, 4, v10
    v_lshl_add_u32 v10, v9, 8, v10
    v_and_b32 v11, 1, v0
    v_lshl_add_u32 v104, v11, 3, v10
    v_add_u32 v105, 0x10000, v104
    s_waitcnt lgkmcnt(0)
    s_mov_b32 s28, s24
    s_mov_b32 s29, s25
    s_mov_b32 s30, 14680064
    s_mov_b32 s31, 0x20000
    ''')
    a(f"""
    s_lshl_b32 s60, s41, 3
    s_lshl_b32 s61, s58, 1
    s_add_u32 s60, s60, s61
    s_lshl_b32 s60, s60, 6
    s_lshl_b32 s61, s40, 2
    s_add_u32 s61, s61, s57
    s_add_u32 s60, s60, s61
    s_lshl_b32 s67, s41, 2
    s_add_u32 s67, s67, s42
    s_lshl_b32 s67, s67, 4
    s_add_u32 s67, s67, s40
    s_lshl_b32 s67, s67, 6
    s_add_u32 s67, s67, {FLG_P1}
    s_and_b32 s66, s40, {DEFER}
    s_cmp_eq_u32 s42, 0
    s_cselect_b32 s66, 0, s66
    """)
    a('''
    s_cmp_ge_u32 s42, 2
    s_cbranch_scc1 K1_LOOP_XW
    ''')
    def reads(slot, ks, fs):
        b = 16 + 12*fs
        hi = slot >= 2
        so = (slot & 1)*32768
        xa = (100 if hi else 96) + ks
        wa = 105 if hi else 104
        a(f'''
        ds_read_b128 {vr(b,4)}, v{xa} offset:{so}
        ds_read_b64_tr_b16 {vr(b+8,2)}, v{wa} offset:{so+16384+ks*4096}
        ds_read_b64_tr_b16 {vr(b+10,2)}, v{wa} offset:{so+16384+ks*4096+1024}
        ds_read_b128 {vr(b+4,4)}, v{xa} offset:{so+8192}
        ''')
    def mfmas(wx, fs, first):
        b = 16 + 12*fs
        for T in range(2):
            d = vr(64+16*T, 16); c = '0' if first else d
            x = vr(b+4*T, 4); w = vr(b+8, 4)
            a(f'v_mfma_f32_32x32x16_bf16 {d}, {w if wx else x}, {x if wx else w}, {c}')
    def loop(wx):
        def enter(c):
            a('s_barrier')
            if c == 0: a.stamp(2)
            if P1PROF and c in (1,2,3,4,6): a.stamp({1:5,2:6,3:7,4:8,6:9}[c])
        enter(0)
        reads(0, 0, 0); reads(0, 1, 1)
        for i in range(32):
            n = i + 2
            if n < 32:
                if n % 4 == 0: enter(n // 4)
                reads((n // 4) % 4, n % 4, n % 4)
            a(f's_waitcnt lgkmcnt({8 if n < 32 else (4 if n == 32 else 0)})')
            mfmas(wx, i % 4, i == 0)
        a.stamp(3)
    def pack():
        for T in range(2):
            for hh in range(2):
                b = 64 + 16*T + 8*hh
                for i in range(4): a(f'v_cvt_pk_bf16_f32 v{PKD+(2*T+hh)*4+i}, v{b+2*i}, v{b+2*i+1}')
    def offs(f):
        for T in range(2):
            for hh in range(2): a(f's_add_u32 s{62+2*T+hh}, s60, {f(T, hh)}')
    loop(True)
    a(f"""
    s_cmp_eq_u32 s42, 0
    s_cbranch_scc0 K1_EPI_K
    s_lshl_b32 s60, s60, 10
    v_lshlrev_b32 v142, 4, v0
    s_mov_b32 s61, {f2u(QSCALE)}
    """)
    offs(lambda T, hh: QF_OFF + hh*65536 + T*2048)
    a('s_nop 2')
    a('s_mov_b32 s60, s61')
    for r in range(0, 32, 2): a(f'v_pk_mul_f32 {vr(64+r,2)}, {vr(64+r,2)}, s[60:61]')
    a(f"""
    s_branch K1_PACK
    K1_EPI_K:
    s_lshl_b32 s60, s60, 11
    v_and_b32 v1, 0x33, v0
    v_bfe_u32 v2, v0, 2, 1
    v_bfe_u32 v3, v0, 3, 1
    v_lshl_add_u32 v1, v2, 3, v1
    v_lshl_add_u32 v1, v3, 2, v1
    v_lshlrev_b32 v142, 4, v1
    """)
    offs(lambda T, hh: KV_OFF + hh*131072 + T*4096)
    a('s_branch K1_PACK')
    a('K1_LOOP_XW:')
    loop(False)
    a(f"""
    s_lshl_b32 s60, s60, 11
    v_and_b32 v1, 15, v0
    v_lshlrev_b32 v1, 4, v1
    v_bfe_u32 v2, v0, 4, 1
    v_lshl_add_u32 v1, v2, 17, v1
    v_lshl_add_u32 v142, v7, 8, v1
    """)
    offs(lambda T, f: KV_OFF + 1024 + f*512 + T*4096)
    a('s_nop 1\nK1_PACK:')
    pack()
    a('s_cmp_lg_u32 s66, 0\ns_cbranch_scc1 K1_DONE')
    p1_stores(a)
    a('K1_DONE:')

def p1_stores(a):
    for k in range(4): a(f'buffer_store_dwordx4 {vr(PKD+4*k,4)}, v142, s[28:31], s{62+k} offen{SC1}')

def arrive_deferred(a, tag):
    a(f"""
    s_waitcnt vmcnt(0)
    s_mov_b64 exec, 1
    ds_add_rtn_u32 v44, v46, v{ONE} offset:{DCNT-MSK}
    v_mov_b32 v45, s27
    v_mov_b32 v43, 0
    s_waitcnt lgkmcnt(0)
    v_cmp_eq_u32 vcc, 7, v44
    s_mov_b32 s66, 0
    s_cbranch_vccz {tag}
    buffer_store_dword v45, v43, s[28:31], s67 offen sc1
    {tag}:
    s_mov_b64 exec, -1
    """)

def attention(a):
    a(f"""
    s_and_b32 s40, s2, 7
    s_lshr_b32 s41, s2, 3
    s_lshl_b32 s40, s40, 2
    s_lshr_b32 s45, s41, 3
    s_add_u32 s40, s40, s45
    s_and_b32 s41, s41, 7
    s_and_b32 s33, s26, 3
    s_lshr_b32 s34, s26, 2
    s_lshl_b32 s35, s41, 3
    s_lshl_b32 s36, s33, 1
    s_add_u32 s35, s35, s36
    v_lshlrev_b32 v36, 4, v0
    v_and_b32 v39, 15, v0
    v_lshrrev_b32 v38, 5, v0
    v_lshlrev_b32 v39, 4, v39
    v_lshl_add_u32 v39, v38, 8, v39
    v_bfe_u32 v38, v0, 4, 1
    v_lshl_add_u32 v39, v38, 18, v39
    v_and_b32 v41, 27, v0
    v_cmp_eq_u32 vcc, 16, v41
    v_add_u32 v{VA0}, 1024, v39
    v_add_u32 v{VB0}, 1536, v39
    v_mov_b32 v41, 2048
    v_mov_b32 v{IDX}, 0xdddddddd
    v_cndmask_b32 v{VA0}, v{VA0}, v41, vcc
    v_cndmask_b32 v{VB0}, v{VB0}, v41, vcc
    s_mov_b32 s42, 0
    s_mov_b32 s32, 0xffff0003
    s_lshl_b32 s36, s33, 11
    s_add_u32 s36, s36, {QST}
    v_add_u32 v41, s36, v36
    v_mov_b32 v46, {MSK}
    s_lshl_b32 s36, s33, 2
    s_add_u32 s36, s36, {QCNT}
    v_mov_b32 v{QC}, s36
    v_mov_b32 v{ONE}, 1
    """)
    def zero_acc():
        for r in range(0, 32, 2): a(f'v_mov_b64 {vr(OA+r,2)}, 0')
        for r in range(0, 4, 2): a(f'v_mov_b64 {vr(VF[1][1]+r,2)}, 0')
    zero_acc()
    a('s_waitcnt vmcnt(0)')
    a.stamp(4)
    a('s_barrier')
    a('s_barrier')
    if not P1PROF: a.stamp(5)
    a(f"""
    ds_read_b128 {vr(QA,4)}, v41
    ds_read_b128 {vr(QB,4)}, v41 offset:1024
    ds_read_b128 {vr(KF,4)}, v36
    ds_read_b32 v44, v46 offset:16
    s_cmp_eq_u32 s66, 0
    s_cbranch_scc1 K2_NODEF
    """)
    p1_stores(a)
    a(f"""
    K2_NODEF:
    s_waitcnt lgkmcnt(0)
    v_mfma_f32_32x32x16_bf16 {vr(SA,16)}, {vr(KF,4)}, {vr(QA,4)}, 0
    v_mfma_f32_32x32x16_bf16 {vr(SB,16)}, {vr(KF,4)}, {vr(QB,4)}, 0
    v_readfirstlane_b32 s27, v44
    s_cmp_lg_u32 s34, 0
    s_cbranch_scc1 K2_FILL
    s_setprio {MAINPRIO}
    s_nop 6
    s_branch K2_GO
    K2_FILL:
    s_nop 7
    s_cmp_eq_u32 s66, 0
    s_cbranch_scc1 K2_GO
    """)
    arrive_deferred(a, 'K2_AD0')
    a('K2_GO:')
    def rowmax(S, dst, acc=False):
        if not acc:
            a(f'v_max3_f32 v{dst}, v{S}, v{S+1}, v{S+2}')
            for i in range(3, 15, 2): a(f'v_max3_f32 v{dst}, v{dst}, v{S+i}, v{S+i+1}')
            a(f'v_max_f32 v{dst}, v{dst}, v{S+15}')
        else:
            for i in range(0, 16, 2): a(f'v_max3_f32 v{dst}, v{dst}, v{S+i}, v{S+i+1}')
    def xhalf(r, t):
        a(f'''
        v_mov_b32 v{t}, v{r}
        s_nop 1
        v_permlane32_swap_b32 v{r}, v{t}
        s_nop 1
        v_max_f32 v{r}, v{r}, v{t}
        ''')
    rowmax(SA, 41); rowmax(SB, 42); xhalf(41, 43); xhalf(42, 44)
    a(f'''
    v_mov_b32 v43, {f2u(-BIAS)}
    v_sub_f32 v41, v43, v41
    v_sub_f32 v42, v43, v42
    K2_RESTART:
    s_mul_i32 s44, s34, {4*TS}
    v_add_u32 v{KA}, s44, v{KA0}
    v_add_u32 v{VA}, s44, v{VA0}
    v_add_u32 v{VB}, s44, v{VB0}
    ds_read_b128 {vr(KF,4)}, v{KA}
    ds_read_b128 {vr(VF[0][0],4)}, v{VA}
    ds_read_b128 {vr(VF[0][1],4)}, v{VB}
    ''')
    a('v_mov_b32 v40, v41\nv_mov_b32 v43, v42')
    for r in range(0, 16, 2): a(f'v_mov_b64 {vr(MA+r,2)}, v[40:41]')
    for r in range(0, 16, 2): a(f'v_mov_b64 {vr(MB+r,2)}, v[42:43]')
    for r in range(8, 16, 2): a(f'v_mov_b64 {vr(SB+r,2)}, 0')
    a(f'''
    s_waitcnt lgkmcnt(0)
    v_mfma_f32_32x32x16_bf16 {vr(SA,16)}, {vr(KF,4)}, {vr(QA,4)}, {vr(MA,16)}
    s_nop 10
    ''')
    if not P1PROF: a.stamp(6)
    a(f'''
    s_branch K2_LOOP
    K2_SPIN:
    {'s_memrealtime s[96:97]' if PROF else ''}
    K2_SPIN2:
    ds_read_b64 v[44:45], v46
    s_waitcnt lgkmcnt(0)
    v_and_b32 v44, v44, v45
    s_nop 0
    v_readfirstlane_b32 s32, v44
    s_or_b32 s32, s32, 0xffff0000
    s_bitcmp1_b32 s32, s43
    s_cbranch_scc0 K2_SPIN2
    {'s_memrealtime s[98:99]' if PROF else ''}
    {'s_waitcnt lgkmcnt(0)' if PROF else ''}
    {'s_sub_u32 s98, s98, s96' if PROF else ''}
    {'s_add_u32 s76, s76, s98' if PROF else ''}
    s_branch K2_READY
    K2_BACK:
    s_cmp_eq_u32 s66, 0
    s_cbranch_scc1 K2_LOOP
    ''')
    arrive_deferred(a, 'K2_AD1')
    if LALIGN >= 0:
        a('s_branch K2_LOOP')
        a('.p2align 6')
        for _ in range(LALIGN): a('s_nop 0')
    a(f'''
    K2_LOOP:
    ''')
    def ex(S, lo, hi):
        for i in range(lo, hi): a(f'v_exp_f32 v{S+i}, v{S+i}')
    def tile(j):
        vs, vp = VF[j & 1], VF[(j+1) & 1]
        ex(SA, 0, 2)
        a(f'v_smfmac_f32_32x32x32_bf16 {vr(OB,16)}, {vr(vp[1],4)}, {vr(SB+8,8)}, v{IDX}')
        ex(SA, 2, 5)
        a(f'v_mfma_f32_32x32x16_bf16 {vr(SB,16)}, {vr(KF,4)}, {vr(QB,4)}, {vr(MB,16)}')
        o = (j+1)*TS
        if j == 3:
            o = 0
            a(f"""
            s_min_u32 s44, s43, 15
            s_mulk_i32 s44, {4*TS}
            s_bitcmp1_b32 s32, s43
            s_cbranch_scc0 K2_SPIN
            K2_READY:
            v_add_u32 v{KA}, s44, v{KA0}
            v_add_u32 v{VA}, s44, v{VA0}
            v_add_u32 v{VB}, s44, v{VB0}
            """)
        a(f"""
        ds_read_b128 {vr(KF,4)}, v{KA} offset:{o}
        ds_read_b128 {vr(vp[0],4)}, v{VA} offset:{o}
        ds_read_b128 {vr(vp[1],4)}, v{VB} offset:{o}
        """)
        if j == 2: a(f's_mov_b64 exec, 1\nds_add_rtn_u32 v43, v{QC}, v{ONE}\ns_mov_b64 exec, -1')
        ex(SA, 5, 10)
        a(f'v_smfmac_f32_32x32x32_bf16 {vr(OA,16)}, {vr(vs[0],4)}, {vr(SA,8)}, v{IDX}')
        ex(SA, 10, 16)
        ex(SB, 0, 2)
        a(f'v_smfmac_f32_32x32x32_bf16 {vr(OA,16)}, {vr(vs[1],4)}, {vr(SA+8,8)}, v{IDX}')
        ex(SB, 2, 5)
        a('s_waitcnt lgkmcnt(0)')
        a(f'v_mfma_f32_32x32x16_bf16 {vr(SA,16)}, {vr(KF,4)}, {vr(QA,4)}, {vr(MA,16)}')
        ex(SB, 5, 10)
        a(f'v_smfmac_f32_32x32x32_bf16 {vr(OB,16)}, {vr(vs[0],4)}, {vr(SB,8)}, v{IDX}')
        if j == 2: a('v_readfirstlane_b32 s43, v43')
        if j == 3: a('s_cmp_lt_u32 s43, 16')
        ex(SB, 10, 16)
    for j in range(4): tile(j)
    a(f'''
    s_cbranch_scc1 K2_BACK
    s_nop 1
    v_smfmac_f32_32x32x32_bf16 {vr(OB,16)}, {vr(VF[1][1],4)}, {vr(SB+8,8)}, v{IDX}
    ''')
    if not P1PROF: a.stamp(7)
    a(f'''
    s_setprio 0
    s_cmp_eq_u32 s66, 0
    s_cbranch_scc1 K2_NOAD
    ''')
    arrive_deferred(a, 'K2_AD2')
    a(f'''
    K2_NOAD:
    s_nop 1
    s_mul_i32 s44, s26, 2304
    s_add_u32 s44, s44, {CMB}
    v_add_u32 v45, s44, v36
    v_lshlrev_b32 v46, 2, v0
    v_add_u32 v46, s44, v46
    s_mov_b32 s44, {f2u(2.0**100)}
    s_mov_b32 s45, 0x7f800000
    s_mov_b32 s46, {f2u(2.0**-(BIAS+1))}
    s_mov_b32 s47, {f2u(2.0**-105)}
    s_cmp_lg_u32 s42, 0
    s_cbranch_scc1 K2_GOOD
    ''')
    for k, O in enumerate((OA, OB)):
        t = 43+k
        a(f'v_add_f32 v{t}, abs(v{O}), abs(v{O+1})')
        for i in range(2, 8): a(f'v_add_f32 v{t}, v{t}, abs(v{O+i})')
        a(f'''
        v_cmp_ngt_f32 s[48:49], s44, v{O+8}
        v_cmp_ngt_f32 s[50:51], s45, v{t}
        v_cmp_le_f32 s[52:53], s46, v{O+8}
        v_cmp_gt_f32 vcc, s47, v{t}
        s_or_b64 s[48:49], s[48:49], s[50:51]
        s_and_b64 vcc, vcc, s[52:53]
        s_or_b64 s[{54+2*k}:{55+2*k}], s[48:49], vcc
        ''')
    a(f'''
    s_or_b64 s[54:55], s[54:55], s[56:57]
    s_cbranch_scc0 K2_GOOD
    v_mov_b32 v43, {BADF}
    v_mov_b32 v44, 1
    ds_write_b32 v43, v44
    K2_GOOD:
    s_cmp_eq_u32 s34, 0
    s_cbranch_scc1 K2_SENDB
    ds_write_b128 v45, {vr(OA,4)}
    ds_write_b128 v45, {vr(OA+4,4)} offset:1024
    ds_write_b32 v46, v{OA+8} offset:2048
    s_waitcnt lgkmcnt(0)
    ''')
    for r in range(9): a(f'v_mov_b32 v{OA+r}, v{OB+r}')
    a(f'''
    v_subrev_u32 v45, {4*2304}, v45
    v_subrev_u32 v46, {4*2304}, v46
    s_branch K2_SENT
    K2_SENDB:
    ds_write_b128 v45, {vr(OB,4)}
    ds_write_b128 v45, {vr(OB+4,4)} offset:1024
    ds_write_b32 v46, v{OB+8} offset:2048
    v_add_u32 v45, {4*2304}, v45
    v_add_u32 v46, {4*2304}, v46
    K2_SENT:
    v_mov_b32 v43, {BADF}
    s_waitcnt lgkmcnt(0)
    s_barrier
    ds_read_b32 v44, v43
    ds_read_b128 {vr(SA,4)}, v45
    ds_read_b128 {vr(SA+4,4)}, v45 offset:1024
    ds_read_b32 v{SA+8}, v46 offset:2048
    s_add_u32 s36, s35, s34
    s_lshl_b32 s36, s36, 5
    s_add_u32 s36, s36, s40
    s_lshl_b32 s36, s36, 10
    s_add_u32 s36, s36, {OF_OFF}
    s_waitcnt lgkmcnt(3)
    v_readfirstlane_b32 s44, v44
    s_cmp_lt_u32 s42, s44
    s_cbranch_scc0 K2_COMBINE
    ''')
    a(f'''
    s_mov_b32 s42, 1
    v_mov_b32 v41, 0xff800000
    v_mov_b32 v42, 0xff800000
    s_mul_i32 s44, s34, {32*TS}
    v_add_u32 v45, s44, v{KA0}
    v_mov_b32 v43, 2
    ds_write_b32 v{QC}, v43
    s_mov_b32 s43, 32
    K2_MAXLOOP:
    ds_read_b128 {vr(KF,4)}, v45
    v_add_u32 v45, {TS}, v45
    s_waitcnt lgkmcnt(0)
    v_mfma_f32_32x32x16_bf16 {vr(SA,16)}, {vr(KF,4)}, {vr(QA,4)}, 0
    v_mfma_f32_32x32x16_bf16 {vr(SB,16)}, {vr(KF,4)}, {vr(QB,4)}, 0
    s_nop 11
    ''')
    rowmax(SA, 41, True); rowmax(SB, 42, True)
    a(f'''
    s_sub_u32 s43, s43, 1
    s_cmp_lg_u32 s43, 0
    s_cbranch_scc1 K2_MAXLOOP
    ''')
    xhalf(41, 43); xhalf(42, 44)
    a(f'''
    s_lshl_b32 s44, s26, 9
    v_lshlrev_b32 v43, 2, v0
    v_add_u32 v43, s44, v43
    v_xor_b32 v45, 0x800, v43
    v_add_u32 v43, {FX}, v43
    v_add_u32 v45, {FX}, v45
    ds_write_b32 v43, v41
    ds_write_b32 v43, v42 offset:256
    s_waitcnt lgkmcnt(0)
    s_barrier
    ds_read_b32 v44, v45
    ds_read_b32 v45, v45 offset:256
    s_waitcnt lgkmcnt(0)
    v_max_f32 v41, v41, v44
    v_max_f32 v42, v42, v45
    v_sub_f32 v41, 0, v41
    v_sub_f32 v42, 0, v42
    v_mov_b32 v46, {MSK}
    ''')
    zero_acc()
    a(f'''
    s_branch K2_RESTART
    K2_COMBINE:
    ''')
    if not P1PROF: a.stamp(8)
    a(f'''
    s_and_b32 s44, s40, 7
    s_waitcnt lgkmcnt(0)
    v_add_f32 v{OA+8}, v{OA+8}, v{SA+8}
    v_rcp_f32 v{OA+8}, v{OA+8}
    ''')
    for r in range(8): a(f'v_add_f32 v{OA+r}, v{OA+r}, v{SA+r}')
    for r in range(8): a(f'v_mul_f32 v{OA+r}, v{OA+r}, v{OA+8}')
    for i in range(4): a(f'v_cvt_pk_bf16_f32 v{60+i}, v{OA+2*i}, v{OA+2*i+1}')
    a(f'buffer_store_dwordx4 v[60:63], v36, s[28:31], s36 offen{SC1}')
    a(f'''
    s_lshl_b32 s47, s41, 2
    s_add_u32 s47, s47, s33
    s_lshl_b32 s47, s47, 5
    s_add_u32 s47, s47, s40
    s_lshl_b32 s47, s47, 1
    s_add_u32 s47, s47, s34
    s_lshl_b32 s47, s47, {OFS}
    s_add_u32 s47, s47, {FLG_O}
    v_mov_b32 v5, s27
    v_mov_b32 v6, 0
    ''')
    if not FLAGLATE and not DIRECT: o_flag(a)

def o_flag(a):
    a('s_waitcnt vmcnt(0)\ns_mov_b64 exec, 1\nbuffer_store_dword v5, v6, s[28:31], s47 offen sc1\ns_mov_b64 exec, -1')

def oproj(a):
    srd(a, 52, 20, 0x400000)
    a(f'''
    v_lshlrev_b32 v2, 4, v0
    s_and_b32 s56, s26, 1
    s_lshr_b32 s57, s26, 1
    s_lshr_b32 s58, s40, 3
    s_lshl_b32 s59, s41, 2
    s_add_u32 s59, s59, s58
    v_lshrrev_b32 v7, 5, v0
    v_bfe_u32 v8, v0, 2, 2
    v_lshl_add_u32 v9, v7, 2, v8
    v_bfe_u32 v10, v0, 4, 1
    v_lshlrev_b32 v10, 1, v10
    v_bfe_u32 v11, v0, 1, 1
    v_add_u32 v10, v10, v11
    v_and_b32 v8, 2, v8
    v_lshlrev_b32 v8, 1, v8
    v_xor_b32 v10, v10, v8
    v_lshlrev_b32 v10, 4, v10
    v_lshl_add_u32 v10, v9, 7, v10
    v_and_b32 v11, 1, v0
    v_lshl_add_u32 v10, v11, 3, v10
    s_lshl_b32 s60, s57, 14
    v_add_u32 v10, s60, v10
    v_xor_b32 v11, 64, v10
    s_lshl_b32 s61, s59, 16
    s_lshl_b32 s62, s56, 15
    s_add_u32 s61, s61, s62
    s_lshl_b32 s62, s57, 13
    s_add_u32 s61, s61, s62
    s_add_u32 s61, s61, {OF_OFF}
    s_add_u32 s62, s61, 4096
    s_barrier
    ''')
    if TAILPROF: a.stamp(5)
    for hd in range(8):
        for c in range(2):
            b = 64 + (hd*2+c)*4
            ad = 10 + c
            a(f'ds_read_b64_tr_b16 {vr(b,2)}, v{ad} offset:{hd*2048}')
            a(f'ds_read_b64_tr_b16 {vr(b+2,2)}, v{ad} offset:{hd*2048+1024}')
        if hd % 2 == 1 and hd < 7: a('s_waitcnt lgkmcnt(4)')
    if FLAGLATE: o_flag(a)
    if not DIRECT: a('s_barrier')
    if not P1PROF: a.stamp(9)
    def oloads():
        for hd in range(8):
            a(f'buffer_load_dwordx4 {vr(16+4*hd,4)}, v2, s[28:31], s{61 + hd//4} offen offset:{(hd%4)*1024}{SC1}')
    oloads()
    if DIRECT:
        for r in range(0, 32, 2): a(f'v_mov_b64 {vr(128+r,2)}, 0')
        a(f's_mov_b32 s64, 0xff\ns_mov_b32 s65, -1\ns_mov_b32 s68, {SPIN_MAX}')
    a(f'''
    ''')
    if FULLROW: a(f'''
    s_lshl_b32 s63, s56, 2
    s_add_u32 s60, s63, s57
    s_mulk_i32 s60, 8704
    s_add_u32 s60, s60, 65536
    v_and_b32 v15, 31, v0
    v_mul_u32_u24 v13, 272, v15
    v_lshl_add_u32 v13, v7, 4, v13
    v_add_u32 v13, s60, v13
    s_mul_i32 s60, s63, 8704
    s_mul_i32 s63, s57, {8*272}
    s_add_u32 s60, s60, s63
    s_add_u32 s60, s60, 65536
    v_lshrrev_b32 v15, 3, v0
    v_mul_u32_u24 v14, 272, v15
    v_and_b32 v12, 7, v0
    v_lshl_add_u32 v14, v12, 5, v14
    v_add_u32 v14, s60, v14
    v_lshlrev_b32 v15, 11, v15
    v_lshl_add_u32 v15, v12, 4, v15
    s_lshl_b32 s60, s59, 6
    s_lshl_b32 s63, s56, 5
    s_add_u32 s60, s60, s63
    s_lshl_b32 s63, s57, 3
    s_add_u32 s60, s60, s63
    s_lshl_b32 s60, s60, 11
    s_lshl_b32 s63, s44, 7
    s_add_u32 s60, s60, s63
    ''')
    else: a(f'''
    s_lshl_b32 s60, s56, 15
    s_add_u32 s60, s60, 65536
    s_lshl_b32 s63, s57, 11
    s_add_u32 s63, s63, s60
    v_add_u32 v13, s63, v2
    s_lshl_b32 s63, s57, 13
    s_add_u32 s63, s63, s60
    v_add_u32 v14, s63, v2
    v_and_b32 v15, 31, v0
    s_lshl_b32 s60, s59, 6
    s_lshl_b32 s63, s56, 5
    s_add_u32 s60, s60, s63
    v_add_u32 v15, s60, v15
    v_lshlrev_b32 v15, 11, v15
    v_lshl_add_u32 v15, v7, 4, v15
    s_lshl_b32 s60, s44, 7
    s_lshl_b32 s63, s57, 5
    s_add_u32 s60, s60, s63
    ''')
    a(f'''
    s_waitcnt lgkmcnt(0)
    ''')
    if not DIRECT:
        for hd in range(8):
            a(f's_waitcnt vmcnt({7-hd})')
            for c in range(2):
                d = vr(128+16*c, 16)
                a(f'v_mfma_f32_32x32x16_bf16 {d}, {vr(64+(hd*2+c)*4,4)}, {vr(16+4*hd,4)}, {"0" if hd == 0 else d}')
    else:
        def take(hd, tag):
            b = 16+4*hd
            a(f"""
            v_max3_u32 v12, v{b}, v{b+1}, v{b+2}
            v_max_u32 v12, v12, v{b+3}
            v_cmp_eq_u32 vcc, s65, v12
            s_cbranch_vccnz {tag}
            s_bitset0_b32 s64, {hd}
            """)
            for c in range(2):
                d = vr(128+16*c, 16)
                a(f'v_mfma_f32_32x32x16_bf16 {d}, {vr(64+(hd*2+c)*4,4)}, {vr(b,4)}, {d}')
            a(f'{tag}:')
        for hd in range(8):
            a(f's_waitcnt vmcnt({7-hd})')
            take(hd, f'K3_A{hd}')
        a(f"""
        K3_RETRY:
        s_cmp_eq_u32 s64, 0
        s_cbranch_scc1 K3_DONE
        s_sub_u32 s68, s68, 1
        s_cselect_b32 s66, 0x12345, -1
        """)
        for hd in range(8):
            a(f's_bitcmp1_b32 s64, {hd}\ns_cbranch_scc0 K3_L{hd}')
            a(f'buffer_load_dwordx4 {vr(16+4*hd,4)}, v2, s[28:31], s{61 + hd//4} offen offset:{(hd%4)*1024}{SC1}\nK3_L{hd}:')
        a('s_mov_b32 s65, s66\ns_waitcnt vmcnt(0)')
        for hd in range(8):
            a(f's_bitcmp1_b32 s64, {hd}\ns_cbranch_scc0 K3_B{hd}')
            take(hd, f'K3_B{hd}')
        a('s_cmp_lg_u32 s65, -1\ns_cbranch_scc0 K3_RETRY\nK3_DONE:')
    if TAILPROF: a.stamp(2)
    a('s_nop 11')
    if FULLROW:
        for g in range(8): a(f'ds_write_b128 v13, {vr(128+4*g,4)} offset:{g*32}')
    else:
        for g in range(4):
            a(f'ds_write_b128 v13, {vr(128+8*g,4)} offset:{g*8192}')
            a(f'ds_write_b128 v13, {vr(132+8*g,4)} offset:{g*8192+1024}')
    a('s_waitcnt lgkmcnt(0)\ns_barrier')
    if TAILPROF: a.stamp(3)
    for s in range(4):
        a(f'ds_read_b128 {vr(16+8*s,4)}, v14 offset:{s*8704 if FULLROW else s*2048}')
        a(f'ds_read_b128 {vr(20+8*s,4)}, v14 offset:{s*8704+16 if FULLROW else s*2048+1024}')
    a('s_waitcnt lgkmcnt(4)')
    for r in range(8): a(f'v_add_f32 v{16+r}, v{16+r}, v{24+r}')
    a('s_waitcnt lgkmcnt(0)')
    for r in range(8): a(f'v_add_f32 v{32+r}, v{32+r}, v{40+r}')
    for r in range(8): a(f'v_add_f32 v{16+r}, v{16+r}, v{32+r}')
    for i in range(4): a(f'v_cvt_pk_bf16_f32 v{48+i}, v{16+2*i}, v{17+2*i}')
    if not FULLROW: a('s_nop 1\nv_permlane32_swap_b32 v48, v50\nv_permlane32_swap_b32 v49, v51\ns_nop 1')
    a(f'''
    buffer_store_dwordx4 v[48:51], v15, s[52:55], s60 offen{OST}
    ''')

def lds_sync(a, tag, off, n):
    a(f"""
    v_mov_b32 v137, 1
    s_mov_b64 exec, 1
    s_waitcnt lgkmcnt(0)
    ds_add_u32 v159, v137 offset:{off}
    s_mov_b64 exec, -1
    {tag}:
    ds_read_b32 v137, v159 offset:{off}
    s_waitcnt lgkmcnt(0)
    v_readfirstlane_b32 s44, v137
    s_cmp_ge_u32 s44, {n}
    s_cbranch_scc0 {tag}
    """)

def get_nonce(a, tag):
    a(f"""
    s_mov_b32 s68, {SPIN_MAX}
    {tag}_NSP:
    global_load_dword v8, v2, s[22:23] sc1
    s_sub_u32 s68, s68, 1
    s_waitcnt vmcnt(0)
    v_readfirstlane_b32 s27, v8
    s_cbranch_scc1 {tag}_NOK
    s_cmp_eq_u32 s27, 0
    s_cbranch_scc1 {tag}_NSP
    {tag}_NOK:
    """)

def fnet1(a):
    RE = [3, 4, 5, 8, 9, 10, 11, 12, 13]
    PK = 140
    a(f"""
    s_and_b32 s42, s33, 1
    s_lshr_b32 s64, s33, 1
    s_and_b32 s43, s2, 7
    s_lshl_b32 s43, s43, 3
    s_lshr_b32 s44, s2, 3
    s_add_u32 s43, s43, s44
    s_sub_u32 s43, s43, 24
    s_lshl_b32 s43, s43, 1
    s_add_u32 s43, s43, s64
    v_and_b32 v6, 31, v0
    v_lshrrev_b32 v7, 5, v0
    v_and_b32 v8, 15, v0
    s_lshl_b32 s45, s43, 3
    s_lshl_b32 s46, s42, 2
    s_add_u32 s45, s45, s46
    s_lshl_b32 s46, s33, 13
    s_lshl_b32 s65, s64, 13
    s_add_u32 s65, s65, 32768
    s_lshl_b32 s64, s64, 2
    v_add_u32 v159, s64, v1
    s_waitcnt lgkmcnt(0)
    """)
    srd(a, 56, 10, 0x200000)
    for p in range(4):
        base = p*2048
        a(f"""
        s_add_u32 m0, s46, {base}
        s_add_u32 s47, s45, {p}
        s_lshl_b32 s44, s47, 10
        buffer_load_dwordx4 v14, s[56:59], s44 offen lds
        s_sub_u32 s44, 2048, s47
        s_cmp_eq_u32 s47, 0
        s_cselect_b32 s44, 1024, s44
        s_add_u32 m0, s46, {base+1024}
        s_lshl_b32 s44, s44, 10
        buffer_load_dwordx4 v14, s[56:59], s44 offen lds
        """)
    a('s_barrier')
    srd(a, 28, 24, WS_USED)
    a(f"""
    s_mov_b32 s60, 0xffff0000
    s_mov_b32 s61, 0xffff0000
    s_mov_b32 s62, 0x80008000
    v_mov_b32 v138, s62
    v_cndmask_b32 v138, 0, v138, s[60:61]
    v_bfe_u32 v3, v0, 2, 2
    v_lshl_add_u32 v3, v7, 3, v3
    v_lshlrev_b32 v3, 6, v3
    v_bfe_u32 v4, v0, 4, 1
    v_lshl_add_u32 v3, v4, 5, v3
    v_and_b32 v5, 3, v0
    v_lshl_add_u32 v3, v5, 3, v3
    v_add_u32 v15, s46, v3
    v_lshlrev_b32 v136, 12, v4
    v_lshl_add_u32 v136, v8, 4, v136
    v_lshl_add_u32 v136, v7, 10, v136
    s_lshl_b32 s44, s42, 3
    s_add_u32 s44, s44, s65
    v_add_u32 v136, s44, v136
    v_lshlrev_b32 v158, 2, v8
    v_lshl_add_u32 v158, v7, 8, v158
    s_or_b32 s63, s43, s42
    v_cvt_f32_u32 v9, v8
    v_cvt_f32_u32 v10, v7
    v_cvt_f32_u32 v11, v6
    v_cvt_f32_u32 v12, v4
    v_mul_f32 v13, {f2u(1/16)}, v9
    v_mul_f32 v3, v9, v10
    v_mul_f32 v3, 0.5, v3
    """)
    for j_ in range(8):
        a(f"v_cos_f32 v{88+j_}, v3\nv_sin_f32 v{96+j_}, -v3\nv_add_f32 v3, v3, v13")
    for q in range(4):
        a(f"v_cvt_pk_bf16_f32 v{16+q}, v{88+2*q}, v{89+2*q}\nv_cvt_pk_bf16_f32 v{20+q}, v{96+2*q}, v{97+2*q}")
    a(f"""
    v_mul_f32 v13, {f2u(1/512)}, v9
    v_mul_f32 v5, 4.0, v13
    v_mul_f32 v3, v10, v5
    v_mul_f32 v12, {f2u(0.25)}, v12
    v_add_f32 v3, v3, v12
    """)
    for r in range(16):
        a(f"v_cos_f32 v{48+r}, v3\nv_sin_f32 v{64+r}, -v3\nv_add_f32 v3, v3, v13")
        if r % 4 == 3: a("v_add_f32 v3, v3, v5")
    a(f"""
    v_mul_f32 v13, {f2u(1/32)}, v11
    v_mul_f32 v5, 4.0, v13
    v_mul_f32 v3, v10, v5
    """)
    for r in range(16):
        a(f"v_cos_f32 v{88+r}, v3\nv_sin_f32 v{104+r}, v3\nv_add_f32 v3, v3, v13")
        if r % 4 == 3: a("v_add_f32 v3, v3, v5")
    for q in range(8):
        a(f"v_cvt_pk_bf16_f32 v{32+q}, v{88+2*q}, v{89+2*q}\nv_cvt_pk_bf16_f32 v{40+q}, v{104+2*q}, v{105+2*q}\nv_xor_b32 v{24+q}, v138, v{16+q}")
    a("s_waitcnt vmcnt(0)")
    for p in range(4):
        ad = 15
        o = p*2048
        a(f"""
        ds_read_b64_tr_b16 v[80:81], v{ad} offset:{o}
        ds_read_b64_tr_b16 v[82:83], v{ad} offset:{o+256}
        ds_read_b64_tr_b16 v[84:85], v{ad} offset:{o+1024}
        ds_read_b64_tr_b16 v[86:87], v{ad} offset:{o+1280}
        """)
        if p == 0:
            a('s_cmp_lg_u32 s63, 0\ns_cbranch_scc1 F1_G0')
            for r in range(8):
                a(f'v_cndmask_b32 v{24+r}, 0, v{16+r}, s[60:61]\nv_cndmask_b32 v{16+r}, v{16+r}, 0, s[60:61]')
            a('F1_G0:')
        a(f"""
        s_waitcnt lgkmcnt(0)
        v_mfma_f32_32x32x16_bf16 v[88:103], v[80:83], v[16:19], 0
        v_mfma_f32_32x32x16_bf16 v[104:119], v[80:83], v[20:23], 0
        v_mfma_f32_32x32x16_bf16 v[88:103], v[84:87], v[24:27], v[88:103]
        v_mfma_f32_32x32x16_bf16 v[104:119], v[84:87], v[28:31], v[104:119]
        s_nop 11
        """)
        for r in range(16):
            a(f"""
            v_mul_f32 v137, v{88+r}, v{64+r}
            v_mul_f32 v{88+r}, v{88+r}, v{48+r}
            v_fma_f32 v{88+r}, -v{104+r}, v{64+r}, v{88+r}
            v_fma_f32 v{104+r}, v{104+r}, v{48+r}, v137
            """)
        for r in range(8):
            a(f'v_cvt_pk_bf16_f32 v{120+r}, v{88+2*r}, v{89+2*r}\nv_cvt_pk_bf16_f32 v{128+r}, v{104+2*r}, v{105+2*r}')
        if p == 0:
            a('s_cmp_lg_u32 s63, 0\ns_cbranch_scc1 F1_G1')
            for r in range(8):
                a(f"""
                v_xor_b32 v137, s62, v{128+r}
                v_cndmask_b32 v{128+r}, v{128+r}, v{120+r}, s[60:61]
                v_cndmask_b32 v{120+r}, v{120+r}, v137, s[60:61]
                v_or_b32 v{16+r}, v{16+r}, v{24+r}
                v_xor_b32 v{24+r}, v138, v{16+r}
                """)
            a('F1_G1:')
        a(f"""
        s_nop 1
        v_mfma_f32_32x32x16_bf16 v[88:103], v[32:35], v[120:123], 0
        v_mfma_f32_32x32x16_bf16 v[88:103], v[36:39], v[124:127], v[88:103]
        v_mfma_f32_32x32x16_bf16 v[88:103], v[40:43], v[128:131], v[88:103]
        v_mfma_f32_32x32x16_bf16 v[88:103], v[44:47], v[132:135], v[88:103]
        s_nop 11
        """)
        if p == 0:
            a(f's_cmp_lg_u32 s63, 0\ns_cbranch_scc1 F1_G2\ns_mov_b32 s44, {AE1K_OFF}\ns_mov_b64 exec, s[60:61]')
            for r in range(8): a(f'buffer_store_dword v{88+r}, v158, s[28:31], s44 offen offset:{(r&3)*64+(r>>2)*512}{SC1}')
            a(f's_mov_b64 exec, 0x10000\nbuffer_store_dword v96, v158, s[28:31], s44 offen offset:1024{SC1}\ns_mov_b64 exec, -1\nF1_G2:')
        for r in range(9):
            if p % 2 == 0: a(f'v_mov_b32 v{RE[r]}, v{88+r}')
            else: a(f'v_cvt_pk_bf16_f32 v{PK+2*r+p//2}, v{RE[r]}, v{88+r}')
    for r in range(8): a(f'ds_write_b64 v136, {vr(PK+2*r,2)} offset:{((r&3)+8*(r>>2))*256}')
    a(f's_mov_b64 exec, 1\nds_write_b64 v136, {vr(PK+16,2)} offset:4096\ns_mov_b64 exec, -1')
    lds_sync(a, 'F1_SB', F1C-SCR, 2)
    a(f"""
    s_lshl_b32 s44, s42, 12
    s_add_u32 s44, s44, s65
    v_add_u32 v3, s44, v14
    """)
    for q in range(4): a(f'ds_read_b128 {vr(16+4*q,4)}, v3 offset:{1024*q}')
    a(f"""
    v_lshlrev_b32 v4, 4, v6
    v_lshl_add_u32 v4, v7, 16, v4
    s_lshl_b32 s44, s43, 9
    s_lshl_b32 s45, s42, 19
    s_add_u32 s44, s44, s45
    s_add_u32 s44, s44, {AEF_OFF}
    """)
    for q in range(4):
        a(f's_waitcnt lgkmcnt({3-q})\nbuffer_store_dwordx4 {vr(16+4*q,4)}, v4, s[28:31], s44 offen{SC1}\ns_add_u32 s44, s44, 0x20000')
    get_nonce(a, 'F1')
    a(f"""
    s_lshl_b32 s44, s43, 6
    s_lshl_b32 s45, s42, 5
    s_add_u32 s44, s44, s45
    s_add_u32 s44, s44, {FLG_F1}
    s_mov_b64 exec, 1
    buffer_store_dword v8, v2, s[28:31], s44 offen sc1
    s_mov_b64 exec, -1
    """)

def background(a):
    ACC, EXT = 128, 144
    a(f"""
    s_setprio 2
    {'s_add_u32 s26, s26, 12' if BGFIRST else ''}
    s_sub_u32 s33, s26, 8
    s_cmp_eq_u32 s42, 3
    s_cbranch_scc1 BG_F1
    """)
    p1_loader(a)
    a('s_mov_b32 s65, 0\ns_branch BG_J1\nBG_F1:')
    bg_init(a)
    fnet1(a)
    a(f"""
    s_lshr_b32 s44, s43, 1
    s_lshr_b32 s45, s44, 1
    s_lshl_b32 s45, s45, 5
    v_add_u32 v6, s45, v6
    s_and_b32 s45, s44, 1
    s_mul_i32 s46, s45, {f2u(0.25)}
    v_mov_b32 v8, s46
    v_cmp_gt_u32 vcc, s45, v6
    v_mov_b32 v9, 1024
    s_lshl_b32 s46, s33, 5
    v_cndmask_b32 v6, v6, v9, vcc
    v_cndmask_b32 v8, v8, 0, vcc
    v_cvt_f32_u32 v6, v6
    v_mul_f32 v6, {f2u(1/2048)}, v6
    v_add_u32 v7, s46, v7
    v_lshlrev_b32 v7, 3, v7
    v_cvt_f32_u32 v7, v7
    v_fma_f32 v8, v6, v7, v8
    v_mul_f32 v7, {f2u(16.0)}, v6
    s_lshl_b32 s64, s44, 16
    s_lshl_b32 s46, s33, 14
    s_add_u32 s64, s64, s46
    s_add_u32 s64, s64, {CSF_OFF}
    s_lshl_b32 s65, s44, 6
    s_lshl_b32 s46, s33, 4
    s_add_u32 s65, s65, s46
    s_add_u32 s65, s65, {FLG_CS}
    s_mov_b32 s66, 1
    """)
    for ks in range(16):
        b = 64 + 4*ks
        a("v_fract_f32 v9, v8\nv_add_f32 v8, v8, v7")
        for j in range(8):
            a(f"v_cos_f32 v{16+j}, v9")
            if j < 7: a("v_add_f32 v9, v9, v6")
        a("s_nop 0")
        for q in range(4): a(f"v_cvt_pk_bf16_f32 v{b+q}, v{16+2*q}, v{17+2*q}")
    a('BG_J1:')
    srd(a, 28, 24, WS_USED)
    get_nonce(a, 'BG')
    a(f"""
    ds_write_b32 v1, v8 offset:16
    s_and_b32 s40, s2, 7
    s_lshr_b32 s41, s2, 3
    s_lshl_b32 s40, s40, 2
    s_lshr_b32 s45, s41, 3
    s_add_u32 s40, s40, s45
    s_and_b32 s41, s41, 7
    s_and_b32 s34, s33, 1
    s_lshr_b32 s50, s33, 1
    v_and_b32 v9, 15, v0
    v_lshlrev_b32 v9, 6, v9
    s_lshl_b32 s45, s34, 10
    s_add_u32 s45, s45, 1024
    v_add_u32 v9, s45, v9
    s_lshl_b32 s45, s41, 1
    s_add_u32 s45, s45, s50
    s_lshl_b32 s45, s45, 6
    v_mov_b32 v10, s45
    v_cmp_eq_u32 vcc, 16, v0
    s_lshr_b32 s45, s40, 3
    s_lshl_b32 s45, s45, 12
    s_add_u32 s45, s45, {FLG_P1}
    v_cndmask_b32 v9, v9, v10, vcc
    s_lshl_b32 s34, s34, 10
    s_lshl_b32 s35, s40, 17
    s_add_u32 s35, s35, s34
    s_add_u32 s35, s35, {KV_OFF}
    v_mul_u32_u24 v11, {TS}, v0
    v_mov_b32 v40, 0x3f803f80
    v_mov_b32 v41, v40
    v_mov_b32 v42, v40
    v_mov_b32 v43, v40
    s_lshr_b32 s48, s34, 8
    v_add_u32 v20, s48, v1
    s_lshl_b32 s36, s40, 6
    s_lshl_b32 s37, s41, 3
    s_add_u32 s36, s36, s37
    s_lshl_b32 s37, s33, 1
    s_add_u32 s36, s36, s37
    s_lshl_b32 s36, s36, 10
    s_lshl_b32 s37, s33, 11
    s_add_u32 s37, s37, {QST}
    s_lshl_b32 s48, s50, {GSH}
    s_lshl_b32 s53, 1, s48
    s_or_b32 s53, s53, 0x10000
    s_waitcnt lgkmcnt(0)
    """)
    a.stamp(1)
    a('s_barrier')
    a.stamp(2)
    a(f"""
    s_cmp_lg_u32 s66, 0
    s_cbranch_scc1 BG_NOFLAG
    s_mov_b64 exec, 1
    buffer_store_dword v8, v2, s[28:31], s67 offen sc1
    s_mov_b64 exec, -1
    BG_NOFLAG:
    ds_write_b128 v11, v[40:43] offset:2048
    s_mov_b32 s68, {SPIN_MAX}
    BG1_SP:
    buffer_load_dword v10, v9, s[28:31], s45 offen sc1
    s_sub_u32 s68, s68, 1
    s_waitcnt vmcnt(0)
    v_cmp_eq_u32 vcc, s27, v10
    s_cbranch_scc1 BG1_OK
    s_and_b32 s46, vcc_lo, s53
    s_cmp_eq_u32 s46, s53
    s_cbranch_scc0 BG1_SP
    BG1_OK:
    s_mov_b32 s46, vcc_lo
    """)
    a.stamp(3)
    def grp_issue():
        a(f"""
        s_mul_i32 s52, s50, {4*TS}
        s_add_u32 m0, s52, s34
        s_lshl_b32 s51, s48, 13
        s_add_u32 s51, s51, s35
        """)
        for t in range(4):
            a(f'buffer_load_dwordx4 v14, s[28:31], s51 offen{SC1} lds')
            if t < 3: a(f's_add_u32 m0, m0, {TS}\ns_add_u32 s51, s51, 2048')
    grp_issue()
    a(f"""
    s_mov_b32 m0, s37
    s_mov_b32 s49, 0
    buffer_load_dwordx4 v14, s[28:31], s36 offen{SC1} lds
    buffer_load_dwordx4 v14, s[28:31], s36 offen offset:1024{SC1} lds
    s_waitcnt vmcnt(0) lgkmcnt(0)
    s_barrier
    """)
    def publish():
        a('v_mov_b32 v21, s49\ns_mov_b64 exec, 1\nds_or_b32 v20, v21\ns_mov_b64 exec, -1')
    a(f"""
    BGL_LOOP:
    s_add_u32 s50, s50, 2
    s_and_b32 s48, s50, {(16 >> GSH) - 1}
    s_lshl_b32 s48, s48, {GSH}
    s_lshr_b32 s47, s50, {4 - GSH}
    s_add_u32 s48, s48, s47
    s_bitcmp1_b32 s46, s48
    s_cbranch_scc1 BGL_RDY
    s_waitcnt vmcnt(0)
    """)
    publish()
    a(f"""
    s_mov_b32 s68, {SPIN_MAX}
    BGL_SP:
    buffer_load_dword v10, v9, s[28:31], s45 offen sc1
    s_sub_u32 s68, s68, 1
    s_waitcnt vmcnt(0)
    v_cmp_eq_u32 vcc, s27, v10
    s_cbranch_scc1 BGL_RDY
    s_mov_b32 s46, vcc_lo
    s_bitcmp1_b32 s46, s48
    s_cbranch_scc0 BGL_SP
    BGL_RDY:
    """)
    grp_issue()
    a('s_waitcnt vmcnt(4)')
    publish()
    a(f"""
    s_cmp_eq_u32 s65, 0
    s_cbranch_scc1 BGL_NOTAB
    s_lshr_b32 s47, s50, 1
    s_cmp_lg_u32 s47, {TPOS // 2}
    s_cbranch_scc1 BGL_NOTAB
    """)
    for ks in range(16):
        a(f"buffer_store_dwordx4 {vr(64+4*ks,4)}, v14, s[28:31], s64 offen offset:{1024*(ks%4)}{SC1}")
        if ks % 4 == 3 and ks < 15: a("s_add_u32 s64, s64, 4096")
    a('BGL_NOTAB:')
    a(f"""
    s_lshl_b32 s49, 1, s50
    s_cmp_lt_u32 s50, 14
    s_cbranch_scc1 BGL_LOOP
    s_waitcnt vmcnt(0)
    """)
    publish()
    a(f"""
    s_cmp_eq_u32 s65, 0
    s_cbranch_scc1 BGL_NOFLG
    s_mov_b64 exec, 1
    buffer_store_dword v8, v2, s[28:31], s65 offen sc1
    s_mov_b64 exec, -1
    BGL_NOFLG:
    """)
    a(f'''
    s_lshr_b32 s34, s33, 1
    s_and_b32 s35, s33, 1
    s_cmp_eq_u32 s34, 0
    s_mov_b32 s37, {BOF_OFF}
    s_cselect_b32 s36, {AEF_OFF}, s37
    s_cselect_b32 s56, s41, s40
    s_xor_b32 s37, s36, {AEF_OFF ^ BOF_OFF}
    ''')
    srd(a, 52, 20, 0x400000)
    a(f'''
    v_and_b32 v6, 31, v0
    v_lshrrev_b32 v7, 5, v0
    s_lshl_b32 s47, s40, 1
    s_add_u32 s47, s47, s34
    s_lshl_b32 s48, s47, 16
    s_lshl_b32 s44, s35, 15
    s_add_u32 s48, s48, s44
    s_add_u32 s48, s48, {CSF_OFF}
    s_lshl_b32 s47, s47, 6
    s_lshl_b32 s49, s35, 5
    s_add_u32 s47, s47, s49
    s_add_u32 s47, s47, {FLG_CS}
    v_and_b32 v15, 1, v0
    v_lshlrev_b32 v15, 4, v15
    s_lshl_b32 s44, s41, 16
    s_lshl_b32 s45, s35, 15
    s_add_u32 s44, s44, s45
    v_add_u32 v12, s44, v14
    v_mov_b32 v10, 1
    v_mov_b32 v11, 0
    s_lshl_b32 s45, s35, 12
    s_add_u32 s45, s45, {FLG_F1}
    s_add_u32 s46, s45, 32
    v_lshlrev_b32 v9, 6, v0
    ''')
    for r in range(0, 16, 2): a(f'v_mov_b64 {vr(EXT+r,2)}, 0')
    a.stamp(4)
    if os.environ.get('NOFNET'): a('s_branch K_END')
    if DIRECT:
        a(f"""
        s_lshl_b32 s57, s41, 2
        s_add_u32 s57, s57, s33
        s_lshl_b32 s58, s57, 16
        s_lshl_b32 s59, s40, 10
        s_add_u32 s58, s58, s59
        s_add_u32 s58, s58, {OF_OFF}
        s_add_u32 s59, s58, 0x8000
        v_mov_b64 v[16:17], -1
        v_mov_b64 v[18:19], -1
        s_lshl_b32 s57, s57, 5
        s_add_u32 s57, s57, s40
        buffer_store_dwordx4 v[16:19], v14, s[28:31], s58 offen sc1
        buffer_store_dwordx4 v[16:19], v14, s[28:31], s59 offen sc1
        s_lshl_b32 s57, s57, 4
        s_add_u32 s57, s57, {FLG_PZ}
        """)
    poll(a, 'BG2', 9, 13, 's45')
    if DIRECT:
        a('v_mov_b32 v13, s27\ns_mov_b64 exec, 1\nbuffer_store_dword v13, v11, s[28:31], s57 offen sc1\ns_mov_b64 exec, -1')
    poll(a, 'BG3', 9, 13, 's46')
    poll(a, 'BG4', 15, 13, 's47')
    def fl(ks, ext):
        NS = 8 if ext else 12
        b = 16 + (12 if ext else 8)*(ks % NS)
        o = 1024*(ks % 4)
        a(f"""
        buffer_load_dwordx4 {vr(b,4)}, v14, s[28:31], s48 offen offset:{o}{SC1}
        buffer_load_dwordx4 {vr(b+4,4)}, v12, s[28:31], s36 offen offset:{o}{SC1}
        """)
        if ext: a(f'buffer_load_dwordx4 {vr(b+8,4)}, v12, s[28:31], s37 offen offset:{o}{SC1}')
        if ks % 4 == 3: a('s_add_u32 s48, s48, 4096\ns_add_u32 s36, s36, 4096' + ('\ns_add_u32 s37, s37, 4096' if ext else ''))
    def floop(ext):
        per = 3 if ext else 2
        NS = 8 if ext else 12
        for ks in range(NS): fl(ks, ext)
        for ks in range(32):
            b = 16 + (12 if ext else 8)*(ks % NS)
            rem = min(32, ks+NS) - ks - 1
            a(f's_waitcnt vmcnt({per*rem})')
            a(f'v_mfma_f32_32x32x16_bf16 {vr(ACC,16)}, {vr(b,4)}, {vr(b+4,4)}, {"0" if ks == 0 else vr(ACC,16)}')
            if ext: a(f'v_mfma_f32_32x32x16_bf16 {vr(EXT,16)}, {vr(b,4)}, {vr(b+8,4)}, {vr(EXT,16)}')
            if ks+NS < 32: fl(ks+NS, ext)
    a('s_cmp_eq_u32 s56, 0\ns_cbranch_scc1 BG_FEXT')
    floop(False)
    a('s_branch BG_FDONE\nBG_FEXT:')
    floop(True)
    a('BG_FDONE:')
    a.stamp(5)
    a(f'''
    s_lshl_b32 s44, s41, 7
    v_lshl_add_u32 v12, v6, 2, s44
    s_mov_b32 s44, {AE1K_OFF}
    v_mov_b32 v13, 1024
    s_mov_b32 s69, s44
    s_mul_i32 s44, s33, 3072
    s_add_u32 s44, s44, {FX}
    s_lshl_b32 s45, s35, 7
    s_lshl_b32 s46, s34, 8
    s_add_u32 s45, s45, s46
    s_add_u32 s45, s45, {FE}
    v_lshlrev_b32 v3, 6, v7
    v_add_u32 v3, s45, v3
    v_lshl_add_u32 v4, v6, 2, s45
    s_nop 3
    ''')
    for g in range(4):
        a(f'''
        s_sub_u32 s46, {g+3}, s33
        s_and_b32 s46, s46, 3
        s_cmp_eq_u32 s46, 3
        s_cselect_b64 exec, 0, -1
        s_lshl_b32 s46, s46, 10
        s_add_u32 s46, s46, s44
        v_add_u32 v2, s46, v14
        ds_write_b128 v2, {vr(ACC+4*g,4)}
        ''')
    a(f'''
    s_mov_b64 exec, -1
    s_cmp_eq_u32 s34, 0
    s_cbranch_scc0 BG_XQ
    s_mov_b32 exec_lo, 1
    s_mov_b32 exec_hi, 1
    ''')
    for i in range(4): a(f'ds_write_b128 v3, {vr(EXT+4*i,4)} offset:{16*i}')
    a(f'''
    s_branch BG_XD
    BG_XQ:
    s_mov_b32 exec_hi, 0
    ds_write_b32 v4, v{EXT}
    BG_XD:
    s_mov_b64 exec, 1
    s_waitcnt lgkmcnt(0)
    ds_add_u32 v1, v10 offset:12
    s_mov_b64 exec, -1
    s_cmp_lt_u32 s33, 2
    s_cbranch_scc1 BG_M01
    s_cmp_eq_u32 s33, 2
    s_cbranch_scc1 BG_M2
    ''')
    def mv(g):
        for i in range(4): a(f'v_mov_b32 v{20+i}, v{ACC+4*g+i}')
    mv(3); a('s_branch BG_MD\nBG_M2:'); mv(2); a('s_branch BG_MD\nBG_M01:\ns_cmp_eq_u32 s33, 0\ns_cbranch_scc1 BG_M0'); mv(1); a('s_branch BG_MD\nBG_M0:'); mv(0)
    a('BG_MD:')
    for j in range(1, 4):
        a(f'''
        s_add_u32 s46, s33, {j}
        s_and_b32 s46, s46, 3
        s_mul_i32 s46, s46, 3072
        s_add_u32 s46, s46, {FX + (3-j)*1024}
        v_add_u32 v{40+j}, s46, v14
        ''')
    a(f'''
    s_lshl_b32 s46, s33, 4
    s_add_u32 s46, s46, {FE}
    v_lshlrev_b32 v3, 6, v7
    v_add_u32 v3, s46, v3
    v_lshlrev_b32 v4, 2, v6
    v_add_u32 v4, {FE+256}, v4
    BG_FSPIN:
    ds_read_b32 v5, v1 offset:12
    s_waitcnt lgkmcnt(0)
    v_readfirstlane_b32 s46, v5
    s_cmp_ge_u32 s46, 4
    s_cbranch_scc0 BG_FSPIN
    buffer_load_dword v16, v12, s[28:31], s69 offen{SC1}
    buffer_load_dword v17, v13, s[28:31], s69 offen{SC1}
    ds_read_b128 v[24:27], v41
    ds_read_b128 v[28:31], v42
    ds_read_b128 v[32:35], v43
    ds_read_b128 v[44:47], v3
    ds_read_b128 v[48:51], v3 offset:128
    ds_read_b32 v52, v4
    ds_read_b32 v53, v4 offset:128
    ''')
    bg_tail_a(a)
    a(f'''
    s_and_b32 s46, s33, 1
    s_cmp_eq_u32 s46, 0
    s_cselect_b64 s[60:61], -1, 0
    s_cmp_eq_u32 s34, 0
    s_cselect_b64 s[62:63], -1, 0
    s_cmp_eq_u32 s41, 0
    s_cselect_b32 s64, 1, 0
    s_mov_b32 s65, s64
    s_or_b32 s46, s40, s33
    s_cmp_eq_u32 s46, 0
    s_cselect_b32 s66, -1, 0
    s_mov_b32 s67, 0
    s_lshl_b32 s46, s41, 5
    v_add_u32 v2, s46, v6
    v_sub_u32 v3, 512, v2
    v_mov_b32 v4, 256
    v_cndmask_b32 v3, v3, v4, s[64:65]
    v_lshlrev_b32 v2, 1, v2
    v_lshlrev_b32 v3, 1, v3
    v_add_u32 v2, 1024, v2
    v_add_u32 v3, 1024, v3
    s_lshl_b32 s46, s40, 5
    s_lshl_b32 s47, s33, 3
    s_add_u32 s46, s46, s47
    v_lshl_add_u32 v4, v7, 2, s46
    v_sub_u32 v5, {2048-3}, v4
    v_lshl_add_u32 v8, v4, 11, v2
    v_lshl_add_u32 v9, v4, 11, v3
    v_lshl_add_u32 v10, v5, 11, v2
    v_lshl_add_u32 v11, v5, 11, v3
    v_mov_b32 v4, {1024-3}
    v_cndmask_b32 v5, v5, v4, s[66:67]
    v_lshl_add_u32 v12, v5, 11, v2
    v_lshl_add_u32 v13, v5, 11, v3
    s_waitcnt vmcnt(0) lgkmcnt(0)
    ''')
    for i in range(4):
        a(f'''
        v_cndmask_b32 v36, v{32+i}, v{24+i}, s[60:61]
        v_cndmask_b32 v37, v{24+i}, v{32+i}, s[60:61]
        v_add_f32 v36, v36, v{20+i}
        v_add_f32 v37, v37, v{28+i}
        v_cndmask_b32 v{20+i}, v37, v36, s[62:63]
        v_cndmask_b32 v{24+i}, v36, v37, s[62:63]
        v_add_f32 v{44+i}, v{44+i}, v{48+i}
        ''')
        op = 'v_add_f32' if i % 2 == 0 else 'v_sub_f32'
        a(f'{op} v{20+i}, v{20+i}, v16\n{op} v{44+i}, v{44+i}, v17')
    a(f'''
    v_add_f32 v52, v52, v53
    v_add_f32 v52, v52, v16
    v_add_f32 v53, v24, v17
    v_cndmask_b32 v24, v24, 0, s[66:67]
    v_cndmask_b32 v53, v52, v53, s[64:65]
    ''')
    def fstores(i):
        t0 = 56 + 8*i
        a(f"""
        s_mov_b32 s46, {i*2048}
        s_mov_b32 s47, {(3-i)*2048}
        buffer_store_short v{t0+4}, v8, s[52:55], s46 offen
        buffer_store_short_d16_hi v{t0+4}, v{12 if i == 0 else 10}, s[52:55], s47 offen
        buffer_store_short v{t0+5}, v9, s[52:55], s46 offen
        buffer_store_short_d16_hi v{t0+5}, v{13 if i == 0 else 11}, s[52:55], s47 offen
        """)
    for i in range(4):
        t0 = 56 + 8*i
        a(f'''
        v_cndmask_b32 v{24+i}, v{24+i}, 0, s[64:65]
        v_sub_f32 v{t0}, v{20+i}, v{24+i}
        v_add_f32 v{t0+1}, v{20+i}, v{24+i}
        v_cndmask_b32 v{t0+2}, v{t0+1}, v{44+i}, s[64:65]
        v_cndmask_b32 v{t0+3}, v{t0}, v{44+i}, s[64:65]
        ''')
        if i == 0:
            a(f'''
            v_cndmask_b32 v{t0+1}, v{t0+1}, v52, s[66:67]
            v_cndmask_b32 v{t0+3}, v{t0+3}, v53, s[66:67]
            ''')
        a(f"""
        v_cvt_pk_bf16_f32 v{t0+4}, v{t0}, v{t0+1}
        v_cvt_pk_bf16_f32 v{t0+5}, v{t0+2}, v{t0+3}
        """)
        if LATEF < 2: fstores(i)
    if LATEF == 2:
        a('s_barrier')
        for i in range(4): fstores(i)

def wo_stage(a):
    srd(a, 48, 8, 0x80000)
    a(f"""
    v_lshrrev_b32 v90, 3, v0
    v_and_b32 v91, 7, v0
    v_and_b32 v92, 2, v90
    v_lshlrev_b32 v92, 1, v92
    v_xor_b32 v91, v91, v92
    v_lshlrev_b32 v91, 4, v91
    v_lshl_add_u32 v90, v90, 10, v91
    s_and_b32 s44, s40, 7
    s_lshl_b32 s45, s44, 7
    s_lshl_b32 s69, s33, 17
    s_add_u32 s45, s45, s69
    """)
    for i in range(16):
        a(f'buffer_load_dwordx4 {vr(96+4*i,4)}, v90, s[48:51], s45 offen\ns_add_u32 s45, s45, 8192')
    a(f"""
    s_lshl_b32 s69, s33, 14
    v_add_u32 v91, s69, v14
    s_lshr_b32 s69, s40, 3
    s_lshl_b32 s47, s41, 2
    s_add_u32 s69, s69, s47
    s_lshl_b32 s69, s69, {OFS+6}
    s_add_u32 s69, s69, {FLG_O}
    v_lshlrev_b32 v92, {OFS}, v0
    s_waitcnt vmcnt(0) lgkmcnt(0)
    s_barrier
    ds_read_b32 v93, v1 offset:{BADF-SCR}
    s_waitcnt lgkmcnt(0)
    v_readfirstlane_b32 s47, v93
    s_cmp_eq_u32 s47, 0
    s_cbranch_scc1 BG_T1
    s_barrier
    s_barrier
    BG_T1:
    """)
    for i in range(16): a(f'ds_write_b128 v91, {vr(96+4*i,4)} offset:{1024*i}')
    a('s_waitcnt lgkmcnt(0)\ns_barrier')

def o_poll(a):
    a('s_cmp_lg_u32 s33, 0\ns_cbranch_scc1 K3_OK')
    poll(a, 'K3', 92, 93, 's69')
    a('s_barrier')

def bg_tail_a(a):
    if DIRECT:
        a(f"""
        s_lshr_b32 s46, s40, 3
        s_lshl_b32 s47, s41, 2
        s_add_u32 s46, s46, s47
        s_lshl_b32 s46, s46, 9
        s_add_u32 s46, s46, {FLG_PZ}
        v_lshlrev_b32 v2, 4, v6
        """)
        poll(a, 'BG5', 2, 3, 's46')
    if LATEF: wo_stage(a)
    if LATEF == 2: a('s_setprio 0')

def bg_tail(a):
    if not LATEF: wo_stage(a)
    if not DIRECT: o_poll(a)
    if BGBAR: a('s_barrier')

def fused():
    a = Asm()
    a('s_cmp_ge_u32 s2, 256\ns_cbranch_scc1 K_END')
    a.stamp(0)
    a(f'''
    s_load_dwordx8 s[4:11], s[0:1], 0
    s_load_dwordx4 s[20:23], s[0:1], 64
    s_load_dwordx2 s[24:25], s[0:1], 80
    v_lshrrev_b32 v1, 6, v0
    v_and_b32 v0, 63, v0
    s_and_b32 s44, s2, 7
    v_readfirstlane_b32 s26, v1
    s_lshr_b32 s45, s2, 3
    s_and_b32 s46, s45, 3
    s_lshl_b32 s40, s44, 1
    s_and_b32 s40, s40, 12
    s_add_u32 s40, s40, s46
    s_lshr_b32 s47, s45, 2
    s_lshr_b32 s42, s47, 1
    s_and_b32 s41, s44, 1
    s_lshl_b32 s41, s41, 1
    s_and_b32 s48, s47, 1
    s_add_u32 s41, s41, s48
    s_lshl_b32 s43, s46, 1
    s_add_u32 s43, s43, s47
    s_and_b32 s43, s43, {ROT}
    {'s_sub_u32 s26, s26, 4' if BGFIRST else 's_cmp_ge_u32 s26, 8'}
    s_cbranch_scc1 K_BG
    s_getpc_b64 s[44:45]
    PC_HERE:
    s_sub_u32 s44, s44, PC_HERE-{NAME}
    s_subb_u32 s45, s45, 0
    v_lshlrev_b32 v6, 7, v0
    s_lshl_b32 s47, s26, 13
    v_add_u32 v6, s47, v6
    v_min_u32 v6, K_END-{NAME}, v6
    global_load_dword v143, v6, s[44:45]
    s_branch K_MAIN
    K_BG:
    ''')
    background(a)
    a.stamp(6)
    bg_tail(a)
    a.flush(0, 26, grp=1)
    a('s_endpgm')
    a('.p2align 6')
    a('K_MAIN:')
    phase1(a)
    attention(a)
    oproj(a)
    if TAILPROF: a.stamp(4)
    if PROF: a('s_waitcnt vmcnt(0)')
    a.flush(0, 26)
    a('K_END:')
    a('s_endpgm')
    return header(NAME) + a.text(), kd(NAME, 160, 100)

if __name__ == '__main__':
    import sys
    c, d = fused()
    doc = """; One persistent launch, 256 workgroups (one per CU) of 8 attention waves + 4 helper waves.
"""
    out = '; @launch grid=(256,1,1) block=(768,1,1) lds=163840\n' + doc + '.amdgcn_target "amdgcn-amd-amdhsa--gfx950"\n.text\n' + c + '.section .rodata,"a"\n' + d
    open(sys.argv[1], 'w').write(out)
```
